```python
import torch

def _softmax(x, axis=-1):
    return torch.softmax(x, dim=axis)

def _gelu(x):
    return torch.nn.functional.gelu(x, approximate='tanh')

def _silu(x):
    return torch.nn.functional.silu(x)

def _sigmoid(x):
    return torch.sigmoid(x)

def _layernorm(x, axis=-1, eps=1e-05):
    m = x.mean(dim=axis, keepdim=True)
    v = x.var(dim=axis, keepdim=True, unbiased=False)
    return (x - m) / torch.sqrt(v + eps)

def _scatter_add(tgt, idx, src, axis=0):
    return tgt.clone().index_add_(axis, idx, src)

def _segment_sum(src, seg, n):
    out = torch.zeros((n,) + src.shape[1:], dtype=src.dtype)
    return out.index_add_(0, seg, src)

def _pad(x, pw):
    flat = tuple((v for pair in reversed(pw) for v in pair))
    return torch.nn.functional.pad(x, flat)
kernel_name = 'parallel_sum__memory_aug_recurrent_mem_tr__swiglu_ffn__prompt'

def setup_inputs():

    _w = lambda a: (lambda t: t.to(torch.bfloat16) if t.is_floating_point() else t)(torch.as_tensor(a))

    def _A_setup():
        B, S, Dm = (1, 2048, 640)
        H, Dh = (32, 128)
        M, seg = (8, 32)
        seg = min(seg, S)
        S = S // seg * seg
        return {'x': _w((lambda *s: torch.randn(*s, dtype=torch.bfloat16) * 0.05)(B, S, Dm)), 'mem0': _w((lambda *s: torch.randn(*s, dtype=torch.bfloat16) * 1.6)(B, M, Dm)), 'Wq': _w((lambda *s: torch.randn(*s, dtype=torch.bfloat16) * 0.8)(Dm, H, Dh) * Dm ** (-0.5)), 'Wk': _w((lambda *s: torch.randn(*s, dtype=torch.bfloat16) * 0.8)(Dm, H, Dh) * Dm ** (-0.5)), 'Wv': _w((lambda *s: torch.randn(*s, dtype=torch.bfloat16) * 1.6)(Dm, H, Dh) * Dm ** (-0.5)), 'Wo': _w((lambda *s: torch.randn(*s, dtype=torch.bfloat16) * 1.6)(H, Dh, Dm) * (H * Dh) ** (-0.5)), 'seg_len': seg}
    _A_in = _A_setup()

    def _B_setup():
        B, S, D, F = (1, 2048, 640, 1728)
        return {'x': _w((lambda *s: torch.randn(*s, dtype=torch.bfloat16) * 0.05)(B, S, D)), 'w_gate': _w((lambda *s: torch.randn(*s, dtype=torch.bfloat16) * 0.05)(D, F)), 'w_up': _w((lambda *s: torch.randn(*s, dtype=torch.bfloat16) * 0.05)(D, F)), 'w_down': _w((lambda *s: torch.randn(*s, dtype=torch.bfloat16) * 0.05)(F, D))}
    _B_in = _B_setup()
    return {'A_x': _A_in['x'], 'A_mem0': _A_in['mem0'], 'A_Wq': _A_in['Wq'], 'A_Wk': _A_in['Wk'], 'A_Wv': _A_in['Wv'], 'A_Wo': _A_in['Wo'], 'A_seg_len': _A_in['seg_len'], 'B_x': _B_in['x'], 'B_w_gate': _B_in['w_gate'], 'B_w_up': _B_in['w_up'], 'B_w_down': _B_in['w_down']}

def reference(A_x, A_mem0, A_Wq, A_Wk, A_Wv, A_Wo, A_seg_len, B_x, B_w_gate, B_w_up, B_w_down):

    def _A_ref(x, mem0, Wq, Wk, Wv, Wo, seg_len):
        B, S, Dm = x.shape
        H, Dh = (Wq.shape[1], Wq.shape[2])
        M = mem0.shape[1]
        scale = Dh ** (-0.5)
        n_seg = S // seg_len
        L = M + seg_len
        idx = torch.arange(L)
        mask = (idx[:, None] < M) | (idx[:, None] >= idx[None, :])
        mem = mem0
        outs = []
        for s in range(n_seg):
            xs = x[:, s * seg_len:(s + 1) * seg_len, :].clone()
            h = torch.concatenate([mem, xs], axis=1)
            q = torch.einsum('btd,dhe->bhte', h, Wq)
            k = torch.einsum('btd,dhe->bhte', h, Wk)
            v = torch.einsum('btd,dhe->bhte', h, Wv)
            scores = torch.einsum('bhqe,bhke->bhqk', q, k) * scale
            scores = torch.where(mask[None, None], scores, -1000000000.0)
            p = _softmax(scores, axis=-1)
            o = torch.einsum('bhqk,bhke->bhqe', p, v)
            o = torch.einsum('bhte,hed->btd', o, Wo)
            mem = o[:, :M, :].clone()
            outs.append(o[:, M:, :])
        return torch.concatenate(outs, axis=1)

    def _B_ref(x, w_gate, w_up, w_down):
        g = _silu(x @ w_gate)
        u = x @ w_up
        return g * u @ w_down
    x = A_x
    xn = _layernorm(x, axis=-1)
    return x + _A_ref(xn, A_mem0, A_Wq, A_Wk, A_Wv, A_Wo, A_seg_len) + _B_ref(xn, B_w_gate, B_w_up, B_w_down)
```

```python
class Asm:
    def __init__(self):
        self.lines = []
        self._lab = 0
    def __call__(self, s=""):
        for ln in s.split("\n"):
            ln = ln.strip()
            if not ln:
                continue
            if ln.endswith(":") or ln.startswith(".") or ln.startswith(";"):
                self.lines.append(ln)
            else:
                self.lines.append("    " + ln)
    def label(self, base="L"):
        self._lab += 1
        return f"{base}_{self._lab}"
    def text(self):
        return "\n".join(self.lines) + "\n"

def vr(a, n=1):
    return f"v{a}" if n == 1 else f"v[{a}:{a+n-1}]"
def ar(a, n=1):
    return f"a{a}" if n == 1 else f"a[{a}:{a+n-1}]"
def sr(a, n=1):
    return f"s{a}" if n == 1 else f"s[{a}:{a+n-1}]"

def kernel_begin(A, name):
    A(f".text\n.globl {name}\n.p2align 8\n.type {name},@function\n{name}:")

def kernel_desc(A, name, vgpr, accum, sgpr=102, kernarg=112):
    A(f""".section .rodata,"a"
.p2align 6
.amdhsa_kernel {name}
.amdhsa_next_free_vgpr {vgpr}
.amdhsa_next_free_sgpr {sgpr}
.amdhsa_accum_offset {accum}
.amdhsa_group_segment_fixed_size 0
.amdhsa_kernarg_size {kernarg}
.amdhsa_user_sgpr_count 2
.amdhsa_user_sgpr_kernarg_segment_ptr 1
.amdhsa_system_sgpr_workgroup_id_x 1
.amdhsa_float_denorm_mode_32 3
.end_amdhsa_kernel""")

import re
_REG = re.compile(r"^(-?\|?|abs\()?([vas])(\d+|\[(\d+):(\d+)\])\)?\|?$")
def regs_of(op):
    op = op.strip()
    if op in ("vcc",): return {("s",106),("s",107)}
    if op == "vcc_lo": return {("s",106)}
    if op == "vcc_hi": return {("s",107)}
    if op == "exec": return {("s",126),("s",127)}
    if op == "m0": return {("s",124)}
    m = _REG.match(op)
    if not m: return set()
    k = m.group(2)
    if m.group(4) is not None:
        return {(k,i) for i in range(int(m.group(4)), int(m.group(5))+1)}
    return {(k,int(m.group(3)))}
TRANS = ("v_exp_f32","v_log_f32","v_rcp_f32","v_rsq_f32","v_sqrt_f32","v_sin_f32","v_cos_f32")
class Ins:
    __slots__=("text","op","ops","cls","wr","rd","passes","C","AB","dpp","states","target","isbranch","uncond","data","lds_dma","sdata")
def split_ops(rest):
    out=[];depth=0;cur=""
    for ch in rest:
        if ch in "[(": depth+=1
        if ch in "])": depth-=1
        if ch=="," and depth==0: out.append(cur.strip());cur=""
        else: cur+=ch
    if cur.strip(): out.append(cur.strip())
    return out
def parse(line):
    t=line.split(";")[0].strip()
    I=Ins(); I.text=line
    sp=t.split(None,1); op=sp[0]; I.op=op
    rest=sp[1] if len(sp)>1 else ""
    ops=split_ops(rest)
    mods=""
    if ops:
        last=ops[-1].split()
        if len(last)>1:
            ops[-1]=last[0]; mods=" ".join(last[1:])
    I.ops=ops; I.passes=0; I.C=set(); I.AB=set(); I.dpp=("dpp" in op) or ("row_" in mods) or ("quad_perm" in mods)
    I.states=1; I.target=None; I.isbranch=False; I.uncond=False; I.data=set(); I.lds_dma=False
    R=[regs_of(o) for o in ops]
    U=lambda L: set().union(*L) if L else set()
    if op.startswith("v_mfma"):
        I.cls="mfma"; I.wr=R[0]; I.AB=R[1]|R[2]; I.C=R[3]; I.rd=I.AB|I.C
        I.passes=8 if "32x32" in op else 4
    elif op.startswith("v_smfmac"):
        I.cls="mfma"; I.wr=R[0]; I.AB=R[1]|R[2]|R[3]; I.C=R[0]; I.rd=I.AB|I.C
        I.passes=8 if "32x32" in op else 4
    elif op.startswith("v_"):
        I.cls="valu"
        if op.startswith("v_cmp"):
            I.wr=R[0]; I.rd=U(R[1:])
        elif op.startswith("v_permlane") and "swap" in op:
            I.wr=R[0]|R[1]; I.rd=R[0]|R[1]
        elif op.startswith(("v_add_co","v_sub_co","v_addc_co","v_subb_co")):
            I.wr=R[0]|R[1]; I.rd=U(R[2:])
        elif op.startswith(("v_fmac","v_pk_fmac","v_dot2c")):
            I.wr=R[0]; I.rd=U(R)
        else:
            I.wr=R[0]; I.rd=U(R[1:])
            if I.dpp: I.rd|=R[0]
            if op.startswith("v_cndmask") and len(ops)==3: I.rd|=regs_of("vcc")
    elif op.startswith("ds_"):
        I.cls="ds"
        if op.startswith("ds_read"): I.wr=R[0]; I.rd=U(R[1:])
        else: I.wr=set(); I.rd=U(R)
    elif op.startswith(("buffer_","global_")):
        I.cls="vmem"
        lds=(" lds" in " "+mods) or ("_lds_" in op)
        I.lds_dma=lds
        if lds: I.wr=set(); I.rd=U(R)|regs_of("m0")
        elif "load" in op: I.wr=R[0]; I.rd=U(R[1:])|(R[0] if "d16" in op else set())
        elif "store" in op:
            I.wr=set(); I.rd=U(R)
            if op.endswith(("x3","x4")): I.data=R[0] if op.startswith("buffer") else R[1]
        elif "atomic" in op:
            ret="sc0" in mods
            I.wr=R[0] if ret else set(); I.rd=U(R[1:] if ret else R)
        else: I.wr=set(); I.rd=U(R)
    else:
        I.cls="salu"
        if op=="s_nop": I.states=int(ops[0],0)+1; I.wr=set(); I.rd=set()
        elif op.startswith(("s_cbranch","s_branch")):
            I.isbranch=True; I.target=ops[0]; I.uncond=(op=="s_branch"); I.wr=set(); I.rd=set()
        elif op=="s_endpgm": I.uncond=True; I.wr=set(); I.rd=set()
        elif op.startswith(("s_cmp","s_waitcnt","s_barrier","s_sleep","s_setprio","s_bitcmp")): I.wr=set(); I.rd=U(R)
        else: I.wr=R[0] if R else set(); I.rd=U(R[1:])
    return I
def vonly(S): return {r for r in S if r[0] in "va"}
def sonly(S): return {r for r in S if r[0]=="s"}
def need(P,Cn):
    n=0
    if P.cls=="valu":
        w=vonly(P.wr)
        if Cn.cls=="mfma" and w&Cn.rd: n=max(n,2)
        if Cn.cls=="valu":
            if P.op.startswith(TRANS) and not Cn.op.startswith(TRANS) and w&Cn.rd: n=max(n,1)
            if Cn.op.startswith("v_permlane") and w&Cn.rd: n=max(n,2)
            if Cn.dpp and w&Cn.rd: n=max(n,2)
            if Cn.op.startswith(("v_readlane","v_readfirstlane")) and w&Cn.rd: n=max(n,1)
        sw=sonly(P.wr)
        if sw:
            if Cn.cls=="valu" and sw&Cn.rd: n=max(n,4 if Cn.op.startswith(("v_readlane","v_writelane")) else 2)
            if Cn.cls=="vmem" and sw&Cn.rd: n=max(n,5)
    if P.cls=="mfma":
        big = P.passes==8
        if Cn.cls=="mfma":
            if P.wr&Cn.AB: n=max(n,12 if big else 8)
            if P.wr&Cn.C and not (P.wr==Cn.C and P.passes==Cn.passes): n=max(n,10 if big else 6)
            if P.wr&Cn.wr and not (P.wr==Cn.C and P.passes==Cn.passes) and not (P.wr&Cn.C): n=max(n,10 if big else 6)
        else:
            if P.wr&(Cn.rd|Cn.wr): n=max(n,12 if big else 8)
            if Cn.cls=="valu" and P.C&Cn.wr: n=max(n,7 if big else 3)
    if P.cls=="vmem" and P.data and Cn.cls in("valu","mfma") and P.data&Cn.wr: n=max(n,2)
    if P.cls=="vmem" and P.data and Cn.cls in("ds","vmem") and P.data&Cn.wr: n=max(n,1)
    if P.cls=="salu" and ("s",124) in P.wr and Cn.lds_dma: n=max(n,1)
    return n
def fix_hazards(lines, verbose=False, W=14):
    items=[]
    for ln in lines:
        s=ln.split(";")[0].strip()
        if not s or s.startswith("."): items.append(("raw",ln))
        elif s.endswith(":"): items.append(("label",s[:-1],ln))
        else: items.append(("ins",parse(ln)))
    changed=True; total=0
    while changed:
        changed=False
        labels={it[1]:i for i,it in enumerate(items) if it[0]=="label"}
        srcs={}
        for i,it in enumerate(items):
            if it[0]=="ins" and it[1].isbranch: srcs.setdefault(labels[it[1].target],[]).append(i)
        def walk(i,dist,Cn,seen):
            best=0; j=i-1
            while j>=0 and dist<W:
                it=items[j]
                if it[0]=="label":
                    for s in srcs.get(j,[]):
                        key=(s,dist)
                        if key not in seen:
                            seen.add(key)
                            P=items[s][1]
                            best=max(best,walk(s,dist+P.states,Cn,seen))
                elif it[0]=="ins":
                    P=it[1]
                    if P.uncond: break
                    best=max(best,need(P,Cn)-dist)
                    dist+=P.states
                j-=1
            return best
        i=0
        while i<len(items):
            it=items[i]
            if it[0]=="ins" and it[1].cls!="salu":
                sh=walk(i,0,it[1],set())
                if sh>0:
                    if verbose: print("nop",sh,"before",it[1].text.strip())
                    items.insert(i,("ins",parse(f"    s_nop {sh-1}")))
                    total+=1; changed=True
                    break_outer=True
                    labels={x[1]:k for k,x in enumerate(items) if x[0]=="label"}
                    srcs={}
                    for k,x in enumerate(items):
                        if x[0]=="ins" and x[1].isbranch: srcs.setdefault(labels[x[1].target],[]).append(k)
                    i+=1
            i+=1
    out=[]
    for it in items:
        out.append(it[1] if it[0]=="raw" else it[2] if it[0]=="label" else it[1].text)
    return out,total

class Cnt:
    def __init__(self,A,name,maxn): self.A=A; self.name=name; self.maxn=maxn; self.n=0
    def issue(self,text,k=1):
        self.A(text); self.n+=k; return self.n
    def wait(self,tok,extra=0):
        N=self.n-tok+extra
        assert N>=0
        self.A(f"s_waitcnt {self.name}({min(N,self.maxn)})")
    def waitall(self): self.A(f"s_waitcnt {self.name}(0)")
```

```python
from common import *
WS=f"s[{S_WS}:{S_WS+3}]"; DB=f"s[{S_DB}:{S_DB+3}]"; TS=f"s[{S_T}:{S_T+3}]"
sI="s17"
sT=[f"s{i}" for i in range(50,60)]
sSpin="s62"
LOG2E=1.4426950408889634

def poll_ge(A,vaddr,vtmp,need,srd,code,sleep=4,soff="0"):
    L=A.label("L_pw"); ok=A.label("L_pok")
    A(f"s_mov_b32 {sSpin}, 0\n{L}:\nbuffer_load_dword {vtmp}, {vaddr}, {srd}, {soff} offen sc1\ns_waitcnt vmcnt(0)")
    A(f"v_cmp_gt_u32 vcc, {need}, {vtmp}\ns_cbranch_vccz {ok}")
    spin_tail(A,sSpin,L,code,sleep=sleep)
    A(f"{ok}:")

def rstamp(A,opt,k):
    if not opt.get('prof'): return
    L=A.label("L_rs")
    A(f"""s_cmp_lg_u32 {sW}, 0
s_cbranch_scc1 {L}
s_memrealtime s[98:99]
s_waitcnt lgkmcnt(0)
s_lshl_b32 s99, s2, 6
s_add_u32 s99, s99, {PROF+0xC0000+4*k}
v_mov_b32 v254, s98
v_mov_b32 v255, 0
s_mov_b64 exec, 1
buffer_store_dword v254, v255, {WS}, s99 offen
s_mov_b64 exec, -1
{L}:""")

def xlane_sum(A,v,t):
    A(f"""v_add_f32_dpp {v}, {v}, {v} row_ror:8 row_mask:0xf bank_mask:0xf
v_mov_b32 {t}, {v}
v_permlane16_swap_b32 {v}, {t}
v_add_f32 {v}, {v}, {t}
v_mov_b32 {t}, {v}
v_permlane32_swap_b32 {v}, {t}
v_add_f32 {v}, {v}, {t}""")

def aux_work(A,sA,opt):
    RAW,X=16,64
    srd(A,S_T,P_X,2048*1280)
    A(f"""
v_and_b32 v10, 63, v0
v_and_b32 v1, 7, v10
v_lshrrev_b32 v2, 3, v10
v_mul_u32_u24 v3, 1280, v1
v_lshl_add_u32 v3, v2, 4, v3
s_lshl_b32 {sT[0]}, {sA}, 2
s_add_u32 {sT[0]}, {sT[0]}, {sW}
s_mul_i32 {sT[0]}, {sT[0]}, {8*1280}
""")
    for j in range(10): A(f"buffer_load_dwordx4 {vr(RAW+4*j,4)}, v3, {TS}, {sT[0]} offen offset:{128*j}")
    A(f"""
v_mov_b32 v4, 0
v_mov_b32 v5, 0
v_mov_b32 v6, 0
v_mov_b32 v7, 0
v_lshlrev_b32 v8, 4, v0
v_mov_b32 v9, 0x7ffffff0
v_cmp_gt_u32 vcc, 24, v0
v_cndmask_b32 v8, v9, v8, vcc
s_mul_i32 {sT[1]}, {sA}, 384
s_add_u32 {sT[1]}, {sT[1]}, {FLAGS}
buffer_store_dwordx4 v[4:7], v8, {WS}, {sT[1]} offen sc1
v_lshrrev_b32 v4, 1, v2
v_lshlrev_b32 v4, 10, v4
v_and_b32 v5, 1, v2
v_lshl_add_u32 v4, v5, 9, v4
v_lshl_add_u32 v4, v1, 4, v4
s_mul_i32 {sT[2]}, {sA}, 40960
s_lshl_b32 {sT[3]}, {sW}, 7
s_add_u32 {sT[2]}, {sT[2]}, {sT[3]}
s_add_u32 {sT[2]}, {sT[2]}, {XNF}
""")
    ring_reset(A,sA)
    for j in range(10):
        A(f"s_waitcnt vmcnt({15-j})")
        for k in range(4):
            A(f"v_lshlrev_b32 v{X+8*j+2*k}, 16, v{RAW+4*j+k}\nv_and_b32 v{X+8*j+2*k+1}, 0xffff0000, v{RAW+4*j+k}")
    A(f"v_pk_add_f32 v[6:7], {vr(X,2)}, {vr(X+2,2)}")
    for i in range(4,80,2): A(f"v_pk_add_f32 v[6:7], v[6:7], {vr(X+i,2)}")
    A("v_add_f32 v6, v6, v7"); xlane_sum(A,"v6","v7")
    A(f"v_mul_f32 v6, {hex(f2u(1/640))}, v6")
    A(f"v_pk_add_f32 v[12:13], {vr(X,2)}, v[6:7] op_sel_hi:[1,0] neg_lo:[0,1] neg_hi:[0,1]\nv_pk_mul_f32 v[8:9], v[12:13], v[12:13]")
    for i in range(2,80,2):
        A(f"v_pk_add_f32 v[12:13], {vr(X+i,2)}, v[6:7] op_sel_hi:[1,0] neg_lo:[0,1] neg_hi:[0,1]\nv_pk_fma_f32 v[8:9], v[12:13], v[12:13], v[8:9]")
    A("v_add_f32 v8, v8, v9"); xlane_sum(A,"v8","v9")
    A(f"""
v_mul_f32 v8, {hex(f2u(1/640))}, v8
v_cvt_pk_bf16_f32 v6, v6, v6
v_and_b32 v6, 0xffff0000, v6
v_cvt_pk_bf16_f32 v8, v8, v8
v_and_b32 v8, 0xffff0000, v8
v_add_f32 v8, {hex(f2u(1e-5))}, v8
v_cvt_pk_bf16_f32 v8, v8, v8
v_and_b32 v8, 0xffff0000, v8
v_sqrt_f32 v8, v8
v_cvt_pk_bf16_f32 v8, v8, v8
v_and_b32 v8, 0xffff0000, v8
v_rcp_f32 v8, v8
""")
    for j in range(10):
        for k in range(4):
            r=X+8*j+2*k
            A(f"""v_pk_add_f32 {vr(r,2)}, {vr(r,2)}, v[6:7] op_sel_hi:[1,0] neg_lo:[0,1] neg_hi:[0,1]
v_cvt_pk_bf16_f32 v12, v{r}, v{r+1}
v_lshlrev_b32 v{r}, 16, v12
v_and_b32 v{r+1}, 0xffff0000, v12
v_pk_mul_f32 {vr(r,2)}, {vr(r,2)}, v[8:9] op_sel_hi:[1,0]
v_cvt_pk_bf16_f32 v{RAW+4*j+k}, v{r}, v{r+1}""")
        A(f"buffer_store_dwordx4 {vr(RAW+4*j,4)}, v4, {WS}, {sT[2]} offen sc1")
        if j<9: A(f"s_add_u32 {sT[2]}, {sT[2]}, 4096")
    A(f"""
s_waitcnt vmcnt(0)
s_barrier
s_cmp_lg_u32 {sW}, 0
s_cbranch_scc1 L_aux1
v_mov_b32 v4, 1
v_mov_b32 v5, {D_C1}
s_mov_b64 exec, 1
buffer_atomic_add v4, v5, {DB}, 0 offen sc1
s_mov_b64 exec, -1
L_aux1:
""")
    rstamp(A,opt,9)

def ring_reset(A,sA):
    A(f"""
v_mov_b32 v56, -1
v_lshrrev_b32 v57, 1, v10
v_lshlrev_b32 v57, 14, v57
v_and_b32 v58, 1, v10
v_lshl_add_u32 v57, v58, 6, v57
v_lshlrev_b32 v58, 6, v58
v_bfe_u32 v60, v10, 1, 1
v_lshl_add_u32 v58, v60, 13, v58
v_mov_b32 v59, 0x7ffffff0
v_cmp_gt_u32 vcc, 40, v10
v_cndmask_b32 v57, v59, v57, vcc
s_mul_i32 s21, {sW}, {20*16384}
s_lshl_b32 s22, {sA}, 7
s_add_u32 s21, s21, s22
""")
    for off in (0,8192,PAGE,PAGE+8192):
        A(f"s_add_u32 s23, s21, {off}\nbuffer_store_dword v56, v57, {WS}, s23 offen sc1")
    A(f"""
s_lshl_b32 s23, {sW}, 6
s_add_u32 s23, s23, {sA}
s_cmp_lt_u32 s23, 80
s_cselect_b32 s24, 4, 0
v_cmp_gt_u32 vcc, s24, v10
v_cndmask_b32 v58, v59, v58, vcc
s_min_u32 s23, s23, 79
s_mul_i32 s24, s23, 3277
s_lshr_b32 s24, s24, 16
s_mul_i32 s25, s24, 20
s_sub_u32 s23, s23, s25
s_lshl_b32 s23, s23, 7
s_lshr_b32 s25, s24, 1
s_lshl_b32 s25, s25, 14
s_add_u32 s23, s23, s25
s_and_b32 s25, s24, 1
s_lshl_b32 s25, s25, 12
s_add_u32 s23, s23, s25
s_add_u32 s23, s23, {80*16384}
buffer_store_dword v56, v58, {WS}, s23 offen sc1
""")

def probe_side(A,opt):
    A(f"""
v_and_b32 v10, 63, v0
v_and_b32 v1, 7, v10
v_lshlrev_b32 v1, 4, v1
v_mov_b32 v12, 0
v_mov_b32 v13, 0
v_mov_b32 v14, 0
v_mov_b32 v15, 0
s_lshr_b32 s21, {sW}, 1
s_lshl_b32 s20, s21, 12
s_add_u32 s20, s20, {112*16384}
v_mov_b32 v3, 0
v_mov_b32 v4, -1
v_mov_b32 v5, -1
ds_write_b64 v3, v[4:5]
s_and_b32 s25, {sW}, 1
s_lshl_b32 s26, s25, 2
v_mov_b32 v8, s26
s_mov_b32 s24, 0                  ; round
s_mov_b32 s21, 0
s_mov_b64 exec, 0xff
s_waitcnt lgkmcnt(0)
s_barrier
L_probe:
s_and_b32 s22, s24, 15
s_lshl_b32 s22, s22, 8
s_lshl_b32 s23, s21, 21
s_add_u32 s22, s22, s23
s_add_u32 s22, s22, s20
s_xor_b32 s23, s21, s25
s_and_b32 s23, s23, 1
s_lshl_b32 s23, s23, 13
s_add_u32 s22, s22, s23
buffer_load_dwordx4 v[16:19], v1, {WS}, s22 offen sc1
s_waitcnt vmcnt(0)
buffer_store_dwordx4 v[12:15], v1, {WS}, s22 offen sc1
s_waitcnt vmcnt(0)
s_memtime s[26:27]
s_waitcnt lgkmcnt(0)
buffer_load_dwordx4 v[16:19], v1, {WS}, s22 offen sc1
s_waitcnt vmcnt(0)
s_memtime s[28:29]
s_waitcnt lgkmcnt(0)
s_sub_u32 s23, s28, s26
v_mov_b32 v7, s23
ds_min_u32 v8, v7
s_waitcnt lgkmcnt(0)
s_barrier
ds_read_b64 v[6:7], v3
s_waitcnt lgkmcnt(0)
v_readfirstlane_b32 s26, v6
v_readfirstlane_b32 s27, v7
s_barrier
s_add_u32 s21, s21, 1
s_cmp_eq_u32 s21, 3
s_cselect_b32 s21, 0, s21
s_add_u32 s24, s24, 1
s_cmp_lt_u32 s24, 3
s_cbranch_scc1 L_probe
s_sub_i32 s28, s26, s27
s_abs_i32 s28, s28
s_min_u32 s29, s26, s27
s_cmp_ge_u32 s29, 640
s_cselect_b32 s28, 0, s28
s_cmp_ge_u32 s28, 140
s_cbranch_scc1 L_probe_end
s_cmp_lt_u32 s24, 48
s_cbranch_scc1 L_probe
L_probe_end:
s_cmp_lt_u32 s26, s27
s_cselect_b32 s21, 2, 5
""")
    if 'pol' in opt: A(f"s_mov_b32 s21, {opt['pol']}")
    if opt.get('prof'): A("s_lshl_b32 s24, s24, 4\ns_or_b32 s21, s21, s24\ns_lshr_b32 s26, s26, 2\ns_lshl_b32 s26, s26, 10\ns_or_b32 s21, s21, s26\ns_lshr_b32 s27, s27, 2\ns_lshl_b32 s27, s27, 20\ns_or_b32 s21, s21, s27")
    A(f"""
s_or_b32 s21, s21, 0x80000000
v_mov_b32 v2, s21
v_mov_b32 v5, {D_POL}
s_mov_b64 exec, 1
buffer_store_dword v2, v5, {DB}, 0 offen sc1
s_mov_b64 exec, -1
""")
    rstamp(A,opt,9)

def tr_base(A,dst,l,order,base):
    A(f"""v_lshrrev_b32 v11, 5, {l}
v_lshlrev_b32 v11, {9 if order==0 else 8}, v11
v_bfe_u32 v12, {l}, 2, 2
v_lshl_add_u32 v11, v12, 6, v11
v_bfe_u32 v12, {l}, 4, 1
v_lshl_add_u32 v11, v12, 5, v11
v_and_b32 v12, 3, {l}
v_lshl_add_u32 v11, v12, 3, v11
v_add_u32 {dst}, {base}, v11""")
    return 256 if order==0 else 512

def role_proj(A,kind,opt):
    tag=kind
    NS=2 if kind=="Q" else 3
    vL16,vTR,vST,vFL=1,2,3,4
    ACC=16; FB=32; NF=6
    sL,sS,sXN,sSlot,sOut,sFlag,sDst=[f"s{i}" for i in range(32,39)]
    vm=Cnt(A,"vmcnt",63); lg=Cnt(A,"lgkmcnt",15)
    A(f"""
v_and_b32 v10, 63, v0
v_lshlrev_b32 v{vL16}, 4, v10
s_mul_i32 {sL}, {sW}, 40960
""")
    ustep=tr_base(A,f"v{vTR}","v10",0,sL)
    if kind!="F":
        srd(A,S_T,{"K":P_WK,"V":P_WV,"Q":P_WQ}[kind],5242880)
        A(f"""v_lshrrev_b32 v11, 2, v10
v_lshlrev_b32 v11, 13, v11
v_and_b32 v12, 3, v10
v_lshl_add_u32 v13, v12, 4, v11
s_lshl_b32 {sT[0]}, {sI}, 8
s_lshl_b32 {sT[1]}, {sW}, 6
s_add_u32 {sT[0]}, {sT[0]}, {sT[1]}""")
        toks=[]
        for i in range(40):
            A(f"s_add_u32 m0, {sL}, {i*1024}\ns_add_u32 {sT[1]}, {sT[0]}, {i*16*8192}")
            toks.append(vm.issue(f"buffer_load_dwordx4 v13, {TS}, {sT[1]} offen lds"))
    else:
        A(f"""v_lshrrev_b32 v11, 2, v10
v_mul_u32_u24 v11, 3456, v11
v_and_b32 v12, 1, v10
v_lshl_add_u32 v11, v12, 4, v11
s_lshl_b32 {sT[0]}, {sI}, 7
s_lshl_b32 {sT[1]}, {sW}, 5
s_add_u32 {sT[0]}, {sT[0]}, {sT[1]}
v_add_u32 v11, {sT[0]}, v11
v_mov_b32 v12, s{P_WG}
v_mov_b32 v13, s{P_WG+1}
v_mov_b32 v14, s{P_WU}
v_mov_b32 v15, s{P_WU+1}
v_and_b32 v5, 2, v10
v_cmp_eq_u32 vcc, 0, v5
v_cndmask_b32 v12, v14, v12, vcc
v_cndmask_b32 v13, v15, v13, vcc
v_add_co_u32 v12, vcc, v12, v11
v_addc_co_u32 v13, vcc, 0, v13, vcc""")
        toks=[]
        for i in range(40):
            A(f"s_add_u32 m0, {sL}, {i*1024}\ns_nop 0")
            toks.append(vm.issue(f"global_load_lds_dwordx4 v[12:13], off"))
            if i<39: A(f"v_add_co_u32 v12, vcc, {16*3456}, v12\nv_addc_co_u32 v13, vcc, 0, v13, vcc")
    if kind in "KQ":
        A(f"""v_bfe_u32 v11, v10, 4, 1
v_lshlrev_b32 v11, 12, v11
v_lshrrev_b32 v12, 5, v10
v_lshl_add_u32 v11, v12, 8, v11
v_and_b32 v12, 15, v10
v_lshl_add_u32 v{vST}, v12, 4, v11""")
    elif kind=="V":
        A(f"""v_bfe_u32 v11, v10, 4, 1
v_lshlrev_b32 v11, 10, v11
v_lshrrev_b32 v12, 5, v10
v_lshl_add_u32 v11, v12, 8, v11
v_and_b32 v12, 15, v10
v_lshl_add_u32 v{vST}, v12, 4, v11""")
    else: A(f"v_mov_b32 v{vST}, v{vL16}")
    if kind=="K": A(f"s_lshl_b32 {sOut}, {sI}, 19\ns_lshl_b32 {sT[2]}, {sW}, 10\ns_add_u32 {sOut}, {sOut}, {sT[2]}\ns_add_u32 {sOut}, {sOut}, {KXF}")
    if kind=="V": A(f"s_lshl_b32 {sOut}, {sI}, 19\ns_lshl_b32 {sT[2]}, {sW}, 11\ns_add_u32 {sOut}, {sOut}, {sT[2]}\ns_add_u32 {sOut}, {sOut}, {VXF}")
    if kind=="F": A(f"s_lshl_b32 {sOut}, {sI}, 2\ns_add_u32 {sOut}, {sOut}, {sW}\ns_lshl_b32 {sOut}, {sOut}, 10\ns_add_u32 {sOut}, {sOut}, {HF}")
    fbase={"K":F_KP,"V":F_VP,"F":F_HP,"Q":F_OP}[kind]
    A(f"s_lshl_b32 {sFlag}, {sI}, 7\ns_lshl_b32 {sT[2]}, {sW}, 2\ns_add_u32 {sFlag}, {sFlag}, {sT[2]}\ns_add_u32 {sFlag}, {sFlag}, {fbase}")
    for i in range(40):
        vm.wait(toks[i])
        for u in range(2): lg.issue(f"ds_read_b64_tr_b16 {ar(4*i+2*u,2)}, v{vTR} offset:{i*1024+u*ustep}")
    rstamp(A,opt,1)
    if kind=="Q": q_setup(A)
    A(f"v_mov_b32 v5, {D_C1}")
    poll_ge(A,"v5","v6",NAUX,DB,0x210+"KVQF".index(kind),sleep=4)
    rstamp(A,opt,2)
    A(f"""s_waitcnt lgkmcnt(0)
s_barrier
s_mul_i32 {sXN}, {sW}, 10240
s_add_u32 {sXN}, {sXN}, {XNF}
s_mul_i32 {sDst}, {sW}, 10240
s_mov_b32 {sSlot}, 0
s_mov_b32 {sS}, 0
""")
    def xdma(k):
        so=f"{sT[3]}"
        if k%4==0: A(f"s_add_u32 m0, {sDst}, {k*1024}\ns_add_u32 {so}, {sXN}, {k*1024}")
        vm.issue(f"buffer_load_dwordx4 v{vL16}, {WS}, {so} offen offset:{(k%4)*1024} lds")
    def xadv():
        A(f"""s_add_u32 {sXN}, {sXN}, 40960
s_add_u32 {sDst}, {sDst}, 40960
s_cmp_ge_u32 {sDst}, {NS*40960}
s_cselect_b32 {sT[4]}, {NS*40960}, 0
s_sub_u32 {sDst}, {sDst}, {sT[4]}""")
    for n in range(NS-1):
        for k in range(10): xdma(k)
        xadv()
    A(f"s_waitcnt vmcnt({10*(NS-2)})")
    A(f"L_{tag}_loop:")
    vm=Cnt(A,"vmcnt",63); lg=Cnt(A,"lgkmcnt",15)
    A(f"s_barrier\nv_add_u32 v5, {sSlot}, v{vL16}")
    if kind=="Q": q_prefetch(A,vm,sS)
    ft={}
    def fr(i): ft[i]=lg.issue(f"ds_read_b128 {vr(FB+4*(i%NF),4)}, v5 offset:{i*1024}")
    for i in range(NF-1): fr(i)
    for i in range(40):
        lg.wait(ft[i])
        x=vr(FB+4*(i%NF),4); w=ar(4*i,4); c="0" if i==0 else vr(ACC,16)
        if kind=="V": A(f"v_mfma_f32_32x32x16_bf16 {vr(ACC,16)}, {x}, {w}, {c}")
        else: A(f"v_mfma_f32_32x32x16_bf16 {vr(ACC,16)}, {w}, {x}, {c}")
        if i+NF-1<40: fr(i+NF-1)
        if i<10: xdma(i)
        if i==10:
            xadv()
            A(f"""s_add_u32 {sSlot}, {sSlot}, 40960
s_cmp_ge_u32 {sSlot}, {NS*40960}
s_cselect_b32 {sT[4]}, {NS*40960}, 0
s_sub_u32 {sSlot}, {sSlot}, {sT[4]}""")
        if i==30:
            A(f"s_waitcnt vmcnt(10)\nv_mov_b32 v6, {sS}\ns_mov_b64 exec, 1")
            vm.issue(f"buffer_store_dword v6, v{vL16}, {WS}, {sFlag} offen sc1")
            A("s_mov_b64 exec, -1")
    cvt=lambda d,a,b: A(f"v_cvt_pk_bf16_f32 v{d}, v{a}, v{b}")
    O=56
    if kind in "KQ":
        for i in range(8): cvt(O+i,ACC+2*i,ACC+2*i+1)
    elif kind=="V":
        for i in range(2):
            cvt(O+4*i,ACC+4*i,ACC+4*i+1); cvt(O+4*i+1,ACC+4*i+2,ACC+4*i+3)
            cvt(O+4*i+2,ACC+8+4*i,ACC+9+4*i); cvt(O+4*i+3,ACC+10+4*i,ACC+11+4*i)
    else:
        for i in range(8): A(f"v_mul_f32 v{O+i}, {hex(f2u(-LOG2E))}, v{ACC+i}")
        for i in range(8): A(f"v_exp_f32 v{O+i}, v{O+i}")
        for i in range(8): A(f"v_add_f32 v{O+i}, 1.0, v{O+i}")
        for i in range(8): A(f"v_rcp_f32 v{O+i}, v{O+i}")
        for i in range(8): A(f"v_mul_f32 v{ACC+i}, v{ACC+i}, v{ACC+8+i}")
        for i in range(8): A(f"v_mul_f32 v{ACC+i}, v{ACC+i}, v{O+i}")
        for i in range(4): cvt(O+i,ACC+2*i,ACC+2*i+1)
    if kind=="Q":
        q_attention(A,vm,lg,sS,vST,O,sFlag)
        nst=2
    else:
        nst=1 if kind=="F" else 2
        for i in range(nst): vm.issue(f"buffer_store_dwordx4 {vr(O+4*i,4)}, v{vST}, {WS}, {sOut} offen offset:{512*i} sc1")
        A(f"s_add_u32 {sOut}, {sOut}, {110592 if kind=='F' else 8192}")
    if opt.get('prof'):
        for kk,sv in ((3,0),(4,3),(5,15),(6,31),(7,47),(8,63)):
            L=A.label("L_sk"); A(f"s_cmp_lg_u32 {sS}, {sv}\ns_cbranch_scc1 {L}"); rstamp(A,opt,kk); A(f"{L}:")
    A(f"""s_add_u32 {sS}, {sS}, 1
s_cmp_lt_u32 {sS}, 64
s_waitcnt vmcnt({(11 if NS==3 else 0)+nst})
s_cbranch_scc1 L_{tag}_loop
s_waitcnt vmcnt(0)
v_mov_b32 v6, 64
s_mov_b64 exec, 1
buffer_store_dword v6, v{vL16}, {WS}, {sFlag} offen sc1
s_waitcnt vmcnt(0)
s_endpgm""")

QF,QKX,QVX,QKM,QVM = 81920, 90112, 98304, 106496, 108544
qKV,qKMF,qZR0,qZR1,qL8,qOA,qQB,qVB = 7,8,9,64,65,66,67,68
MASK=72; qONES=80; qHALF=84
sKX,sVX,sKM,sVM,sO=[f"s{i}" for i in range(40,45)]
def q_setup(A):
    NEG=hex(f2u(-1e9*128**0.5))
    A(f"""
v_and_b32 v11, 4, v10
v_lshlrev_b32 v11, 10, v11
v_and_b32 v12, 3, v10
v_lshl_add_u32 v11, v12, 2, v11
s_lshl_b32 {sT[0]}, {sI}, 7
s_add_u32 {sT[0]}, {sT[0]}, {F_KP}
v_add_u32 v{qKV}, {sT[0]}, v11
v_and_b32 v11, 4, v10
v_lshlrev_b32 v11, 5, v11
v_lshl_add_u32 v11, v12, 2, v11
s_lshl_b32 {sT[0]}, {sI}, 8
s_add_u32 {sT[0]}, {sT[0]}, {F_KM}
v_add_u32 v{qKMF}, {sT[0]}, v11
v_lshlrev_b32 v{qL8}, 3, v10
v_lshrrev_b32 v11, 4, v10
v_and_b32 v12, 1, v11
v_lshrrev_b32 v11, 1, v11
v_bfe_u32 v13, v10, 2, 2
v_and_b32 v14, 1, v10
v_and_b32 v15, 1, v13
v_lshl_add_u32 v15, v15, 1, v14
v_lshrrev_b32 v13, 1, v13
v_lshl_add_u32 v13, v12, 1, v13
v_lshlrev_b32 v13, 3, v13
v_add_u32 v13, {QKM}, v13
""")
    for u,dst in ((0,qZR0),(1,qZR1)):
        A(f"""v_lshl_add_u32 v14, v11, 1, {u}
v_xor_b32 v5, v15, v14
v_lshlrev_b32 v5, 5, v5
v_lshl_add_u32 v5, v14, 7, v5
v_add_u32 v{dst}, v5, v13""")
    A(f"""
v_lshl_add_u32 v5, v11, 1, v12
v_lshrrev_b32 v13, 1, v5
v_lshlrev_b32 v13, 10, v13
v_and_b32 v14, 1, v5
v_lshl_add_u32 v13, v14, 9, v13
v_and_b32 v14, 15, v10
v_lshl_add_u32 v13, v14, 4, v13
s_lshr_b32 {sT[0]}, {sW}, 1
s_lshl_b32 {sT[1]}, {sT[0]}, 12
s_and_b32 {sT[2]}, {sW}, 1
s_lshl_b32 {sT[3]}, {sT[2]}, 8
s_add_u32 {sT[1]}, {sT[1]}, {sT[3]}
v_add_u32 v{qOA}, {sT[1]}, v13
s_lshl_b32 {sT[3]}, {sT[2]}, 12
s_add_u32 {sT[3]}, {sT[3]}, {QF}
v_lshlrev_b32 v13, 4, v10
v_add_u32 v{qQB}, {sT[3]}, v13
s_lshl_b32 {sT[3]}, {sT[0]}, 12
s_add_u32 {sT[3]}, {sT[3]}, {QVX}
v_add_u32 v{qVB}, {sT[3]}, v13
s_lshl_b32 {sT[3]}, {sT[0]}, 11
s_add_u32 {sT[3]}, {sT[3]}, {QVM}
v_add_u32 v{qL8}, {sT[3]}, v{qL8}
s_lshl_b32 {sT[2]}, {sT[2]}, 4
v_add_u32 v14, {sT[2]}, v14
v_lshlrev_b32 v5, 2, v5
v_sub_u32 v14, v14, v5
v_mov_b32 v13, {NEG}
""")
    for t in range(2):
        for r in range(4):
            A(f"v_cmp_gt_i32 vcc, {16*t+r}, v14\nv_cndmask_b32 v{MASK+4*t+r}, 0, v13, vcc")
    for i in range(4): A(f"v_mov_b32 v{qONES+i}, 0x3f803f80")
    for i in range(2): A(f"v_mov_b32 v{qHALF+i}, 0x3f003f00")
    A(f"""s_mov_b32 s60, {hex(f2u(SCALE_LOG2E))}
s_mov_b32 s61, {hex(f2u(SCALE_LOG2E))}
s_lshl_b32 {sT[0]}, {sI}, 19
s_lshl_b32 {sT[1]}, {sW}, 11
s_add_u32 {sT[0]}, {sT[0]}, {sT[1]}
s_add_u32 {sKX}, {sT[0]}, {KXF}
s_add_u32 {sVX}, {sT[0]}, {VXF}
s_lshl_b32 {sT[0]}, {sI}, 17
s_lshl_b32 {sT[1]}, {sW}, 9
s_add_u32 {sKM}, {sT[0]}, {sT[1]}
s_add_u32 {sKM}, {sKM}, {KMF}
s_lshl_b32 {sT[0]}, {sI}, 18
s_lshl_b32 {sT[1]}, {sW}, 10
s_add_u32 {sVM}, {sT[0]}, {sT[1]}
s_add_u32 {sVM}, {sVM}, {VMF}
s_lshl_b32 {sO}, {sI}, 13
s_add_u32 {sO}, {sO}, {OF}
s_lshl_b32 {sT[0]}, {sW}, 10
s_add_u32 s45, {sT[0]}, {QF}
v_add_u32 v69, s45, v3
""")
def q_prefetch(A,vm,sS):
    A(f"s_add_u32 s46, {sS}, 1")
    poll_ge(A,f"v{qKV}","v6","s46",WS,0x220,sleep=4)
    A(f"s_lshl_b32 {sT[0]}, {sW}, 11\ns_add_u32 m0, {sT[0]}, {QKX}\ns_nop 0")
    for k in range(2): vm.issue(f"buffer_load_dwordx4 v1, {WS}, {sKX} offen offset:{1024*k} lds")
    A(f"s_add_u32 m0, {sT[0]}, {QVX}\ns_add_u32 {sKX}, {sKX}, 8192")
    for k in range(2): vm.issue(f"buffer_load_dwordx4 v1, {WS}, {sVX} offen offset:{1024*k} lds")
    A(f"s_add_u32 {sVX}, {sVX}, 8192")
def q_attention(A,vm,lg,sS,vST,O,sFlag):
    for a in range(2): lg.issue(f"ds_write_b128 v69, {vr(O+4*a,4)} offset:{512*a}")
    poll_ge(A,f"v{qKMF}","v6","s46",WS,0x221,sleep=2)
    A(f"""s_lshl_b32 {sT[0]}, {sW}, 9
s_add_u32 m0, {sT[0]}, {QKM}
s_mov_b32 exec_hi, 0
buffer_load_dwordx4 v1, {WS}, {sKM} offen lds
s_mov_b32 exec_hi, -1
s_lshl_b32 {sT[0]}, {sW}, 10
s_add_u32 m0, {sT[0]}, {QVM}
s_add_u32 {sKM}, {sKM}, 2048
buffer_load_dwordx4 v1, {WS}, {sVM} offen lds
s_add_u32 {sVM}, {sVM}, 4096
s_waitcnt vmcnt(0) lgkmcnt(0)
s_barrier""")
    lg=Cnt(A,"lgkmcnt",15)
    QB,KXr,KMr,VX,VM=88,104,136,152,168
    SX0,SX1,SM,LT,OA=16,20,24,28,176
    tk={}
    A(f"v_add_u32 v5, {QKX}, v1")
    for j in range(4):
        lg.issue(f"ds_read_b128 {vr(QB+4*j,4)}, v{qQB} offset:{1024*j}")
        lg.issue(f"ds_read_b128 {vr(KXr+4*j,4)}, v5 offset:{1024*j}")
        lg.issue(f"ds_read_b128 {vr(KXr+16+4*j,4)}, v5 offset:{4096+1024*j}")
        lg.issue(f"ds_read_b64_tr_b16 {vr(KMr+4*j,2)}, v{qZR0} offset:{512*j}")
        tk[j]=lg.issue(f"ds_read_b64_tr_b16 {vr(KMr+4*j+2,2)}, v{qZR1} offset:{512*j}")
        if j==1: lg.wait(tk[0])
    mm=lambda d,a,b,c: A(f"v_mfma_f32_16x16x32_bf16 {vr(d,4)}, {vr(a,4)}, {vr(b,4)}, {c}")
    for j in range(4):
        lg.wait(tk[j])
        mm(SX0,KXr+4*j,QB+4*j,vr(MASK,4) if j==0 else vr(SX0,4))
        mm(SX1,KXr+16+4*j,QB+4*j,vr(MASK+4,4) if j==0 else vr(SX1,4))
        mm(SM,KMr+4*j,QB+4*j,"0" if j==0 else vr(SM,4))
    for T in range(4): lg.issue(f"ds_read_b128 {vr(VX+4*T,4)}, v{qVB} offset:{1024*T}")
    for T in range(4): tv=lg.issue(f"ds_read_b64 {vr(VM+2*T,2)}, v{qL8} offset:{512*T}")
    m,t,mc=32,33,34
    A(f"""
v_max3_f32 v{m}, v{SX0}, v{SX0+1}, v{SX0+2}
v_max3_f32 v{t}, v{SX1}, v{SX1+1}, v{SX1+2}
v_max3_f32 v{m}, v{m}, v{SX0+3}, v{SX1+3}
v_max3_f32 v{t}, v{t}, v{SM}, v{SM+1}
v_max3_f32 v{m}, v{m}, v{SM+2}, v{SM+3}
v_max_f32 v{mc}, v{m}, v{t}
v_max_f32 v{m}, v{m}, v{t}
v_permlane32_swap_b32 v{m}, v{mc}
v_max_f32 v{t}, v{m}, v{mc}
v_max_f32 v{m}, v{m}, v{mc}
v_permlane16_swap_b32 v{m}, v{t}
v_max_f32 v{m}, v{m}, v{t}
v_mul_f32 v{mc}, {hex(f2u(-SCALE_LOG2E))}, v{m}
""")
    for r in range(SX0,SX0+12,2): A(f"v_pk_fma_f32 {vr(r,2)}, {vr(r,2)}, s[60:61], {vr(mc,2)} op_sel_hi:[1,0,0]")
    for r in range(SX0,SX0+12): A(f"v_exp_f32 v{r}, v{r}")
    PX,PM=36,40
    for i in range(6): A(f"v_cvt_pk_bf16_f32 v{PX+i}, v{SX0+2*i}, v{SX0+2*i+1}")
    lg.wait(tv)
    mm(LT,qONES,PX,"0")
    for T in range(4): mm(OA+4*T,VX+4*T,PX,"0")
    mm16=lambda d,a,b: A(f"v_mfma_f32_16x16x16_bf16 {vr(d,4)}, {vr(a,2)}, {vr(b,2)}, {vr(d,4)}")
    mm16(LT,qHALF,PM)
    for T in range(4): mm16(OA+4*T,VM+2*T,PM)
    A(f"v_rcp_f32 v42, v{LT}")
    for r in range(OA,OA+16,2): A(f"v_pk_mul_f32 {vr(r,2)}, {vr(r,2)}, v[42:43] op_sel_hi:[1,0]")
    for i in range(8): A(f"v_cvt_pk_bf16_f32 v{OA+i}, v{OA+2*i}, v{OA+2*i+1}")
    for pp in range(2): vm.issue(f"buffer_store_dwordx4 {vr(OA+4*pp,4)}, v{qOA}, {WS}, {sO} offen offset:{2048*pp} sc1")
    A(f"s_add_u32 {sO}, {sO}, {32*8192}")

def role_final(A,opt):
    sCG,sSet="s17","s18"
    vL16,vTR,vFO,vFH,vRW,vRR,vXO,vRB=1,2,3,4,5,6,7,8
    ACC=16; FB=32; NF=4; HB=128; RED=131072; NSL=32
    sL,sS,sO,sH,sX=[f"s{i}" for i in range(32,37)]
    vm=Cnt(A,"vmcnt",63); lg=Cnt(A,"lgkmcnt",15)
    A(f"""
v_and_b32 v10, 63, v0
v_lshlrev_b32 v{vL16}, 4, v10
s_mul_i32 {sL}, {sW}, 40960
""")
    ustep=tr_base(A,f"v{vTR}","v10",1,sL)
    srd(A,S_T,P_WO,5242880); srd(A,20,P_WD,1728*1280)
    A(f"""
v_lshrrev_b32 v11, 2, v10
v_and_b32 v12, 3, v10
v_mul_u32_u24 v14, 1280, v11
v_lshl_add_u32 v14, v12, 4, v14
v_lshrrev_b32 v13, 3, v11
v_lshlrev_b32 v13, 4, v13
v_and_b32 v11, 7, v11
v_add_u32 v13, v13, v11
v_mul_u32_u24 v13, 1280, v13
v_lshl_add_u32 v13, v12, 4, v13
s_lshl_b32 {sT[0]}, {sCG}, 6
s_mul_i32 {sT[1]}, {sW}, {1024*1280}
s_add_u32 {sT[1]}, {sT[1]}, {sT[0]}
s_mul_i32 {sT[2]}, {sW}, {27*16*1280}
s_add_u32 {sT[2]}, {sT[2]}, {sT[0]}
""")
    NST=40
    def wdst(n,u): return ar(4*n+2*u,2) if n<64 else vr(HB+4*(n-64)+2*u,2)
    toks={}
    def wdma(n):
        A(f"s_add_u32 m0, {sL}, {(n%NST)*1024}")
        if n<64:
            hh,i=divmod(n,8)
            A(f"s_add_u32 {sT[3]}, {sT[1]}, {(hh*128+32*(i>>1)+8*(i&1))*1280}")
            toks[n]=vm.issue(f"buffer_load_dwordx4 v13, {TS}, {sT[3]} offen lds")
        else:
            A(f"s_add_u32 {sT[3]}, {sT[2]}, {(n-64)*16*1280}")
            toks[n]=vm.issue(f"buffer_load_dwordx4 v14, s[20:23], {sT[3]} offen lds")
    for n in range(NST): wdma(n)
    pend=None
    for n in range(91):
        vm.wait(toks[n])
        for u in range(2): tk=lg.issue(f"ds_read_b64_tr_b16 {wdst(n,u)}, v{vTR} offset:{(n%NST)*1024+u*ustep}")
        if pend is not None and pend[0]+NST<91:
            lg.wait(pend[1]); wdma(pend[0]+NST)
        pend=(n,tk)
    rstamp(A,opt,1)
    srd(A,S_T,P_X,2048*1280); srd(A,20,P_OUT,2048*1280)
    A(f"""
s_waitcnt lgkmcnt(0)
s_barrier
v_and_b32 v11, 31, v10
v_lshrrev_b32 v12, 2, v11
v_and_b32 v11, 3, v11
v_lshlrev_b32 v11, 2, v11
v_lshl_add_u32 v11, v12, 7, v11
s_lshl_b32 {sT[0]}, {sW}, 10
s_add_u32 {sT[0]}, {sT[0]}, {F_OP}
v_add_u32 v{vFO}, {sT[0]}, v11
v_min_u32 v11, 26, v10
s_mul_i32 {sT[0]}, {sW}, 27
v_add_u32 v11, {sT[0]}, v11
v_lshrrev_b32 v12, 2, v11
v_and_b32 v11, 3, v11
v_lshlrev_b32 v11, 2, v11
v_lshl_add_u32 v11, v12, 7, v11
v_add_u32 v{vFH}, {F_HP}, v11
v_and_b32 v11, 31, v10
v_mul_u32_u24 v11, 144, v11
v_lshrrev_b32 v12, 5, v10
v_lshl_add_u32 v11, v12, 4, v11
s_mul_i32 {sT[0]}, {sW}, 4608
s_add_u32 {sT[0]}, {sT[0]}, {RED}
v_add_u32 v{vRW}, {sT[0]}, v11
v_lshrrev_b32 v11, 3, v0
v_and_b32 v12, 7, v0
v_mul_u32_u24 v13, 144, v11
v_lshl_add_u32 v13, v12, 4, v13
v_add_u32 v{vRR}, {RED}, v13
v_mul_u32_u24 v13, 1280, v11
v_lshl_add_u32 v13, v12, 3, v13
s_lshl_b32 {sT[0]}, {sCG}, 6
v_add_u32 v{vXO}, {sT[0]}, v13
s_lshl_b32 {sL}, {sW}, 15
v_add_u32 v{vRB}, {sL}, v{vL16}
s_mov_b32 {sS}, {sSet}
L_fin_loop:
s_mul_i32 {sX}, {sS}, {32*1280}
s_mul_i32 {sH}, {sS}, 110592
s_mul_i32 {sT[0]}, {sW}, {27*1024}
s_add_u32 {sH}, {sH}, {sT[0]}
s_add_u32 {sH}, {sH}, {HF}
s_lshl_b32 {sO}, {sS}, 18
s_lshl_b32 {sT[0]}, {sW}, 16
s_add_u32 {sO}, {sO}, {sT[0]}
s_add_u32 {sO}, {sO}, {OF}
s_add_u32 s46, {sS}, 1
""")
    vm=Cnt(A,"vmcnt",63); lg=Cnt(A,"lgkmcnt",15)
    poll_ge(A,f"v{vFH}","v9","s46",WS,0x230,sleep=8)
    A(f"buffer_load_dwordx2 v[12:13], v{vXO}, {TS}, {sX} offen")
    seq=[("H",k) for k in range(27)]+[("O",k) for k in range(64)]
    dt={}
    def fdma(n):
        kind,k=seq[n]
        A(f"s_add_u32 m0, {sL}, {(n%NSL)*1024}\ns_add_u32 {sT[0]}, {sH if kind=='H' else sO}, {k*1024}")
        dt[n]=vm.issue(f"buffer_load_dwordx4 v{vL16}, {WS}, {sT[0]} offen lds")
    ft={}
    def fr(n):
        vm.wait(dt[n])
        ft[n]=lg.issue(f"ds_read_b128 {vr(FB+4*(n%NF),4)}, v{vRB} offset:{(n%NSL)*1024}")
    def mf(n):
        kind,k=seq[n]
        lg.wait(ft[n])
        w=vr(HB+4*k,4) if kind=="H" else ar(4*k,4)
        A(f"v_mfma_f32_32x32x16_bf16 {vr(ACC,16)}, {w}, {vr(FB+4*(n%NF),4)}, {'0' if n==0 else vr(ACC,16)}")
    for n in range(27): fdma(n)
    for n in range(27+NF-1):
        if n<27: fr(n)
        if n>=NF-1: mf(n-(NF-1))
    poll_ge(A,f"v{vFO}","v9","s46",WS,0x231,sleep=2)
    if opt.get('prof'):
        L=A.label("L_sk"); A(f"s_cmp_lt_u32 {sS}, 61\ns_cbranch_scc1 {L}"); rstamp(A,opt,11); A(f"{L}:")
    vm=Cnt(A,"vmcnt",63)
    for n in range(27,27+NSL): fdma(n)
    for n in range(27,91+NF-1):
        if n<91: fr(n)
        if n>=27+NF-1:
            mf(n-(NF-1))
            if n-(NF-1)+NSL<91: fdma(n-(NF-1)+NSL)
    A("s_barrier")
    for a in range(4): A(f"ds_write_b128 v{vRW}, {vr(ACC+4*a,4)} offset:{32*a}")
    A("s_waitcnt lgkmcnt(0)\ns_barrier")
    for w in range(4): A(f"ds_read_b128 {vr(FB+4*w,4)}, v{vRR} offset:{4608*w}")
    A(f"""
v_lshlrev_b32 v48, 16, v12
v_and_b32 v49, 0xffff0000, v12
v_lshlrev_b32 v50, 16, v13
v_and_b32 v51, 0xffff0000, v13
s_waitcnt lgkmcnt(2)
v_pk_add_f32 v[32:33], v[32:33], v[36:37]
v_pk_add_f32 v[34:35], v[34:35], v[38:39]
s_waitcnt lgkmcnt(0)
v_pk_add_f32 v[40:41], v[40:41], v[44:45]
v_pk_add_f32 v[42:43], v[42:43], v[46:47]
v_pk_add_f32 v[32:33], v[32:33], v[40:41]
v_pk_add_f32 v[34:35], v[34:35], v[42:43]
v_pk_add_f32 v[32:33], v[32:33], v[48:49]
v_pk_add_f32 v[34:35], v[34:35], v[50:51]
v_cvt_pk_bf16_f32 v32, v32, v33
v_cvt_pk_bf16_f32 v33, v34, v35
buffer_store_dwordx2 v[32:33], v{vXO}, s[20:23], {sX} offen""")
    if opt.get('prof'):
        for kk,lo,hi in ((3,0,3),(4,3,6),(5,15,18),(6,30,33),(7,45,48),(8,61,64)):
            L=A.label("L_sk"); A(f"s_sub_u32 s47, {sS}, {lo}\ns_cmp_ge_u32 s47, 3\ns_cbranch_scc1 {L}"); rstamp(A,opt,kk); A(f"{L}:")
    A(f"""s_add_u32 {sS}, {sS}, 3
s_cmp_lt_u32 {sS}, 64
s_cbranch_scc1 L_fin_loop
s_waitcnt vmcnt(0)
s_endpgm""")
```

```python
from common import *

MB, ZB, VB, KVB, KVX, WOB = 0, 10240, 14336, 40960, 0x1E000, 20480
vIDX,vL16,vL8,vMA16a,vMA8a,vMA16b,vMA8b,vZW,vZR0,vZR1,vVW,vP0,vP2,vFLG,vKV,vWO,vMW16,vMW8 = range(18)
SENT=108; S_MC=84; HALF=18; ACCQ=20; ACCK=24; ACCV=28; MF=[32,36,40]; ONES=44; KX=48; ZQ=80; ZK=96
sH,sC,sB="s17","s18","s19"
sS,sTask,sPGa,sPGb,sMa,sMb,sMc,sPubO,sMLO,sPstO,sRdO,sKX,sVX,sKM,sVM,sKMFL,sKVB = [f"s{i}" for i in range(32,49)]
sPGc="s49"; sBO="s56"; sMCl="s57"; sMC2="s58"; S_KM=8
sT=[f"s{i}" for i in range(50,60)]
sSC=60; sSpin="s62"
WORD=[(0,0),(1,0),(2,0),(0,1),(1,1),(3,0),(2,1),(3,1),(4,0),(4,1)]
OPS=[(m,t) for t in range(2,20) for m in "QK"]+[("V",t) for t in range(10)]+[("O",u) for u in range(6,10)]+[(m,t) for t in range(2) for m in "QK"]+[("O",u) for u in range(6)]
OPI={o:i for i,o in enumerate(OPS)}
def wreg(oi):
    return ar(8*oi,8) if oi<32 else vr(112+8*(oi-32),8)
def wreg_pair(oi,d):
    return ar(8*oi+d,2) if oi<32 else vr(112+8*(oi-32)+d,2)
def m_off(tt,u):
    w2,p=divmod(tt,5)
    if p<4: return 16, w2*2560+(p>>1)*1024+(p&1)*8+u*512
    return 8, w2*2560+2048+u*256

def lane_setup(A):
    t=[108,109,110,111,100,101,102,103,104,105]
    l,n,g,x,sg,a,b,c,d,e=[f"v{i}" for i in t]
    A(f"""
v_and_b32 {l}, 63, v0
v_lshlrev_b32 v{vL16}, 4, {l}
v_lshlrev_b32 v{vL8}, 3, {l}
v_and_b32 {n}, 15, {l}
v_lshrrev_b32 {g}, 4, {l}
v_and_b32 {x}, 1, {g}
v_lshrrev_b32 {sg}, 1, {g}
v_mov_b32 {a}, 0x88888888
v_mov_b32 {b}, 0xdddddddd
v_cmp_gt_u32 vcc, 8, {n}
v_cndmask_b32 v{vIDX}, {b}, {a}, vcc
v_lshrrev_b32 {a}, 3, {n}
v_lshlrev_b32 {a}, 4, {a}
v_lshl_add_u32 {a}, {sg}, 5, {a}
v_lshl_add_u32 {a}, {x}, 3, {a}
v_and_b32 {b}, 7, {n}
v_add_u32 {a}, {a}, {b}
v_lshrrev_b32 {c}, 3, {a}
v_lshlrev_b32 {c}, 14, {c}
v_lshl_add_u32 v{vP0}, {b}, 4, {c}
v_lshrrev_b32 {c}, 4, {a}
v_lshlrev_b32 {c}, 14, {c}
v_and_b32 {d}, 15, {a}
v_lshl_add_u32 v{vP2}, {d}, 3, {c}
v_mov_b32 v106, {a}
v_lshrrev_b32 {a}, 2, {n}
v_lshl_add_u32 {b}, {sg}, 1, {x}
v_xor_b32 {b}, {b}, {a}
v_lshlrev_b32 {b}, 5, {b}
v_lshl_add_u32 {b}, {a}, 7, {b}
v_and_b32 {c}, 3, {n}
v_lshl_add_u32 {b}, {c}, 3, {b}
s_lshl_b32 {sT[0]}, {sW}, 9
s_add_u32 {sT[0]}, {sT[0]}, {ZB}
v_add_u32 v{vZW}, {sT[0]}, {b}
v_lshrrev_b32 {a}, 3, {n}
v_lshlrev_b32 {a}, 9, {a}
v_lshl_add_u32 {a}, {x}, 7, {a}
v_and_b32 {b}, 7, {n}
v_lshl_add_u32 {b}, {b}, 1, {sg}
v_lshl_add_u32 {a}, {b}, 3, {a}
s_lshr_b32 {sT[0]}, {sW}, 1
s_lshl_b32 {sT[0]}, {sT[0]}, 10
s_and_b32 {sT[1]}, {sW}, 1
s_lshl_b32 {sT[2]}, {sT[1]}, 8
s_add_u32 {sT[0]}, {sT[0]}, {sT[2]}
s_add_u32 {sT[0]}, {sT[0]}, {VB}
v_add_u32 v{vVW}, {sT[0]}, {a}
v_lshrrev_b32 {a}, 2, {l}
v_and_b32 {a}, 3, {a}
v_and_b32 {b}, 1, {l}
; M: n' = 4g+r ; idx = (n'>>3)*16 + x*8 + (n'&7)
v_lshl_add_u32 {c}, {g}, 2, {a}
v_lshrrev_b32 {d}, 3, {c}
v_lshlrev_b32 {d}, 4, {d}
v_lshl_add_u32 {d}, {b}, 3, {d}
v_and_b32 {c}, 7, {c}
v_add_u32 {d}, {d}, {c}
s_mul_i32 {sT[2]}, {sT[1]}, 5120
s_sub_u32 {sT[3]}, {5120+MB}, {sT[2]}
s_add_u32 {sT[2]}, {sT[2]}, {MB}
v_lshl_add_u32 v{vMA16a}, {d}, 4, {sT[3]}
v_lshl_add_u32 v{vMA8a}, {d}, 3, {sT[3]}
v_lshl_add_u32 v{vMA16b}, {d}, 4, {sT[2]}
v_lshl_add_u32 v{vMA8b}, {d}, 3, {sT[2]}
v_and_b32 {c}, 1, {a}
v_lshl_add_u32 {c}, {c}, 1, {b}
v_lshrrev_b32 {d}, 1, {a}
v_lshl_add_u32 {d}, {x}, 1, {d}
v_lshlrev_b32 {d}, 3, {d}
v_add_u32 {d}, {ZB}, {d}
""")
    for u,dst in ((0,vZR0),(1,vZR1)):
        A(f"""
v_lshl_add_u32 {e}, {sg}, 1, {u}
v_xor_b32 {a}, {c}, {e}
v_lshlrev_b32 {a}, 5, {a}
v_lshl_add_u32 {a}, {e}, 7, {a}
v_add_u32 v{dst}, {a}, {d}
""")
    A(f"""
v_and_b32 {a}, 4, {l}
v_lshlrev_b32 {a}, 10, {a}
v_and_b32 {b}, 3, {l}
v_lshl_add_u32 {a}, {b}, 2, {a}
s_lshl_b32 {sT[0]}, {sH}, 7
s_add_u32 {sT[0]}, {sT[0]}, {F_KP}
v_add_u32 v{vFLG}, {sT[0]}, {a}
v_add_u32 v{vKV}, {KVB}, v{vL16}
s_mul_i32 {sT[0]}, {sW}, 40960
s_add_u32 {sT[0]}, {sT[0]}, {WOB}
v_add_u32 v{vWO}, {sT[0]}, v{vL16}
s_mul_i32 {sT[0]}, {sW}, 2560
s_add_u32 {sT[0]}, {sT[0]}, {MB}
v_add_u32 v{vMW16}, {sT[0]}, v{vL16}
s_add_u32 {sT[1]}, {sT[0]}, 2048
v_add_u32 v{vMW8}, {sT[1]}, v{vL8}
v_lshl_add_u32 v107, v106, 3, {sT[1]}
v_lshl_add_u32 v106, v106, 4, {sT[0]}
""")

def weights_prologue(A):
    NSLOT=20
    vm=Cnt(A,"vmcnt",63); lg=Cnt(A,"lgkmcnt",15)
    l,a,b="v108","v109","v110"
    srd(A,S_T,P_MEM0,10240)
    A(f"""
v_and_b32 {a}, 15, {l}
v_lshlrev_b32 {a}, 2, {a}
v_lshrrev_b32 {b}, 4, {l}
v_and_b32 {b}, 1, {b}
v_mul_u32_u24 {b}, 5120, {b}
v_add_u32 {a}, {a}, {b}
s_mul_i32 {sT[0]}, {sW}, 320
""")
    for p in range(5):
        A(f"s_add_u32 {sT[1]}, {sT[0]}, {64*p}")
        for r in range(4):
            tk0=vm.issue(f"buffer_load_dword v{18+4*p+r}, {a}, s[{S_T}:{S_T+3}], {sT[1]} offen offset:{1280*r}")
    srd(A,20,P_WQ,5242880); srd(A,24,P_WK,5242880); srd(A,28,P_WV,5242880); srd(A,52,P_WO,5242880)
    sQK,sV,sO,sL,sX="s56","s57","s58","s59","s50"
    A(f"""
v_lshrrev_b32 {a}, 4, {l}
v_lshlrev_b32 {a}, 1, {a}
v_bfe_u32 {b}, {l}, 3, 1
v_lshl_add_u32 {a}, {b}, 3, {a}
v_bfe_u32 {b}, {l}, 2, 1
v_add_u32 {a}, {a}, {b}
v_lshlrev_b32 {a}, 13, {a}
v_and_b32 {b}, 3, {l}
v_lshl_add_u32 v104, {b}, 4, {a}
v_lshrrev_b32 {a}, 4, {l}
v_bfe_u32 v100, {l}, 3, 1
v_lshl_add_u32 {a}, v100, 2, {a}
v_bfe_u32 v100, {l}, 2, 1
v_lshl_add_u32 {a}, v100, 4, {a}
v_mul_u32_u24 {a}, 1280, {a}
v_lshl_add_u32 v105, {b}, 4, {a}
s_mul_i32 {sL}, {sW}, 40960
v_lshlrev_b32 {a}, 2, {l}
v_add_u32 v103, {sL}, {a}
s_lshl_b32 {sQK}, {sH}, 8
s_lshl_b32 {sX}, {sW}, 6
s_add_u32 {sQK}, {sQK}, {sX}          ; h*256 + w*64
s_lshl_b32 {sV}, {sH}, 8
s_lshl_b32 {sX}, {sC}, 7
s_add_u32 {sV}, {sV}, {sX}
s_lshr_b32 {sX}, {sW}, 1
s_lshl_b32 {sX}, {sX}, 6
s_add_u32 {sV}, {sV}, {sX}            ; h*256 + c*128 + (w>>1)*64
s_and_b32 {sX}, {sW}, 1
s_mul_i32 s51, {sX}, {320*8192}
s_add_u32 {sV}, {sV}, s51
s_add_u32 s49, {sQK}, s51
s_sub_u32 s51, {320*8192}, s51
s_add_u32 {sQK}, {sQK}, s51
s_lshl_b32 {sO}, {sH}, 7
s_lshl_b32 {sX}, {sC}, 6
s_add_u32 {sO}, {sO}, {sX}
s_mul_i32 {sO}, {sO}, 1280
s_mul_i32 {sX}, {sW}, 320
s_add_u32 {sO}, {sO}, {sX}            ; (h*128+64c)*1280 + 320w
""")
    ops=[]
    for m,t in OPS:
        if m in "QK": ops.append((20 if m=="Q" else 24, sQK if t<10 else "s49",(t%10)*32*8192,16*8192,"v104"))
        elif m=="V": ops.append((28,sV,t*32*8192,16*8192,"v104"))
        else:
            p,P=WORD[t]; ops.append((52,sO,32*P*1280+64*p,8*1280,"v105"))
    toks={}
    def dma(i):
        d,base,off,hstep,vv=ops[i]
        for hh in range(2):
            A(f"s_add_u32 m0, {sL}, {(i%NSLOT)*2048+hh*1024}")
            A(f"s_add_u32 {sX}, {base}, {off+hh*hstep}")
            toks[i]=vm.issue(f"buffer_load_dwordx4 {vv}, s[{d}:{d+3}], {sX} offen lds")
    for i in range(NSLOT): dma(i)
    vm.wait(tk0)
    A(f"""
v_mov_b32 v100, 0x05040100
v_mov_b32 v101, 0x07060302
v_cmp_gt_u32 vcc, 32, {l}
v_cndmask_b32 v111, v101, v100, vcc
""")
    for p in range(5):
        A(f"v_perm_b32 v{38+2*p}, v{19+4*p}, v{18+4*p}, v111")
        A(f"v_perm_b32 v{39+2*p}, v{21+4*p}, v{20+4*p}, v111")
    TMP=[48,56]
    pend=None
    for i in range(60):
        vm.wait(toks[i])
        for d in range(0,8,2):
            dst = wreg_pair(i,d) if i<50 else vr(TMP[i&1]+d,2)
            tk=lg.issue(f"ds_read2st64_b32 {dst}, v103 offset0:{(i%NSLOT)*8+d} offset1:{(i%NSLOT)*8+d+1}")
        if pend is not None:
            j,tj=pend
            lg.wait(tj)
            if j+NSLOT<60: dma(j+NSLOT)
            if j>=50:
                for hf in range(2): lg.issue(f"ds_write_b128 v{vWO}, {vr(TMP[j&1]+4*hf,4)} offset:{(j-50)*2048+hf*1024}")
        pend=(i,tk)
    lg.waitall()
    for hf in range(2): lg.issue(f"ds_write_b128 v{vWO}, {vr(TMP[1]+4*hf,4)} offset:{9*2048+hf*1024}")
    A("s_barrier")
    for p in range(4): A(f"ds_write_b64 v106, {vr(38+2*p,2)} offset:{(p>>1)*1024+(p&1)*8}")
    A(f"ds_write_b64 v107, {vr(46,2)}")

def kv_dma(A,vm,nw):
    WS=f"s[{S_WS}:{S_WS+3}]"
    if nw==4:
        A(f"s_lshl_b32 {sT[0]}, {sW}, 11\ns_add_u32 m0, {sKVB}, {sT[0]}\ns_add_u32 {sT[1]}, {sKX}, {sT[0]}")
        vm.issue(f"buffer_load_dwordx4 v{vL16}, {WS}, {sT[1]} offen lds")
        vm.issue(f"buffer_load_dwordx4 v{vL16}, {WS}, {sT[1]} offen offset:1024 lds")
        A(f"s_lshr_b32 {sT[0]}, {sT[0]}, 1\ns_add_u32 {sT[1]}, {sVX}, {sT[0]}\ns_add_u32 {sT[0]}, {sT[0]}, 8192\ns_add_u32 m0, {sKVB}, {sT[0]}")
        t=vm.issue(f"buffer_load_dwordx4 v{vL16}, {WS}, {sT[1]} offen lds")
    else:
        A(f"s_and_b32 {sT[0]}, {sW}, 1\ns_lshl_b32 {sT[0]}, {sT[0]}, 12\ns_add_u32 m0, {sKVB}, {sT[0]}\ns_add_u32 {sT[1]}, {sKX}, {sT[0]}")
        for k in range(4): vm.issue(f"buffer_load_dwordx4 v{vL16}, {WS}, {sT[1]} offen offset:{1024*k} lds")
        A(f"s_lshr_b32 {sT[0]}, {sT[0]}, 1\ns_add_u32 {sT[1]}, {sVX}, {sT[0]}\ns_add_u32 {sT[0]}, {sT[0]}, 8192\ns_add_u32 m0, {sKVB}, {sT[0]}")
        for k in range(2): t=vm.issue(f"buffer_load_dwordx4 v{vL16}, {WS}, {sT[1]} offen offset:{1024*k} lds")
    return t
def kv_advance(A,three=False):
    A(f"s_add_u32 {sKX}, {sKX}, 8192\ns_add_u32 {sVX}, {sVX}, 8192")
    if three: A(f"s_mov_b32 {sKVR}, {sKVB}\ns_add_u32 {sKVB}, {sKVB}, 40960\ns_cmp_eq_u32 {sKVB}, 163840\ns_cselect_b32 {sKVB}, {KVB}, {sKVB}")
    else: A(f"s_xor_b32 {sKVB}, {sKVB}, {KVX}")

def wait_kv(A,needreg,vflag,code):
    L=A.label("L_kvw")
    A(f"s_mov_b32 {sSpin}, 0\n{L}:")
    A(f"buffer_load_dword v{vflag}, v{vFLG}, s[{S_WS}:{S_WS+3}], 0 offen sc1\ns_waitcnt vmcnt(0)")
    ok=A.label("L_kvok")
    A(f"v_cmp_gt_u32 vcc, {needreg}, v{vflag}\ns_cbranch_vccz {ok}")
    spin_tail(A,sSpin,L,code,sleep=2)
    A(f"{ok}:")

def role_chain(A, opt):
    WS=f"s[{S_WS}:{S_WS+3}]"
    lane_setup(A)
    weights_prologue(A)
    A(f"""
v_mov_b32 v{HALF}, 0x3f003f00
v_mov_b32 v{HALF+1}, 0x3f003f00
v_mov_b32 v{ONES}, 0x3f803f80
v_mov_b32 v{ONES+1}, 0x3f803f80
v_mov_b32 v{ONES+2}, 0x3f803f80
v_mov_b32 v{ONES+3}, 0x3f803f80
s_mov_b32 s{sSC}, {hex(f2u(SCALE_LOG2E))}
s_mov_b32 s{sSC+1}, {hex(f2u(SCALE_LOG2E))}
v_and_b32 v48, 1, v108
v_mul_u32_u24 v49, {D_POL}, v48
v_mov_b32 v50, {NAUX}
v_mov_b32 v51, 0x80000000
v_cmp_eq_u32 vcc, 1, v48
v_cndmask_b32 v50, v50, v51, vcc
s_mov_b32 {sSpin}, 0
L_cst:
buffer_load_dword v51, v49, s[{S_DB}:{S_DB+3}], 0 offen sc1
s_waitcnt vmcnt(0)
v_cmp_gt_u32 vcc, v50, v51
s_cbranch_vccz L_cst_ok
""")
    spin_tail(A,sSpin,"L_cst",0x101,sleep=4)
    A(f"""
L_cst_ok:
v_readlane_b32 {sT[0]}, v51, 1
s_and_b32 {sT[1]}, {sT[0]}, 1
s_lshl_b32 {sPGa}, {sT[1]}, 13
s_lshr_b32 {sT[1]}, {sT[0]}, 1
s_and_b32 {sT[1]}, {sT[1]}, 1
s_lshl_b32 {sT[1]}, {sT[1]}, 13
s_add_u32 {sPGb}, {sT[1]}, {PAGE}
s_lshr_b32 {sT[1]}, {sT[0]}, 2
s_and_b32 {sT[1]}, {sT[1]}, 1
s_lshl_b32 {sT[1]}, {sT[1]}, 13
s_add_u32 {sPGc}, {sT[1]}, {2*PAGE}
s_add_u32 {sMa}, {sPGa}, {80*16384}
s_add_u32 {sMb}, {sPGa}, {82*16384}
s_add_u32 {sMc}, {sPGa}, {84*16384}
s_lshr_b32 {sT[0]}, {sB}, 4
s_mul_i32 {sT[0]}, {sT[0]}, 20
s_and_b32 {sT[1]}, {sB}, 15
s_add_u32 {sT[0]}, {sT[0]}, {sT[1]}
s_add_u32 {sT[0]}, {sT[0]}, 4
s_lshr_b32 {sT[1]}, {sB}, 2
s_mul_i32 {sT[1]}, {sT[1]}, 20
s_and_b32 {sT[2]}, {sB}, 3
s_add_u32 {sT[1]}, {sT[1]}, {sT[2]}
s_cmp_lt_u32 {sB}, 16
s_cselect_b32 {sT[1]}, {sT[1]}, -1
s_bitcmp1_b32 {sW}, 0
s_cselect_b32 {sTask}, {sT[1]}, {sT[0]}
s_max_i32 {sT[0]}, {sTask}, 0
s_lshl_b32 {sRdO}, {sT[0]}, 14
s_mul_i32 {sT[1]}, {sT[0]}, 3277
s_lshr_b32 {sT[1]}, {sT[1]}, 16          ; task / 20
s_mul_i32 {sT[2]}, {sT[1]}, 20
s_sub_u32 {sT[2]}, {sT[0]}, {sT[2]}
s_lshl_b32 {sPubO}, {sT[2]}, 7
s_lshr_b32 {sT[2]}, {sT[1]}, 1
s_lshl_b32 {sT[2]}, {sT[2]}, 14
s_add_u32 {sPubO}, {sPubO}, {sT[2]}
s_and_b32 {sT[2]}, {sT[1]}, 1
s_lshl_b32 {sT[2]}, {sT[2]}, 12
s_add_u32 {sPubO}, {sPubO}, {sT[2]}
s_lshr_b32 {sT[2]}, {sW}, 1
s_lshl_b32 {sMLO}, {sT[2]}, 14
s_and_b32 {sT[2]}, {sW}, 1
s_lshl_b32 {sT[2]}, {sT[2]}, 12
s_add_u32 {sMLO}, {sMLO}, {sT[2]}
s_mul_i32 {sPstO}, {sW}, {20*16384}
s_lshl_b32 {sT[2]}, {sB}, 7
s_add_u32 {sPstO}, {sPstO}, {sT[2]}
s_lshl_b32 {sT[0]}, {sH}, 19
s_add_u32 {sKX}, {sT[0]}, {KXF}
s_lshl_b32 {sT[1]}, {sC}, 12
s_add_u32 {sVX}, {sT[0]}, {sT[1]}
s_add_u32 {sVX}, {sVX}, {VXF}
s_lshl_b32 {sT[0]}, {sH}, 17
s_add_u32 {sKM}, {sT[0]}, {KMF-ZB}
s_lshl_b32 {sT[0]}, {sH}, 18
s_lshl_b32 {sT[1]}, {sC}, 11
s_add_u32 {sVM}, {sT[0]}, {sT[1]}
s_add_u32 {sVM}, {sVM}, {VMF-VB}
s_lshl_b32 {sT[0]}, {sH}, 1
s_add_u32 {sT[0]}, {sT[0]}, {sC}
s_lshl_b32 {sT[0]}, {sT[0]}, 7
s_lshl_b32 {sT[1]}, {sW}, 2
s_add_u32 {sKMFL}, {sT[0]}, {sT[1]}
s_add_u32 {sKMFL}, {sKMFL}, {F_KM}
s_mov_b32 {sKVB}, {KVB}
s_mov_b32 {sS}, 0
s_and_b32 {sT[0]}, {sW}, 1
s_mul_i32 {sBO}, {sT[0]}, {40*16384}
s_lshl_b32 {sT[1]}, {sB}, 7
s_add_u32 {sBO}, {sBO}, {sT[1]}
s_mov_b32 s{S_KM}, s{S_WS}
s_mov_b32 s{S_KM+1}, s{S_WS+1}
s_cmp_eq_u32 {sC}, 0
s_cselect_b32 s{S_KM+2}, {hex(WS_SIZE)}, 0
s_mov_b32 s{S_KM+3}, 0x20000
""")
    vm=Cnt(A,"vmcnt",63)
    wait_kv(A,"1",98,0x102)
    kv_dma(A,vm,4); kv_advance(A)
    qk_preload(A,Cnt(A,"lgkmcnt",15))
    A(f"v_cmp_gt_u32 {sKVB2}, 2, v98")
    sent_setup(A,opt)
    A(f"""s_mov_b32 s{S_MC}, s{S_WS}
s_mov_b32 s{S_MC+1}, s{S_WS+1}
s_cmp_lt_u32 {sW}, 2
s_cselect_b32 s{S_MC+2}, 0, {hex(WS_SIZE)}
s_cmp_lt_i32 {sTask}, 0
s_cselect_b32 s{S_MC+2}, 0, s{S_MC+2}
s_mov_b32 s{S_MC+3}, 0x20000""")
    for i in range(0,12,2): A(f"v_mov_b64 {vr(ACCQ+i,2)}, 0")
    A("s_waitcnt vmcnt(0) lgkmcnt(0)")
    if opt.get('prof'):
        A("s_memrealtime s[92:93]\ns_memtime s[28:29]\ns_waitcnt lgkmcnt(0)\ns_mov_b32 s30, s28\ns_mov_b32 s97, s28")
        for i in range(8): A(f"s_mov_b32 s{20+i}, 0")
        A("s_mov_b32 s94, 0\ns_mov_b32 s95, 0")
        for r in FACC: A(f"s_mov_b32 {r}, 0")
    step(A,opt)

def stamp(A,opt,i):
    if opt.get('prof')!=1: return
    A(f"""s_memtime s[28:29]
s_waitcnt lgkmcnt(0)
s_sub_u32 s31, s28, s30
s_add_u32 s{20+i}, s{20+i}, s31
s_mov_b32 s30, s28""")

def ts(A,opt,i):
    if opt.get('prof')==4: A(f"s_memrealtime s[{64+2*i}:{65+2*i}]")
def ts_flush(A,opt):
    if opt.get('prof')!=4: return
    A(f"""s_waitcnt lgkmcnt(0)
s_lshl_b32 s31, {sB}, 2
s_add_u32 s31, s31, {sW}
s_lshl_b32 s31, s31, 6
s_add_u32 s31, s31, {sS}
s_lshl_b32 s31, s31, 5
s_add_u32 s31, s31, {PROF+0x10000}
s_and_b32 s30, s94, 0xffff
s_lshl_b32 s29, s95, 16
s_or_b32 s30, s30, s29
v_mov_b32 v100, s64
v_mov_b32 v101, s66
v_mov_b32 v102, s68
v_mov_b32 v103, s70
v_mov_b32 v104, s72
v_mov_b32 v105, s74
v_mov_b32 v106, s76
v_mov_b32 v107, s30
s_mov_b64 exec, 1
buffer_store_dwordx4 v[100:103], v{vL16}, s[{S_WS}:{S_WS+3}], s31 offen
buffer_store_dwordx4 v[104:107], v{vL16}, s[{S_WS}:{S_WS+3}], s31 offen offset:16
s_mov_b64 exec, -1""")
FINE=[]
FACC=["s3","s20","s21","s22","s23","s24","s25","s26","s27","s59","s63","s98","s99"]
sKVB2="s[100:101]"; sKVR="s88"
CUTS=["start","qk","zbar","vpass","scores","max","expx","pv","a1","stores"]
def fs(A,opt,name):
    if opt.get('cut',-1)>=0 and CUTS[opt['cut']]==name:
        if CUTS.index(name)<CUTS.index("stores"): A(f"s_add_u32 {sS}, {sS}, 1")
        A(f"s_waitcnt vmcnt(20)\ns_cmp_ge_u32 {sS}, 63\ns_cbranch_scc1 L_chain_exit\ns_branch L_step")
    if opt.get('prof')!=2: return
    i=len(FINE); FINE.append(name)
    A(f"s_memtime s[{64+2*i}:{65+2*i}]")
    assert 65+2*i<84
def fs_collect(A,opt):
    if opt.get('prof')!=2: return
    A("s_waitcnt lgkmcnt(0)")
    for i in range(1,len(FINE)):
        A(f"s_sub_u32 s31, s{64+2*i}, s{62+2*i}\ns_add_u32 {FACC[i]}, {FACC[i]}, s31")
def sent_setup(A,opt):
    if True:
        A(f"""v_mov_b32 v{SENT}, -1
v_lshrrev_b32 v{SENT+1}, 5, v{vL16}
v_lshlrev_b32 v{SENT+1}, 14, v{SENT+1}
v_and_b32 v{SENT+2}, 16, v{vL16}
v_lshlrev_b32 v{SENT+2}, 2, v{SENT+2}
v_add_u32 v{SENT+1}, v{SENT+1}, v{SENT+2}
v_mov_b32 v{SENT+3}, 0x7ffffff0
v_cmp_gt_u32 vcc, {40*16}, v{vL16}
v_cndmask_b32 v{SENT+1}, v{SENT+3}, v{SENT+1}, vcc
v_cmp_gt_u32 vcc, 32, v{vL16}
v_cndmask_b32 v{SENT+2}, v{SENT+3}, v{SENT+2}, vcc""")
    else:
        A(f"v_mov_b64 {vr(SENT,2)}, -1\nv_mov_b64 {vr(SENT+2,2)}, -1")

def lds_op(A,lg,o,dst,hf):
    return lg.issue(f"ds_read_b128 {vr(dst+4*hf,4)}, v{vWO} offset:{(OPI[o]-50)*2048+hf*1024}")
def qk_preload(A,lg):
    for i,o in enumerate([("Q",0),("K",0),("Q",1),("K",1)]):
        for hf in range(2): lds_op(A,lg,o,KX+8*i,hf)

def step(A,opt):
    WS=f"s[{S_WS}:{S_WS+3}]"
    lg=Cnt(A,"lgkmcnt",15); vm=Cnt(A,"vmcnt",63)
    NOHK=opt.get('nohk',0)
    keep=[ZQ,ZK,ZQ+4,ZK+4,ZQ+8,ZK+8,ZQ+12,ZK+12]
    D=4
    def freg(tau): return keep[tau%5] if tau<10 else keep[tau-10] if tau<18 else MF[2] if tau==18 else MF[0]
    ftok={}
    def fread(tau,u):
        st,off=m_off(tau%10,u)
        base={(16,0):vMA16a,(8,0):vMA8a,(16,1):vMA16b,(8,1):vMA8b}[(st,tau//10)]
        ftok[tau]=lg.issue(f"ds_read_b64_tr_b16 {vr(freg(tau)+2*u,2)}, v{base} offset:{off}")
    def smf(acc,a,b): A(f"v_smfmac_f32_16x16x64_bf16 {vr(acc,4)}, {vr(a,4)}, {b}, v{vIDX}")
    def wop(m,t):
        if m in "QK" and t<2: return vr(KX+16*t+(8 if m=="K" else 0),8)
        return wreg(OPI[(m,t)])
    def cvt(d,a,b): A(f"v_cvt_pk_bf16_f32 v{d}, v{a}, v{b}")
    A(".p2align 6\nL_step:\ns_waitcnt lgkmcnt(0)\ns_barrier")
    fs(A,opt,"start"); ts(A,opt,0)
    for tau in range(D):
        fread(tau,0); fread(tau,1)
        if tau==1 and not NOHK:
            A(f"s_add_u32 {sT[0]}, {sPGc}, {sPstO}\ns_add_u32 {sT[1]}, {sMb}, {sPubO}")
            vm.issue(f"buffer_store_dword v{SENT}, v{SENT+1}, {WS}, {sT[0]} offen sc1")
        if tau==2 and not NOHK:
            vm.issue(f"buffer_store_dword v{SENT}, v{SENT+2}, s[{S_MC}:{S_MC+3}], {sT[1]} offen sc1")
        if tau==3 and not NOHK:
            A(f"v_mov_b32 v{SENT+3}, {sS}\ns_mov_b64 exec, 1")
            vm.issue(f"buffer_store_dword v{SENT+3}, v{vL16}, {WS}, {sKMFL} offen sc1")
            A("s_mov_b64 exec, -1")
    kxi=0
    for tau in range(20):
        lg.wait(ftok[tau])
        smf(ACCQ,freg(tau),wop("Q",tau))
        if tau+D<20: fread(tau+D,0)
        smf(ACCK,freg(tau),wop("K",tau))
        if tau+D<20: fread(tau+D,1)
        if not NOHK:
            if tau==3: A(f"s_cmp_lg_u64 {sKVB2}, 0\ns_cbranch_scc1 L_kv_slow\nL_kv_ready:")
            if tau==4: A(f"s_lshl_b32 {sT[0]}, {sW}, 11\ns_add_u32 m0, {sKVB}, {sT[0]}\ns_add_u32 {sT[1]}, {sKX}, {sT[0]}"); vm.issue(f"buffer_load_dwordx4 v{vL16}, {WS}, {sT[1]} offen lds")
            if tau==6: vm.issue(f"buffer_load_dwordx4 v{vL16}, {WS}, {sT[1]} offen offset:1024 lds"); A(f"s_lshr_b32 {sT[0]}, {sT[0]}, 1\ns_add_u32 {sT[1]}, {sVX}, {sT[0]}\ns_add_u32 {sT[0]}, {sT[0]}, 8192\ns_add_u32 m0, {sKVB}, {sT[0]}")
            if tau==8: vm.issue(f"buffer_load_dwordx4 v{vL16}, {WS}, {sT[1]} offen lds"); kv_advance(A)
        if tau>=5 and tau%2==1 and kxi<8:
            lg.issue(f"ds_read_b128 {vr(KX+4*kxi,4)}, v{vKV} offset:{kxi*1024}"); kxi+=1
    assert kxi==8 and len(ftok)==20
    fs(A,opt,"qk")
    vf=keep+[freg(18),freg(19)]
    sv=lambda i: smf(ACCV,vf[i],wop("V",i))
    sv(0); sv(1)
    cvt(ACCQ,ACCQ,ACCQ+1); cvt(ACCQ+1,ACCQ+2,ACCQ+3)
    lg.issue(f"ds_write_b64 v{vZW}, {vr(ACCQ,2)}")
    cvt(ACCK,ACCK,ACCK+1); cvt(ACCK+1,ACCK+2,ACCK+3)
    tz=lg.issue(f"ds_write_b64 v{vZW}, {vr(ACCK,2)} offset:2048")
    sv(2); sv(3); sv(4); sv(5)
    lg.wait(tz)
    A("s_barrier")
    fs(A,opt,"zbar")
    ztok={}
    def zr(j,k):
        dst,base,off=[(ZQ+4*j,vZR0,0),(ZQ+4*j+2,vZR1,0),(ZK+4*j,vZR0,2048),(ZK+4*j+2,vZR1,2048)][k]
        ztok[j]=lg.issue(f"ds_read_b64_tr_b16 {vr(dst,2)}, v{base} offset:{off+512*j}")
    for k in range(4): zr(0,k)
    sv(6); zr(1,0); zr(1,1); sv(7); zr(1,2); zr(1,3)
    sv(8); zr(2,0); zr(2,1); sv(9); zr(2,2); zr(2,3)
    vm.issue(f"buffer_store_dwordx2 {vr(ACCK,2)}, v{vZW}, s[{S_KM}:{S_KM+3}], {sKM} offen sc1")
    fs(A,opt,"vpass")
    SX0,SX1,SM=ACCQ,ACCK,MF[1]
    def mm(d,a,b,first): A(f"v_mfma_f32_16x16x32_bf16 {vr(d,4)}, {vr(a,4)}, {vr(b,4)}, {'0' if first else vr(d,4)}")
    VX,VM,OACC=KX,KX+16,ZK
    WB=[72,80,88,48,56,64]
    wtok={}
    def wread(u,hf): wtok[u]=lds_op(A,lg,("O",u),WB[u],hf)
    def vxread(T): return lg.issue(f"ds_read_b128 {vr(VX+4*T,4)}, v{vKV} offset:{8192+T*1024}")
    vmread=lambda T: lg.issue(f"ds_read_b64 {vr(VM+2*T,2)}, v{vL8} offset:{VB+T*512}")
    x0=lambda j: mm(SX0,KX+4*j,ZQ+4*j,j==0)
    xm=lambda j: mm(SM,ZK+4*j,ZQ+4*j,j==0)
    x1=lambda j: mm(SX1,KX+16+4*j,ZQ+4*j,j==0)
    lg.wait(ztok[0])
    x0(0); zr(3,0); zr(3,1); xm(0); zr(3,2); zr(3,3); x1(0)
    lg.wait(ztok[1])
    x0(1); cvt(ACCV,ACCV,ACCV+1); xm(1); cvt(ACCV+1,ACCV+2,ACCV+3); x1(1)
    tv=lg.issue(f"ds_write_b64 v{vVW}, {vr(ACCV,2)}")
    lg.wait(ztok[2])
    x0(2); tvm_store=vm.issue(f"buffer_store_dwordx2 {vr(ACCV,2)}, v{vVW}, {WS}, {sVM} offen sc1")
    xm(2); A(f"s_cmp_eq_u32 {sS}, 63\ns_cbranch_scc1 L_chain_exit")
    x1(2); vxread(0); vxread(1)
    lg.wait(ztok[3])
    x0(3)
    lg.wait(tv); A("s_barrier")
    xm(3); vxread(2); tvx=vxread(3)
    x1(3)
    for T in range(4): tvm=vmread(T)
    fs(A,opt,"scores")
    m,t,mc=32,33,34
    A(f"""
v_max3_f32 v{m}, v{SX0}, v{SX0+1}, v{SX0+2}
v_max3_f32 v{t}, v{SM}, v{SM+1}, v{SM+2}
v_max3_f32 v{m}, v{m}, v{SX0+3}, v{SM+3}
v_max3_f32 v{t}, v{t}, v{SX1}, v{SX1+1}
v_max3_f32 v{m}, v{m}, v{SX1+2}, v{SX1+3}
v_max_f32 v{mc}, v{m}, v{t}
v_max_f32 v{m}, v{m}, v{t}
""")
    wread(0,0); wread(0,1)
    A(f"v_permlane32_swap_b32 v{m}, v{mc}\nv_max_f32 v{t}, v{m}, v{mc}\nv_max_f32 v{m}, v{m}, v{mc}")
    wread(1,0); wread(1,1)
    A(f"v_permlane16_swap_b32 v{m}, v{t}\nv_max_f32 v{m}, v{m}, v{t}\nv_mul_f32 v{mc}, {hex(f2u(-SCALE_LOG2E))}, v{m}")
    fs(A,opt,"max")
    def pkf(r): A(f"v_pk_fma_f32 {vr(r,2)}, {vr(r,2)}, s[{sSC}:{sSC+1}], {vr(mc,2)} op_sel_hi:[1,0,0]")
    ex=lambda r: A(f"v_exp_f32 v{r}, v{r}")
    pkf(SX0); pkf(SX0+2); ex(SX0); pkf(SX1); ex(SX0+1); pkf(SX1+2); ex(SX0+2); wread(2,0); ex(SX0+3); wread(2,1)
    PX,PM,RI=SX0,40,42
    ex(SX1); cvt(PX,SX0,SX0+1); ex(SX1+1); cvt(PX+1,SX0+2,SX0+3); ex(SX1+2); pkf(SM); ex(SX1+3); pkf(SM+2)
    cvt(PX+2,SX1,SX1+1); cvt(PX+3,SX1+2,SX1+3)
    fs(A,opt,"expx")
    LT=ACCV
    lg.wait(tvx)
    ex(SM); mm(LT,ONES,PX,True)
    ex(SM+1); mm(OACC,VX,PX,True)
    ex(SM+2); mm(OACC+4,VX+4,PX,True)
    ex(SM+3); mm(OACC+8,VX+8,PX,True)
    cvt(PM,SM,SM+1); cvt(PM+1,SM+2,SM+3)
    mm(OACC+12,VX+12,PX,True)
    def mm16(d,a,b): A(f"v_mfma_f32_16x16x16_bf16 {vr(d,4)}, {vr(a,2)}, {vr(b,2)}, {vr(d,4)}")
    z=lambda r: A(f"v_mov_b64 {vr(r,2)}, 0")
    wread(3,0); wread(3,1)
    mm16(LT,HALF,PM); wread(4,0); z(20)
    mm16(OACC,VM,PM); wread(4,1); z(22)
    mm16(OACC+4,VM+2,PM); z(24); z(26)
    mm16(OACC+8,VM+4,PM); A(f"v_xor_b32 v{vKV}, {KVX}, v{vKV}")
    mm16(OACC+12,VM+6,PM)
    wread(5,0); wread(5,1)
    A(f"v_rcp_f32 v{RI}, v{LT}")
    z(28); z(30)
    fs(A,opt,"pv")
    def pkm(r): A(f"v_pk_mul_f32 {vr(r,2)}, {vr(r,2)}, {vr(RI,2)} op_sel_hi:[1,0]")
    for r in range(0,8,2): pkm(OACC+r)
    for i in range(4): cvt(OACC+i,OACC+2*i,OACC+2*i+1)
    WACC=20
    def wo(u):
        p,P=WORD[u]
        if u<6: lg.wait(wtok[u])
        smf(WACC+4*p,OACC+4*P,vr(WB[u],8) if u<6 else wop("O",u))
    pkm(OACC+8); pkm(OACC+10)
    wo(0)
    pkm(OACC+12); pkm(OACC+14)
    wo(1)
    cvt(OACC+4,OACC+8,OACC+9); cvt(OACC+5,OACC+10,OACC+11)
    wo(2)
    cvt(OACC+6,OACC+12,OACC+13); cvt(OACC+7,OACC+14,OACC+15)
    z(32); z(34)
    fs(A,opt,"a1")
    wo(3)
    A(f"s_add_u32 {sT[0]}, {sPGa}, {sPstO}\ns_add_u32 {sT[1]}, {sT[0]}, {8*16384}")
    z(36)
    wo(4)
    A(f"s_add_u32 {sT[2]}, {sT[0]}, {16*16384}\ns_mov_b32 {sT[5]}, 0xfffffffe")
    z(38)
    wo(5)
    A(f"s_add_u32 {sKM}, {sKM}, 2048\ns_add_u32 {sVM}, {sVM}, 4096\ns_add_u32 {sS}, {sS}, 1")
    wo(6)
    A(f"s_add_u32 {sT[3]}, {sPGa}, {sRdO}\ns_add_u32 {sT[4]}, {sT[3]}, 4096")
    mn=lambda r: A(f"v_min_u32 v{r}, {sT[5]}, v{r}")
    cvt(20,20,21); cvt(21,22,23)
    wo(7)
    cvt(22,24,25); cvt(23,26,27)
    wo(8)
    mn(20)
    vm.issue(f"buffer_store_dwordx4 {vr(20,4)}, v{vP0}, {WS}, {sT[0]} offen sc1")
    wo(9)
    cvt(28,28,29); cvt(29,30,31); mn(28); cvt(30,32,33); cvt(31,34,35)
    vm.issue(f"buffer_store_dwordx4 {vr(28,4)}, v{vP0}, {WS}, {sT[1]} offen sc1")
    cvt(36,36,37); cvt(37,38,39); mn(36)
    vm.issue(f"buffer_store_dwordx2 {vr(36,2)}, v{vP2}, {WS}, {sT[2]} offen sc1")
    fs(A,opt,"stores"); ts(A,opt,1)
    stamp(A,opt,0); fs_collect(A,opt)
    RL,RACC,SEL=48,24,80
    A(f"""
s_cmp_ge_u32 {sW}, 2
s_cbranch_scc1 L_plain
s_cmp_lt_i32 {sTask}, 0
s_cbranch_scc1 L_plain
s_add_u32 {sT[2]}, {sMa}, {sPubO}
s_mov_b32 {sSpin}, 0
s_waitcnt vmcnt({max(opt.get('W1',0),opt.get('W1b',2))})
s_cmp_eq_u32 {sW}, 1
s_cbranch_scc1 L_sel
s_waitcnt vmcnt({opt.get('W1',0)})
L_sel:
v_lshrrev_b32 v86, 4, v{vL16}
v_and_b32 v84, 1, v86
v_lshlrev_b32 v84, 4, v84
v_mov_b32 v85, 0x3f80
v_lshlrev_b32 v85, v84, v85
v_bfe_u32 v84, v86, 1, 2
""")
    for j in range(4):
        A(f"v_cmp_eq_u32 vcc, {j}, v84\nv_cndmask_b32 v{SEL+j}, 0, v85, vcc")
    A(f"""
v_and_b32 v84, 0x70, v{vL16}
v_bfe_u32 v86, v86, 4, 1
v_lshl_add_u32 v86, v86, 3, v84
""")
    for _ in range(opt.get('d1',0)): A("s_nop 15")
    ts(A,opt,2)
    A("L_poll1:")
    for j in range(8): A(f"buffer_load_dwordx4 {vr(RL+4*j,4)}, v{vL16}, {WS}, {sT[3+(j>>2)]} offen offset:{(j&3)*1024} sc1")
    for j in range(8):
        A(f"s_waitcnt vmcnt({7-j})")
        if j==7: A(f"v_max3_u32 v84, v84, v{RL+24}, v{RL+28}")
        mm(RACC,SEL,RL+4*j,j==0)
        if j==1: A(f"v_max_u32 v84, v{RL}, v{RL+4}")
        elif j in (3,5): A(f"v_max3_u32 v84, v84, v{RL+4*j-4}, v{RL+4*j}")
    A("v_cmp_eq_u32 vcc, -1, v84")
    A(f"buffer_load_dword v98, v{vFLG}, {WS}, 0 offen sc1")
    for i in range(4): A(f"v_add_f32_dpp v{28+i}, v{RACC+i}, v{RACC+i} row_ror:8 row_mask:0xf bank_mask:0xf")
    A(f"""
v_cvt_pk_bf16_f32 v28, v28, v29
v_cvt_pk_bf16_f32 v29, v30, v31
v_min_u32 v28, {sT[5]}, v28
s_cbranch_vccnz L_retry1
s_mov_b64 exec, 0x00ff00ff
buffer_store_dwordx2 v[28:29], v86, {WS}, {sT[2]} offen sc1
s_mov_b64 exec, 1""")
    ts(A,opt,3)
    A("s_barrier")
    if opt.get('prof'): A(f"s_add_u32 s94, s94, {sSpin}")
    stamp(A,opt,1)
    A("s_mov_b64 exec, -1")
    def prep(parts):
        if parts&1: qk_preload(A,Cnt(A,"lgkmcnt",15))
        if parts&2: sent_setup(A,opt)
        if parts&4:
            for i in range(0,12,2): z(ACCQ+i)
    prep(7)
    A(f"s_waitcnt vmcnt({opt.get('W2',2)-1})")
    for _ in range(opt.get('d2r',5)): A("s_nop 15")
    A("L_gather:")
    stamp(A,opt,2); ts(A,opt,4)
    NC=1
    CP=[(80,84,88),(32,36,40),(104,92,42)]
    def cload(k,so):
        a,b,c=CP[k]
        A(f"""buffer_load_dwordx4 {vr(a,4)}, v{vL16}, {WS}, {so} offen sc1
buffer_load_dwordx4 {vr(b,4)}, v{vL16}, {WS}, {so} offen offset:1024 sc1
buffer_load_dwordx2 {vr(c,2)}, v{vL8}, {WS}, {so} offen offset:2048 sc1""")
    def ctake(k,left,fail,first=False):
        a,b,c=CP[k]
        A(f"""s_waitcnt vmcnt({left+2})
ds_write_b128 v{vMW16}, {vr(a,4)}
s_waitcnt vmcnt({left+1})
ds_write_b128 v{vMW16}, {vr(b,4)} offset:1024
s_waitcnt vmcnt({left})
ds_write_b64 v{vMW8}, {vr(c,2)}
v_max3_u32 v90, v{a}, v{b}, v{c}
v_cmp_eq_u32 vcc, -1, v90""")
        if first: A(f"v_cmp_gt_u32 {sKVB2}, {sT[4]}, v98")
    A(f"""
s_add_u32 {sT[0]}, {sMa}, {sMLO}
s_add_u32 {sT[2]}, {sT[0]}, 32768
s_add_u32 {sT[3]}, {sT[0]}, 65536""")
    cload(0,sT[0])
    if NC>1:
        for _ in range(opt.get('dc',0)): A("s_nop 15")
        cload(1,sT[2])
    if NC>2:
        for _ in range(opt.get('dc',0)): A("s_nop 15")
        cload(2,sT[3])
    A(f"""s_mov_b32 {sSpin}, 0
s_add_u32 {sT[4]}, {sS}, 2
s_min_u32 {sT[4]}, {sT[4]}, 64
s_mov_b32 {sT[1]}, {sPGa}""")
    ctake(0,3*(NC-1),None,True)
    A("s_cbranch_vccnz L_copy1\nL_got2:")
    if opt.get('prof'): A(f"s_add_u32 s95, s95, {sSpin}")
    stamp(A,opt,3); ts(A,opt,5); ts_flush(A,opt)
    A(f"""s_mov_b32 {sPGa}, {sPGb}
s_mov_b32 {sPGb}, {sPGc}
s_mov_b32 {sPGc}, {sT[1]}
s_mov_b32 {sT[1]}, {sMa}
s_mov_b32 {sMa}, {sMb}
s_mov_b32 {sMb}, {sMc}
s_mov_b32 {sMc}, {sT[1]}
s_branch L_step
L_plain:""")
    ts(A,opt,2); ts(A,opt,3)
    prep(opt.get('pre',7))
    A(f"""s_barrier
buffer_load_dword v98, v{vFLG}, {WS}, 0 offen sc1
s_waitcnt vmcnt(0)""")
    prep(7-opt.get('pre',7))
    for _ in range(opt.get('d2n',3)): A("s_nop 15")
    A(f"""s_branch L_gather
L_kv_slow:
s_add_u32 {sT[4]}, {sS}, 2
s_min_u32 {sT[4]}, {sT[4]}, 64""")
    wait_kv(A,sT[4],79,0x103)
    A(("s_endpgm" if NOHK else "s_branch L_kv_ready")+"\nL_retry1:\ns_waitcnt vmcnt(0)")
    spin_tail(A,sSpin,"L_poll1",0x104)
    A("L_copy1:")
    for k in range(1,NC):
        A(f"s_add_u32 {sSpin}, {sSpin}, 1")
        ctake(k,3*(NC-1-k),None)
        A("s_cbranch_vccz L_got2")
    A("L_poll2:")
    cload(0,sT[0]); ctake(0,0,None)
    A("s_cbranch_vccz L_got2")
    spin_tail(A,sSpin,"L_poll2",0x105)
    A(f"""L_chain_exit:
s_waitcnt vmcnt(0)
v_mov_b32 v{KX+4}, 64
s_mov_b64 exec, 1
buffer_store_dword v{KX+4}, v{vL16}, {WS}, {sKMFL} offen sc1
s_waitcnt vmcnt(0)""")
    if opt.get('prof'):
        A(f"""s_memtime s[90:91]
s_memrealtime s[28:29]
s_waitcnt lgkmcnt(0)
s_sub_u32 s24, s90, s97
s_sub_u32 s30, s92, s96
s_sub_u32 s29, s28, s92
s_lshl_b32 s31, {sB}, 2
s_add_u32 s31, s31, {sW}
s_lshl_b32 s31, s31, 7
s_add_u32 s31, s31, {PROF}""")
        for i,r in enumerate(["s20","s21","s22","s23","s24","s30","s29","s94","s95","s96"]+(FACC[1:] if opt.get('prof')==2 else [])):
            A(f"v_mov_b32 v20, {r}\nbuffer_store_dword v20, v{vL16}, {WS}, s31 offen offset:{4*i}")
        A("s_waitcnt vmcnt(0)")
    A("s_endpgm")
```

```python
from asmlib import *
NAME = "parallel_sum__memory_aug_recurrent_mem_tr__swiglu_ffn__prompt"
PAGE   = 0x200000
FLAGS  = 0x0600000
F_KP, F_VP, F_OP, F_HP, F_KM = FLAGS, FLAGS+4096, FLAGS+8192, FLAGS+12288, FLAGS+16384
FLAG_BYTES = 24576
XNF = 0x0800000
KXF = 0x0B00000
VXF = 0x1B00000
OF  = 0x2B00000
HF  = 0x3B00000
KMF = 0x4200000
VMF = 0x4600000
PROF = 0x0700000
WS_SIZE = 0x0FE00000
D_C1, D_C2, D_POL, D_ERR = 0, 128, 132, 192
NAUX = 64
SPIN = 2000000
S_WS = 4
S_T  = 8
S_DB = 12
sW   = "s16"
P_X, P_MEM0, P_WQ, P_WK, P_WV, P_WO, P_SEG, P_BX, P_WG, P_WU, P_WD, P_OUT, P_DBG, P_WSP = [64+2*i for i in range(14)]
SCALE_LOG2E = 0.08838834764831845*1.4426950408889634
import struct
def f2u(x): return struct.unpack("<I", struct.pack("<f", x))[0]

def srd(A, dst, ptr, nbytes):
    A(f"""s_mov_b32 s{dst}, s{ptr}
s_and_b32 s{dst+1}, s{ptr+1}, 0xffff
s_mov_b32 s{dst+2}, {hex(nbytes)}
s_mov_b32 s{dst+3}, 0x20000""")

def fail(A, code):
    A(f"""v_mov_b32 v1, {code}
v_mov_b32 v2, {D_ERR}
buffer_store_dword v1, v2, s[{S_DB}:{S_DB+3}], 0 offen sc1
s_waitcnt vmcnt(0)
s_endpgm""")

def spin_tail(A, cnt, loop, code, sleep=0):
    if sleep: A(f"s_sleep {sleep}")
    A(f"""s_add_u32 {cnt}, {cnt}, 1
s_cmp_lt_u32 {cnt}, {SPIN}
s_cbranch_scc1 {loop}""")
    fail(A, code)
```

```python
import sys
from common import *
import chain, bulk

def build(opt):
    A=Asm()
    K=NAME+"_kernel"
    A(f"; @launch grid=(256,1,1) block=(256,1,1) lds=163840")
    A('.amdgcn_target "amdgcn-amd-amdhsa--gfx950"')
    kernel_begin(A,K)
    A(f"""
s_cmp_ge_u32 s2, 256
s_cbranch_scc1 L_exit
s_load_dwordx16 s[64:79], s[0:1], 0
s_load_dwordx8 s[80:87], s[0:1], 64
s_load_dwordx4 s[88:91], s[0:1], 96
v_lshrrev_b32 v1, 6, v0
s_nop 0
v_readfirstlane_b32 {sW}, v1
s_waitcnt lgkmcnt(0)
s_add_u32 s{S_WS}, s{P_WSP}, {PAGE-1}
s_addc_u32 s{S_WS+1}, s{P_WSP+1}, 0
s_and_b32 s{S_WS}, s{S_WS}, {hex(0x100000000-PAGE)}
s_and_b32 s{S_WS+1}, s{S_WS+1}, 0xffff
s_mov_b32 s{S_WS+2}, {hex(WS_SIZE)}
s_mov_b32 s{S_WS+3}, 0x20000
""")
    srd(A,S_DB,P_DBG,256)
    if opt.get('prof'): A("s_memrealtime s[96:97]\ns_waitcnt lgkmcnt(0)")
    bulk.rstamp(A,opt,0)
    A(f"""
s_and_b32 s20, s2, 7
s_lshr_b32 s21, s2, 3
s_cmp_ge_u32 s20, 4
s_cbranch_scc1 L_side_b
s_cmp_ge_u32 s21, 16
s_cbranch_scc1 L_side_a_rest
s_lshr_b32 s22, s21, 1
s_lshl_b32 {chain.sH}, s20, 3
s_add_u32 {chain.sH}, {chain.sH}, s22
s_and_b32 {chain.sC}, s21, 1
s_lshl_b32 {chain.sB}, s20, 4
s_add_u32 {chain.sB}, {chain.sB}, s21
""")
    if opt.get('roles',255)&1: chain.role_chain(A,opt)
    else: A('s_endpgm')
    roles=opt.get('roles',255)
    A(f"""
L_side_a_rest:
s_lshl_b32 s17, s20, 3
s_and_b32 s22, s21, 7
s_add_u32 s17, s17, s22
s_cmp_lt_u32 s21, 24
s_cbranch_scc1 L_role_Q
s_cmp_lg_u32 s17, 31
s_cbranch_scc1 L_role_K
""")
    if roles&64: bulk.probe_side(A,opt)
    A("s_endpgm\nL_role_Q:")
    if roles&2: bulk.role_proj(A,"Q",opt)
    else: A("s_endpgm")
    A("L_role_K:")
    if roles&4: bulk.role_proj(A,"K",opt)
    else: A("s_endpgm")
    A(f"""
L_side_b:
s_sub_u32 s20, s20, 4
s_cmp_eq_u32 s20, 3
s_cbranch_scc1 L_pool3
s_cmp_lt_u32 s21, 20
s_cbranch_scc1 L_role_fin
s_mul_i32 s17, s20, 12
s_add_u32 s17, s17, s21
s_sub_u32 s17, s17, 20
s_branch L_pool
L_pool3:
s_add_u32 s17, s21, 36
L_pool:
s_cmp_lt_u32 s17, 32
s_cbranch_scc1 L_role_V
s_sub_u32 s17, s17, 32
s_cmp_lt_u32 s17, 27
s_cbranch_scc1 L_role_F
s_cmp_eq_u32 s17, 31
s_cbranch_scc1 L_role_K
s_cmp_ge_u32 s17, 31
s_cbranch_scc1 L_exit
s_add_u32 s19, s17, 33
s_mov_b32 s18, 3
s_branch L_aux
L_role_fin:
s_mov_b32 s17, s21
s_mov_b32 s18, s20
s_mul_i32 s19, s20, 20
s_add_u32 s19, s19, s21
L_aux:
""")
    if roles&128: bulk.aux_work(A,"s19",opt)
    A("s_cmp_eq_u32 s18, 3\ns_cbranch_scc1 L_exit")
    if roles&32: bulk.role_final(A,opt)
    else: A("s_endpgm")
    A("L_role_V:")
    if roles&8: bulk.role_proj(A,"V",opt)
    else: A("s_endpgm")
    A("L_role_F:")
    if roles&16: bulk.role_proj(A,"F",opt)
    else: A("s_endpgm")
    A("L_exit:\ns_endpgm")
    kernel_desc(A,K,512,256)
    lines,n=fix_hazards(A.lines, verbose=opt.get('verbose',False))
    print("inserted nops:",n,"lines:",len(lines),file=sys.stderr)
    return "\n".join(lines)+"\n"
if __name__=="__main__":
    out=sys.argv[1] if len(sys.argv)>1 else "out.s"
    opt={}
    for a in sys.argv[2:]:
        k,v=a.split("="); opt[k]=int(v)
    open(out,"w").write(build(opt))
```

```python
from common import *
WS=f"s[{S_WS}:{S_WS+3}]"; DB=f"s[{S_DB}:{S_DB+3}]"; TS=f"s[{S_T}:{S_T+3}]"
sI="s17"
sT=[f"s{i}" for i in range(50,60)]
sSpin="s62"
LOG2E=1.4426950408889634

def poll_ge(A,vaddr,vtmp,need,srd,code,sleep=4,soff="0"):
    L=A.label("L_pw"); ok=A.label("L_pok")
    A(f"s_mov_b32 {sSpin}, 0\n{L}:\nbuffer_load_dword {vtmp}, {vaddr}, {srd}, {soff} offen sc1\ns_waitcnt vmcnt(0)")
    A(f"v_cmp_gt_u32 vcc, {need}, {vtmp}\ns_cbranch_vccz {ok}")
    spin_tail(A,sSpin,L,code,sleep=sleep)
    A(f"{ok}:")

def wg_wait(A,vaddr,vtmp,need,srd,code,sleep,first=0):
    L=A.label("L_ww")
    A(f"s_cmp_lg_u32 {sW}, 0\ns_cbranch_scc1 {L}")
    poll_ge(A,vaddr,vtmp,need,srd,code,sleep=sleep)
    A(f"{L}:\ns_barrier")

def rstamp(A,opt,k):
    if not opt.get('prof'): return
    L=A.label("L_rs")
    A(f"""s_cmp_lg_u32 {sW}, 0
s_cbranch_scc1 {L}
s_memrealtime s[98:99]
s_waitcnt lgkmcnt(0)
s_lshl_b32 s99, s2, 6
s_add_u32 s99, s99, {PROF+0xC0000+4*k}
v_mov_b32 v126, s98
v_mov_b32 v127, 0
s_mov_b64 exec, 1
buffer_store_dword v126, v127, {WS}, s99 offen
s_mov_b64 exec, -1
{L}:""")

def xlane_sum(A,v,t):
    A(f"""v_add_f32_dpp {v}, {v}, {v} row_ror:8 row_mask:0xf bank_mask:0xf
v_mov_b32 {t}, {v}
v_permlane16_swap_b32 {v}, {t}
v_add_f32 {v}, {v}, {t}
v_mov_b32 {t}, {v}
v_permlane32_swap_b32 {v}, {t}
v_add_f32 {v}, {v}, {t}""")

def aux_work(A,sA,opt):
    RAW,X=16,64
    srd(A,S_T,P_X,2048*1280)
    A(f"""
v_and_b32 v10, 63, v0
v_and_b32 v1, 7, v10
v_lshrrev_b32 v2, 3, v10
v_mul_u32_u24 v3, 1280, v1
v_lshl_add_u32 v3, v2, 4, v3
s_lshl_b32 {sT[0]}, {sA}, 2
s_add_u32 {sT[0]}, {sT[0]}, {sW}
s_mul_i32 {sT[0]}, {sT[0]}, {8*1280}
""")
    for j in range(10): A(f"buffer_load_dwordx4 {vr(RAW+4*j,4)}, v3, {TS}, {sT[0]} offen offset:{128*j}")
    A(f"""
v_mov_b32 v4, 0
v_mov_b32 v5, 0
v_mov_b32 v6, 0
v_mov_b32 v7, 0
v_lshlrev_b32 v8, 4, v0
v_mov_b32 v9, 0x7ffffff0
v_cmp_gt_u32 vcc, 24, v0
v_cndmask_b32 v8, v9, v8, vcc
s_mul_i32 {sT[1]}, {sA}, 384
s_add_u32 {sT[1]}, {sT[1]}, {FLAGS}
buffer_store_dwordx4 v[4:7], v8, {WS}, {sT[1]} offen sc1
v_lshrrev_b32 v4, 1, v2
v_lshlrev_b32 v4, 10, v4
v_and_b32 v5, 1, v2
v_lshl_add_u32 v4, v5, 9, v4
v_lshl_add_u32 v4, v1, 4, v4
s_mul_i32 {sT[2]}, {sA}, 40960
s_lshl_b32 {sT[3]}, {sW}, 7
s_add_u32 {sT[2]}, {sT[2]}, {sT[3]}
s_add_u32 {sT[2]}, {sT[2]}, {XNF}
""")
    (ring_reset4 if opt.get('h4',0) else ring_reset)(A,sA)
    for j in range(10):
        A(f"s_waitcnt vmcnt({(14 if opt.get('h4',0) else 17)-j})")
        for k in range(4):
            A(f"v_lshlrev_b32 v{X+8*j+2*k}, 16, v{RAW+4*j+k}\nv_and_b32 v{X+8*j+2*k+1}, 0xffff0000, v{RAW+4*j+k}")
    A(f"v_pk_add_f32 v[6:7], {vr(X,2)}, {vr(X+2,2)}")
    for i in range(4,80,2): A(f"v_pk_add_f32 v[6:7], v[6:7], {vr(X+i,2)}")
    A("v_add_f32 v6, v6, v7"); xlane_sum(A,"v6","v7")
    A(f"v_mul_f32 v6, {hex(f2u(1/640))}, v6")
    A(f"v_pk_add_f32 v[12:13], {vr(X,2)}, v[6:7] op_sel_hi:[1,0] neg_lo:[0,1] neg_hi:[0,1]\nv_pk_mul_f32 v[8:9], v[12:13], v[12:13]")
    for i in range(2,80,2):
        A(f"v_pk_add_f32 v[12:13], {vr(X+i,2)}, v[6:7] op_sel_hi:[1,0] neg_lo:[0,1] neg_hi:[0,1]\nv_pk_fma_f32 v[8:9], v[12:13], v[12:13], v[8:9]")
    A("v_add_f32 v8, v8, v9"); xlane_sum(A,"v8","v9")
    A(f"""
v_mul_f32 v8, {hex(f2u(1/640))}, v8
v_cvt_pk_bf16_f32 v6, v6, v6
v_and_b32 v6, 0xffff0000, v6
v_cvt_pk_bf16_f32 v8, v8, v8
v_and_b32 v8, 0xffff0000, v8
v_add_f32 v8, {hex(f2u(1e-5))}, v8
v_cvt_pk_bf16_f32 v8, v8, v8
v_and_b32 v8, 0xffff0000, v8
v_sqrt_f32 v8, v8
v_cvt_pk_bf16_f32 v8, v8, v8
v_and_b32 v8, 0xffff0000, v8
v_rcp_f32 v8, v8
""")
    for j in range(10):
        for k in range(4):
            r=X+8*j+2*k
            A(f"""v_pk_add_f32 {vr(r,2)}, {vr(r,2)}, v[6:7] op_sel_hi:[1,0] neg_lo:[0,1] neg_hi:[0,1]
v_cvt_pk_bf16_f32 v12, v{r}, v{r+1}
v_lshlrev_b32 v{r}, 16, v12
v_and_b32 v{r+1}, 0xffff0000, v12
v_pk_mul_f32 {vr(r,2)}, {vr(r,2)}, v[8:9] op_sel_hi:[1,0]
v_cvt_pk_bf16_f32 v{RAW+4*j+k}, v{r}, v{r+1}""")
        A(f"buffer_store_dwordx4 {vr(RAW+4*j,4)}, v4, {WS}, {sT[2]} offen sc1")
        if j<9: A(f"s_add_u32 {sT[2]}, {sT[2]}, 4096")
    A(f"""
s_waitcnt vmcnt(0)
s_barrier
s_cmp_lg_u32 {sW}, 0
s_cbranch_scc1 L_aux1
v_mov_b32 v4, 1
v_mov_b32 v5, {D_C1}
s_mov_b64 exec, 1
buffer_atomic_add v4, v5, {DB}, 0 offen sc1
s_mov_b64 exec, -1
L_aux1:
""")
    rstamp(A,opt,9)

def ring_reset(A,sA):
    A(f"""
v_mov_b32 v56, -1
v_mov_b32 v57, -1
v_mov_b32 v58, -1
v_mov_b32 v59, -1
v_lshrrev_b32 v60, 4, v10
v_lshlrev_b32 v60, 14, v60
v_bfe_u32 v61, v10, 3, 1
v_lshl_add_u32 v60, v61, 13, v60
v_and_b32 v62, 7, v10
v_lshl_add_u32 v60, v62, 4, v60
s_mul_i32 s21, {sW}, {20*16384}
s_lshl_b32 s22, {sA}, 7
s_add_u32 s21, s21, s22
""")
    for k in range(5):
        A(f"s_add_u32 s23, s21, {k*4*16384}\nbuffer_store_dwordx4 v[56:59], v60, {WS}, s23 offen sc1")
    A(f"""
s_lshl_b32 s23, {sW}, 6
s_add_u32 s23, s23, {sA}
s_cmp_lt_u32 s23, 80
s_cselect_b32 s24, 16, 0
v_mov_b32 v61, 0x7ffffff0
v_cmp_gt_u32 vcc, s24, v10
v_cndmask_b32 v60, v61, v60, vcc
s_min_u32 s23, s23, 79
s_mul_i32 s24, s23, 3277
s_lshr_b32 s24, s24, 16
s_mul_i32 s25, s24, 20
s_sub_u32 s23, s23, s25
s_lshl_b32 s23, s23, 7
s_lshr_b32 s25, s24, 1
s_lshl_b32 s25, s25, 14
s_add_u32 s23, s23, s25
s_and_b32 s25, s24, 1
s_lshl_b32 s25, s25, 12
s_add_u32 s23, s23, s25
s_add_u32 s23, s23, {80*16384}
buffer_store_dwordx4 v[56:59], v60, {WS}, s23 offen sc1
s_cmp_eq_u32 {sW}, 2
s_cselect_b32 s24, 16, 0
v_lshlrev_b32 v60, 13, v10
v_and_b32 v60, 0x10000, v60
v_lshrrev_b32 v60, 3, v60
v_lshl_add_u32 v60, v62, 4, v60
v_cmp_gt_u32 vcc, s24, v10
v_cndmask_b32 v60, v61, v60, vcc
s_lshr_b32 s23, {sA}, 5
s_lshl_b32 s23, s23, 14
s_and_b32 s24, {sA}, 31
s_lshl_b32 s24, s24, 8
s_add_u32 s23, s23, s24
s_add_u32 s23, s23, {112*16384}
buffer_store_dwordx4 v[56:59], v60, {WS}, s23 offen sc1
""")

def ring_reset4(A,sA):
    import chain2 as H
    A(f"""
v_mov_b32 v56, -1
v_mov_b32 v57, -1
v_mov_b32 v58, -1
v_mov_b32 v59, -1
v_and_b32 v62, 7, v10
v_lshlrev_b32 v62, 4, v62
v_lshrrev_b32 v63, 3, v10
v_lshl_add_u32 v60, v63, 11, v62
v_mov_b32 v61, 0x7ffffff0
s_lshr_b32 s20, {sA}, 4
s_and_b32 s21, {sA}, 15
s_mul_i32 s22, s20, {H.PAGR}
s_lshl_b32 s23, s21, 7
s_add_u32 s22, s22, s23
s_mul_i32 s23, {sW}, {20*2048}
s_add_u32 s22, s22, s23
s_add_u32 s22, s22, {H.PAB}
buffer_store_dwordx4 v[56:59], v60, {WS}, s22 offen sc1
s_add_u32 s22, s22, {8*2048}
buffer_store_dwordx4 v[56:59], v60, {WS}, s22 offen sc1
s_add_u32 s22, s22, {8*2048}
v_cmp_gt_u32 vcc, 32, v10
v_cndmask_b32 v60, v61, v60, vcc
buffer_store_dwordx4 v[56:59], v60, {WS}, s22 offen sc1
s_lshr_b32 s22, s21, 1
s_lshl_b32 s22, s22, 14
s_and_b32 s23, s21, 1
s_lshl_b32 s23, s23, 12
s_add_u32 s22, s22, s23
s_lshl_b32 s23, s20, 7
s_add_u32 s22, s22, s23
s_lshl_b32 s23, {sW}, 13
s_add_u32 s22, s22, s23
s_lshl_b32 s23, s20, 15
s_mul_i32 s24, s21, 640
s_add_u32 s23, s23, s24
s_add_u32 s23, s23, {H.LMB}
s_cmp_eq_u32 {sW}, 2
s_cselect_b32 s22, s23, s22
s_cselect_b32 s25, 7, 9
s_lshr_b32 s23, {sA}, 5
s_lshl_b32 s23, s23, 14
s_and_b32 s24, {sA}, 31
s_lshl_b32 s24, s24, 8
s_add_u32 s23, s23, s24
s_add_u32 s23, s23, {112*16384}
s_cmp_eq_u32 {sW}, 3
s_cselect_b32 s22, s23, s22
s_cselect_b32 s25, 13, s25
s_cselect_b32 s24, 16, 40
v_lshlrev_b32 v60, s25, v63
v_add_u32 v60, v60, v62
v_cmp_gt_u32 vcc, s24, v10
v_cndmask_b32 v60, v61, v60, vcc
buffer_store_dwordx4 v[56:59], v60, {WS}, s22 offen sc1
""")

def probe_side(A,opt):
    A(f"""
v_and_b32 v10, 63, v0
v_mov_b32 v3, 0
v_mov_b32 v4, -1
v_mov_b32 v5, -1
ds_write_b64 v3, v[4:5]
v_mov_b32 v5, {D_C1}
s_waitcnt lgkmcnt(0)
""")
    wg_wait(A,"v5","v6",NAUX,DB,0x202,sleep=12)
    A(f"""
s_and_b32 s25, {sW}, 1
s_lshl_b32 s26, s25, 2
v_mov_b32 v8, s26
s_lshl_b32 s20, s25, 13
s_lshr_b32 s21, {sW}, 1
s_lshl_b32 s21, s21, 8
s_add_u32 s20, s20, s21
s_add_u32 s20, s20, {112*16384}
s_mov_b32 s24, 0                  ; round
s_mov_b64 exec, 1
buffer_load_dword v16, v3, {WS}, s20 offen offset:128 sc1
s_waitcnt vmcnt(0)
L_probe:
s_and_b32 s22, s24, 15
s_lshl_b32 s22, s22, 9
s_lshr_b32 s23, s24, 4
s_lshl_b32 s23, s23, 14
s_add_u32 s22, s22, s23
s_add_u32 s22, s22, s20
s_memtime s[26:27]
s_waitcnt lgkmcnt(0)
buffer_load_dword v16, v3, {WS}, s22 offen sc1
s_waitcnt vmcnt(0)
s_memtime s[28:29]
s_waitcnt lgkmcnt(0)
s_sub_u32 s23, s28, s26
v_mov_b32 v7, s23
ds_min_u32 v8, v7
s_waitcnt lgkmcnt(0)
s_barrier
ds_read_b64 v[6:7], v3
s_waitcnt lgkmcnt(0)
v_readfirstlane_b32 s26, v6
v_readfirstlane_b32 s27, v7
s_barrier""")
    if opt.get('prof'):
        A(f"""v_mov_b32 v20, s23
s_lshl_b32 s29, s24, 2
s_add_u32 s29, s29, {sW}
s_lshl_b32 s29, s29, 2
s_add_u32 s29, s29, {PROF+0xD0000}
buffer_store_dword v20, v3, {WS}, s29 offen""")
    A(f"""
s_add_u32 s24, s24, 1
s_cmp_lt_u32 s24, 3
s_cbranch_scc1 L_probe
s_sub_i32 s28, s26, s27
s_abs_i32 s28, s28
s_min_u32 s29, s26, s27
s_lshr_b32 s29, s29, 2
s_cmp_ge_u32 s28, {"s29" if 'pgap' not in opt else opt['pgap']}
s_cbranch_scc1 L_probe_end
s_cmp_lt_u32 s24, {opt.get('prounds',32)}
s_cbranch_scc1 L_probe
L_probe_end:
s_cmp_lt_u32 s26, s27
s_cselect_b32 s21, 2, 5
""")
    if 'pol' in opt: A(f"s_mov_b32 s21, {opt['pol']}")
    if opt.get('prof'): A("s_lshl_b32 s24, s24, 4\ns_or_b32 s21, s21, s24\ns_lshr_b32 s26, s26, 2\ns_lshl_b32 s26, s26, 10\ns_or_b32 s21, s21, s26\ns_lshr_b32 s27, s27, 2\ns_lshl_b32 s27, s27, 20\ns_or_b32 s21, s21, s27")
    A(f"""
s_or_b32 s21, s21, 0x80000000
v_mov_b32 v2, s21
v_mov_b32 v5, {D_POL}
buffer_store_dword v2, v5, {DB}, 0 offen sc1
s_mov_b64 exec, -1
""")
    rstamp(A,opt,9)

def tr_base(A,dst,l,order,base):
    A(f"""v_lshrrev_b32 v11, 5, {l}
v_lshlrev_b32 v11, {9 if order==0 else 8}, v11
v_bfe_u32 v12, {l}, 2, 2
v_lshl_add_u32 v11, v12, 6, v11
v_bfe_u32 v12, {l}, 4, 1
v_lshl_add_u32 v11, v12, 5, v11
v_and_b32 v12, 3, {l}
v_lshl_add_u32 v11, v12, 3, v11
v_add_u32 {dst}, {base}, v11""")
    return 256 if order==0 else 512

def role_proj(A,kind,opt):
    tag=kind
    NS=2 if kind=="Q" else 3
    vL16,vTR,vST,vFL=1,2,3,4
    ACC=16; FB=32; NF=6
    sL,sS,sXN,sSlot,sOut,sFlag,sDst=[f"s{i}" for i in range(32,39)]
    vm=Cnt(A,"vmcnt",63); lg=Cnt(A,"lgkmcnt",15)
    A(f"""
v_and_b32 v10, 63, v0
v_lshlrev_b32 v{vL16}, 4, v10
""")
    if kind=="F":
        if opt.get('pf',2):
            if opt.get('pf',2)>1:
                A(f"""s_lshl_b32 {sT[0]}, {sI}, 2
s_add_u32 {sT[0]}, {sT[0]}, {sW}
s_bitcmp1_b32 {sT[0]}, 3
s_cselect_b32 s24, s{P_WQ}, s{P_WK}
s_cselect_b32 s25, s{P_WQ+1}, s{P_WK+1}""")
                srd(A,20,24,5242880)
                A(f"""v_lshrrev_b32 v11, 4, v10
v_lshlrev_b32 v11, 13, v11
v_and_b32 v12, 15, v10
v_lshl_add_u32 v11, v12, 4, v11
s_and_b32 {sT[1]}, {sT[0]}, 7
s_lshl_b32 {sT[1]}, {sT[1]}, 10
s_add_u32 {sT[1]}, {sT[1]}, 256
s_lshr_b32 {sT[2]}, {sT[0]}, 4
s_mul_i32 {sT[2]}, {sT[2]}, 14""")
                for i in range(14):
                    A(f"""s_add_u32 {sT[3]}, {sT[2]}, {i}
s_cmp_ge_u32 {sT[3]}, 40
s_cselect_b32 {sT[4]}, 80, 40
s_add_u32 {sT[3]}, {sT[3]}, {sT[4]}
s_lshl_b32 {sT[3]}, {sT[3]}, 15
s_add_u32 {sT[3]}, {sT[3]}, {sT[1]}
buffer_load_dwordx4 v[16:19], v11, s[20:23], {sT[3]} offen""")
            srd(A,S_T,P_WO,5242880)
            A(f"s_lshl_b32 {sT[0]}, {sI}, 2\ns_add_u32 {sT[0]}, {sT[0]}, {sW}\ns_mul_i32 {sT[0]}, {sT[0]}, {48*1024}")
            for i in range(48):
                if i%4==0 and i: A(f"s_add_u32 {sT[0]}, {sT[0]}, 4096")
                A(f"buffer_load_dwordx4 v[16:19], v{vL16}, {TS}, {sT[0]} offen offset:{(i%4)*1024}")
            A("s_waitcnt vmcnt(0)")
        A(f"v_mov_b32 v5, {D_C1}")
        wg_wait(A,"v5","v6",NAUX,DB,0x214,sleep=48)
        if opt.get('gateF',0):
            A(f"s_lshl_b32 {sT[0]}, {sI}, 8\ns_add_u32 {sT[0]}, {sT[0]}, {F_KM}\nv_mov_b32 v5, {sT[0]}")
            wg_wait(A,"v5","v6",1,WS,0x215,sleep=32)
    A(f"""v_lshrrev_b32 v11, 4, v10
v_lshlrev_b32 v12, 2, v11
v_sub_u32 v12, v10, v12
v_and_b32 v12, 15, v12
s_lshl_b32 {sT[0]}, {sW}, 2
v_add_u32 v11, {sT[0]}, v11
s_lshl_b32 {sL}, {sW}, 10""")
    toks=[]
    if kind!="F":
        srd(A,S_T,{"K":P_WK,"V":P_WV,"Q":P_WQ}[kind],5242880)
        A(f"""v_lshlrev_b32 v11, 13, v11
v_lshl_add_u32 v13, v12, 4, v11
s_lshl_b32 {sT[0]}, {sI}, 8""")
        for i in range(40):
            A(f"s_add_u32 m0, {sL}, {i*4096}\ns_add_u32 {sT[1]}, {sT[0]}, {i*16*8192}")
            toks.append(vm.issue(f"buffer_load_dwordx4 v13, {TS}, {sT[1]} offen lds"))
    else:
        A(f"""v_mul_u32_u24 v11, 3456, v11
v_and_b32 v5, 7, v12
v_lshl_add_u32 v11, v5, 4, v11
s_lshl_b32 {sT[0]}, {sI}, 7
v_add_u32 v11, {sT[0]}, v11
v_cmp_gt_u32 vcc, 8, v12
v_mov_b32 v12, s{P_WG}
v_mov_b32 v13, s{P_WG+1}
v_mov_b32 v14, s{P_WU}
v_mov_b32 v15, s{P_WU+1}
v_cndmask_b32 v12, v14, v12, vcc
v_cndmask_b32 v13, v15, v13, vcc
v_add_co_u32 v12, vcc, v12, v11
v_addc_co_u32 v13, vcc, 0, v13, vcc""")
        for i in range(40):
            A(f"s_add_u32 m0, {sL}, {i*4096}\ns_nop 0")
            toks.append(vm.issue(f"global_load_lds_dwordx4 v[12:13], off"))
            if i<39: A(f"v_add_co_u32 v12, vcc, {16*3456}, v12\nv_addc_co_u32 v13, vcc, 0, v13, vcc")
    A(f"""v_bfe_u32 v11, v10, 2, 2
v_bfe_u32 v12, v10, 4, 1
v_lshlrev_b32 v12, {3 if kind=="F" else 1}, v12
v_lshl_add_u32 v12, v11, 2, v12
v_bfe_u32 v14, v10, 1, 1
v_add_u32 v12, v12, v14
s_lshl_b32 {sT[0]}, {sW}, {1 if kind=="F" else 2}
v_add_u32 v12, {sT[0]}, v12
v_and_b32 v12, 15, v12
v_lshlrev_b32 v12, 4, v12
v_lshl_add_u32 v12, v11, 8, v12
v_lshrrev_b32 v11, 5, v10
v_lshl_add_u32 v12, v11, 11, v12
v_and_b32 v11, 1, v10
v_lshl_add_u32 v{vTR}, v11, 3, v12
v_add_u32 v15, 65536, v{vTR}
v_add_u32 v14, 131072, v{vTR}""")
    ustep=1024
    if kind in "KQ":
        A(f"""v_bfe_u32 v11, v10, 4, 1
v_lshlrev_b32 v11, 12, v11
v_lshrrev_b32 v12, 5, v10
v_lshl_add_u32 v11, v12, 8, v11
v_and_b32 v12, 15, v10
v_lshl_add_u32 v{vST}, v12, 4, v11""")
    elif kind=="V":
        A(f"""v_bfe_u32 v11, v10, 4, 1
v_lshlrev_b32 v11, 10, v11
v_lshrrev_b32 v12, 5, v10
v_lshl_add_u32 v11, v12, 8, v11
v_and_b32 v12, 15, v10
v_lshl_add_u32 v{vST}, v12, 4, v11""")
    else: A(f"v_mov_b32 v{vST}, v{vL16}")
    if kind=="K": A(f"s_lshl_b32 {sOut}, {sI}, 19\ns_lshl_b32 {sT[2]}, {sW}, 10\ns_add_u32 {sOut}, {sOut}, {sT[2]}\ns_add_u32 {sOut}, {sOut}, {KXF}")
    if kind=="V": A(f"s_lshl_b32 {sOut}, {sI}, 19\ns_lshl_b32 {sT[2]}, {sW}, 11\ns_add_u32 {sOut}, {sOut}, {sT[2]}\ns_add_u32 {sOut}, {sOut}, {VXF}")
    if kind=="F": A(f"s_lshl_b32 {sOut}, {sI}, 2\ns_add_u32 {sOut}, {sOut}, {sW}\ns_lshl_b32 {sOut}, {sOut}, 10\ns_add_u32 {sOut}, {sOut}, {HF}")
    fbase={"K":F_KP,"V":F_VP,"F":F_HP,"Q":F_OP}[kind]
    A(f"s_lshl_b32 {sFlag}, {sI}, 7\ns_lshl_b32 {sT[2]}, {sW}, 2\ns_add_u32 {sFlag}, {sFlag}, {sT[2]}\ns_add_u32 {sFlag}, {sFlag}, {fbase}")
    for i in range(40):
        if i%8==0:
            vm.wait(toks[i+7]); A("s_barrier")
        for u in range(2): lg.issue(f"ds_read_b64_tr_b16 {ar(4*i+2*u,2)}, v{(vTR,15,14)[i//16]} offset:{(i%16)*4096+u*ustep}")
    rstamp(A,opt,1)
    if kind=="Q": q_setup(A)
    if kind!="F":
        A(f"v_mov_b32 v5, {D_C1}")
        wg_wait(A,"v5","v6",NAUX,DB,0x210+"KVQF".index(kind),sleep=12)
    rstamp(A,opt,2)
    if opt.get('fake'+kind):
        A(f"v_mov_b32 v6, 64\ns_mov_b64 exec, 1\nbuffer_store_dword v6, v{vL16}, {WS}, {sFlag} offen sc1\ns_waitcnt vmcnt(0)\ns_endpgm")
    A(f"""s_waitcnt lgkmcnt(0)
s_barrier
s_mul_i32 {sXN}, {sW}, 10240
s_add_u32 {sXN}, {sXN}, {XNF}
s_mul_i32 {sDst}, {sW}, 10240
s_mov_b32 {sSlot}, 0
s_mov_b32 {sS}, 0
""")
    def xdma(k):
        so=f"{sT[3]}"
        if k%4==0: A(f"s_add_u32 m0, {sDst}, {k*1024}\ns_add_u32 {so}, {sXN}, {k*1024}")
        vm.issue(f"buffer_load_dwordx4 v{vL16}, {WS}, {so} offen offset:{(k%4)*1024} lds")
    def xadv():
        A(f"""s_add_u32 {sXN}, {sXN}, 40960
s_add_u32 {sDst}, {sDst}, 40960
s_cmp_ge_u32 {sDst}, {NS*40960}
s_cselect_b32 {sT[4]}, {NS*40960}, 0
s_sub_u32 {sDst}, {sDst}, {sT[4]}""")
    for n in range(NS-1):
        for k in range(10): xdma(k)
        xadv()
    A(f"s_waitcnt vmcnt({10*(NS-2)})")
    A(f"L_{tag}_loop:")
    vm=Cnt(A,"vmcnt",63); lg=Cnt(A,"lgkmcnt",15)
    A(f"s_barrier\nv_add_u32 v5, {sSlot}, v{vL16}")
    if kind=="Q": q_prefetch(A,vm,sS)
    ft={}
    def fr(i): ft[i]=lg.issue(f"ds_read_b128 {vr(FB+4*(i%NF),4)}, v5 offset:{i*1024}")
    for i in range(NF-1): fr(i)
    for i in range(40):
        lg.wait(ft[i])
        x=vr(FB+4*(i%NF),4); w=ar(4*i,4); c="0" if i==0 else vr(ACC,16)
        if kind=="V": A(f"v_mfma_f32_32x32x16_bf16 {vr(ACC,16)}, {x}, {w}, {c}")
        else: A(f"v_mfma_f32_32x32x16_bf16 {vr(ACC,16)}, {w}, {x}, {c}")
        if i+NF-1<40: fr(i+NF-1)
        if i<10: xdma(i)
        if i==10:
            xadv()
            A(f"""s_add_u32 {sSlot}, {sSlot}, 40960
s_cmp_ge_u32 {sSlot}, {NS*40960}
s_cselect_b32 {sT[4]}, {NS*40960}, 0
s_sub_u32 {sSlot}, {sSlot}, {sT[4]}""")
        if i==30:
            A(f"s_waitcnt vmcnt(10)\nv_mov_b32 v6, {sS}\ns_mov_b64 exec, 1")
            vm.issue(f"buffer_store_dword v6, v{vL16}, {WS}, {sFlag} offen sc1")
            A("s_mov_b64 exec, -1")
    cvt=lambda d,a,b: A(f"v_cvt_pk_bf16_f32 v{d}, v{a}, v{b}")
    O=56
    if kind in "KQ":
        for i in range(8): cvt(O+i,ACC+2*i,ACC+2*i+1)
    elif kind=="V":
        for i in range(2):
            cvt(O+4*i,ACC+4*i,ACC+4*i+1); cvt(O+4*i+1,ACC+4*i+2,ACC+4*i+3)
            cvt(O+4*i+2,ACC+8+4*i,ACC+9+4*i); cvt(O+4*i+3,ACC+10+4*i,ACC+11+4*i)
    else:
        for i in range(8): A(f"v_mul_f32 v{O+i}, {hex(f2u(-LOG2E))}, v{ACC+i}")
        for i in range(8): A(f"v_exp_f32 v{O+i}, v{O+i}")
        for i in range(8): A(f"v_add_f32 v{O+i}, 1.0, v{O+i}")
        for i in range(8): A(f"v_rcp_f32 v{O+i}, v{O+i}")
        for i in range(8): A(f"v_mul_f32 v{ACC+i}, v{ACC+i}, v{ACC+8+i}")
        for i in range(8): A(f"v_mul_f32 v{ACC+i}, v{ACC+i}, v{O+i}")
        for i in range(4): cvt(O+i,ACC+2*i,ACC+2*i+1)
    if kind=="Q":
        q_attention(A,vm,lg,sS,vST,O,sFlag)
        nst=2
    else:
        nst=1 if kind=="F" else 2
        for i in range(nst): vm.issue(f"buffer_store_dwordx4 {vr(O+4*i,4)}, v{vST}, {WS}, {sOut} offen offset:{512*i} sc1")
        A(f"s_add_u32 {sOut}, {sOut}, {110592 if kind=='F' else 8192}")
    if opt.get('prof'):
        for kk,sv in ((3,0),(4,3),(5,15),(6,31),(7,47),(8,63)):
            L=A.label("L_sk"); A(f"s_cmp_lg_u32 {sS}, {sv}\ns_cbranch_scc1 {L}"); rstamp(A,opt,kk); A(f"{L}:")
    A(f"""s_add_u32 {sS}, {sS}, 1
s_cmp_lt_u32 {sS}, 64
s_waitcnt vmcnt({(11 if NS==3 else 0)+nst})
s_cbranch_scc1 L_{tag}_loop
s_waitcnt vmcnt(0)
v_mov_b32 v6, 64
s_mov_b64 exec, 1
buffer_store_dword v6, v{vL16}, {WS}, {sFlag} offen sc1
s_waitcnt vmcnt(0)
s_endpgm""")

def role_kv(A,opt):
    NS=3
    vL16,vTR,vSK,vSV,vFA=1,2,3,4,7
    AK,AV=16,32; FB=48; NF=6; O=72
    sL,sS,sXN,sSlot,sOK,sFlag,sDst,sOV=[f"s{i}" for i in range(32,40)]
    vm=Cnt(A,"vmcnt",63); lg=Cnt(A,"lgkmcnt",15)
    srd(A,S_T,P_WK,5242880); srd(A,20,P_WV,5242880)
    A(f"""
v_and_b32 v10, 63, v0
v_lshlrev_b32 v{vL16}, 4, v10
v_lshrrev_b32 v11, 4, v10
v_lshlrev_b32 v12, 2, v11
v_sub_u32 v12, v10, v12
v_and_b32 v12, 15, v12
s_lshl_b32 {sT[0]}, {sW}, 2
v_add_u32 v11, {sT[0]}, v11
s_lshl_b32 {sL}, {sW}, 10
v_lshlrev_b32 v11, 13, v11
v_lshl_add_u32 v13, v12, 4, v11
s_lshl_b32 {sT[0]}, {sI}, 8""")
    toks={}
    def wdma(n):
        c,k=divmod(n,8); m,i=c&1,(c>>1)*8+k
        A(f"s_add_u32 m0, {sL}, {(n%40)*4096}\ns_add_u32 {sT[1]}, {sT[0]}, {i*16*8192}")
        toks[n]=vm.issue(f"buffer_load_dwordx4 v13, {'s[20:23]' if m else TS}, {sT[1]} offen lds")
    def wreg(m,i,u):
        r=160*m+4*i+2*u
        return ar(r,2) if r<256 else vr(192+r-256,2)
    for n in range(40): wdma(n)
    A(f"""v_bfe_u32 v11, v10, 2, 2
v_bfe_u32 v12, v10, 4, 1
v_lshlrev_b32 v12, 1, v12
v_lshl_add_u32 v12, v11, 2, v12
v_bfe_u32 v14, v10, 1, 1
v_add_u32 v12, v12, v14
s_lshl_b32 {sT[2]}, {sW}, 2
v_add_u32 v12, {sT[2]}, v12
v_and_b32 v12, 15, v12
v_lshlrev_b32 v12, 4, v12
v_lshl_add_u32 v12, v11, 8, v12
v_lshrrev_b32 v11, 5, v10
v_lshl_add_u32 v12, v11, 11, v12
v_and_b32 v11, 1, v10
v_lshl_add_u32 v{vTR}, v11, 3, v12
v_add_u32 v15, 65536, v{vTR}
v_add_u32 v14, 131072, v{vTR}
v_bfe_u32 v11, v10, 4, 1
v_lshrrev_b32 v12, 5, v10
v_lshlrev_b32 v12, 8, v12
v_and_b32 v5, 15, v10
v_lshl_add_u32 v12, v5, 4, v12
v_lshl_add_u32 v{vSK}, v11, 12, v12
v_lshl_add_u32 v{vSV}, v11, 10, v12
v_lshlrev_b32 v{vFA}, 12, v10
s_lshl_b32 {sOK}, {sI}, 19
s_lshl_b32 {sT[2]}, {sW}, 10
s_add_u32 {sOV}, {sOK}, {sT[2]}
s_add_u32 {sOK}, {sOV}, {KXF}
s_add_u32 {sOV}, {sOV}, {sT[2]}
s_add_u32 {sOV}, {sOV}, {VXF}
s_lshl_b32 {sFlag}, {sI}, 7
s_lshl_b32 {sT[2]}, {sW}, 2
s_add_u32 {sFlag}, {sFlag}, {sT[2]}
s_add_u32 {sFlag}, {sFlag}, {F_KP}""")
    for c in range(10):
        vm.wait(toks[8*c+7]); A("s_barrier")
        if c>=1 and c+4<10:
            for n in range(8*(c+4),8*(c+5)): wdma(n)
        for k in range(8):
            n=8*c+k; m,i=c&1,(c>>1)*8+k; sl=n%40
            for u in range(2): lg.issue(f"ds_read_b64_tr_b16 {wreg(m,i,u)}, v{(vTR,15,14)[sl//16]} offset:{(sl%16)*4096+u*1024}")
        lg.waitall()
    rstamp(A,opt,1)
    A(f"v_mov_b32 v5, {D_C1}")
    wg_wait(A,"v5","v6",NAUX,DB,0x210,sleep=12)
    rstamp(A,opt,2)
    A(f"""
s_mul_i32 {sXN}, {sW}, 10240
s_add_u32 {sXN}, {sXN}, {XNF}
s_mul_i32 {sDst}, {sW}, 10240
s_mov_b32 {sSlot}, 0
s_mov_b32 {sS}, 0
""")
    def xdma(k):
        so=f"{sT[3]}"
        if k%4==0: A(f"s_add_u32 m0, {sDst}, {k*1024}\ns_add_u32 {so}, {sXN}, {k*1024}")
        vm.issue(f"buffer_load_dwordx4 v{vL16}, {WS}, {so} offen offset:{(k%4)*1024} lds")
    def xadv():
        A(f"""s_add_u32 {sXN}, {sXN}, 40960
s_add_u32 {sDst}, {sDst}, 40960
s_cmp_ge_u32 {sDst}, {NS*40960}
s_cselect_b32 {sT[4]}, {NS*40960}, 0
s_sub_u32 {sDst}, {sDst}, {sT[4]}""")
    for n in range(NS-1):
        for k in range(10): xdma(k)
        xadv()
    A(f"s_waitcnt vmcnt({10*(NS-2)})")
    A("L_KV_loop:")
    vm=Cnt(A,"vmcnt",63); lg=Cnt(A,"lgkmcnt",15)
    A(f"s_barrier\nv_add_u32 v5, {sSlot}, v{vL16}")
    ft={}
    def fr(i): ft[i]=lg.issue(f"ds_read_b128 {vr(FB+4*(i%NF),4)}, v5 offset:{i*1024}")
    def w4(m,i):
        r=160*m+4*i
        return ar(r,4) if r<256 else vr(192+r-256,4)
    for i in range(NF-1): fr(i)
    for i in range(40):
        lg.wait(ft[i])
        x=vr(FB+4*(i%NF),4)
        A(f"v_mfma_f32_32x32x16_bf16 {vr(AK,16)}, {w4(0,i)}, {x}, {'0' if i==0 else vr(AK,16)}")
        if i+NF-1<40: fr(i+NF-1)
        A(f"v_mfma_f32_32x32x16_bf16 {vr(AV,16)}, {x}, {w4(1,i)}, {'0' if i==0 else vr(AV,16)}")
        if i<10: xdma(i)
        if i==10:
            xadv()
            A(f"""s_add_u32 {sSlot}, {sSlot}, 40960
s_cmp_ge_u32 {sSlot}, {NS*40960}
s_cselect_b32 {sT[4]}, {NS*40960}, 0
s_sub_u32 {sSlot}, {sSlot}, {sT[4]}""")
        if i==14:
            A(f"s_waitcnt vmcnt(10)\nv_mov_b32 v6, {sS}\ns_mov_b64 exec, 3")
            vm.issue(f"buffer_store_dword v6, v{vFA}, {WS}, {sFlag} offen sc1")
            A("s_mov_b64 exec, -1")
    cvt=lambda d,a,b: A(f"v_cvt_pk_bf16_f32 v{d}, v{a}, v{b}")
    for i in range(8): cvt(O+i,AK+2*i,AK+2*i+1)
    for i in range(2): vm.issue(f"buffer_store_dwordx4 {vr(O+4*i,4)}, v{vSK}, {WS}, {sOK} offen offset:{512*i} sc1")
    for i in range(2):
        cvt(O+8+4*i,AV+4*i,AV+4*i+1); cvt(O+8+4*i+1,AV+4*i+2,AV+4*i+3)
        cvt(O+8+4*i+2,AV+8+4*i,AV+9+4*i); cvt(O+8+4*i+3,AV+10+4*i,AV+11+4*i)
    for i in range(2): vm.issue(f"buffer_store_dwordx4 {vr(O+8+4*i,4)}, v{vSV}, {WS}, {sOV} offen offset:{512*i} sc1")
    A(f"s_add_u32 {sOK}, {sOK}, 8192\ns_add_u32 {sOV}, {sOV}, 8192")
    if opt.get('prof'):
        for kk,sv in ((3,0),(4,3),(5,15),(6,31),(7,47),(8,63)):
            L=A.label("L_sk"); A(f"s_cmp_lg_u32 {sS}, {sv}\ns_cbranch_scc1 {L}"); rstamp(A,opt,kk); A(f"{L}:")
    A(f"""s_add_u32 {sS}, {sS}, 1
s_cmp_lt_u32 {sS}, 64
s_waitcnt vmcnt(15)
s_cbranch_scc1 L_KV_loop
s_waitcnt vmcnt(0)
v_mov_b32 v6, 64
s_mov_b64 exec, 3
buffer_store_dword v6, v{vFA}, {WS}, {sFlag} offen sc1
s_waitcnt vmcnt(0)
s_endpgm""")

QF,QKX,QVX,QKM,QVM = 81920, 90112, 98304, 106496, 108544
qKV,qKMF,qZR0,qZR1,qL8,qOA,qQB,qVB = 7,8,9,64,65,66,67,68
MASK=72; qONES=80; qHALF=84
sKX,sVX,sKM,sVM,sO=[f"s{i}" for i in range(40,45)]
def q_setup(A):
    NEG=hex(f2u(-1e9*128**0.5))
    A(f"""
v_and_b32 v11, 4, v10
v_lshlrev_b32 v11, 10, v11
v_and_b32 v12, 3, v10
v_lshl_add_u32 v11, v12, 2, v11
s_lshl_b32 {sT[0]}, {sI}, 7
s_add_u32 {sT[0]}, {sT[0]}, {F_KP}
v_add_u32 v{qKV}, {sT[0]}, v11
v_and_b32 v11, 4, v10
v_lshlrev_b32 v11, 5, v11
v_lshl_add_u32 v11, v12, 2, v11
s_lshl_b32 {sT[0]}, {sI}, 8
s_add_u32 {sT[0]}, {sT[0]}, {F_KM}
v_add_u32 v{qKMF}, {sT[0]}, v11
v_lshlrev_b32 v{qL8}, 3, v10
v_lshrrev_b32 v11, 4, v10
v_and_b32 v12, 1, v11
v_lshrrev_b32 v11, 1, v11
v_bfe_u32 v13, v10, 2, 2
v_and_b32 v14, 1, v10
v_and_b32 v15, 1, v13
v_lshl_add_u32 v15, v15, 1, v14
v_lshrrev_b32 v13, 1, v13
v_lshl_add_u32 v13, v12, 1, v13
v_lshlrev_b32 v13, 3, v13
v_add_u32 v13, {QKM}, v13
""")
    for u,dst in ((0,qZR0),(1,qZR1)):
        A(f"""v_lshl_add_u32 v14, v11, 1, {u}
v_xor_b32 v5, v15, v14
v_lshlrev_b32 v5, 5, v5
v_lshl_add_u32 v5, v14, 7, v5
v_add_u32 v{dst}, v5, v13""")
    A(f"""
v_lshl_add_u32 v5, v11, 1, v12
v_lshrrev_b32 v13, 1, v5
v_lshlrev_b32 v13, 10, v13
v_and_b32 v14, 1, v5
v_lshl_add_u32 v13, v14, 9, v13
v_and_b32 v14, 15, v10
v_lshl_add_u32 v13, v14, 4, v13
s_lshr_b32 {sT[0]}, {sW}, 1
s_lshl_b32 {sT[1]}, {sT[0]}, 12
s_and_b32 {sT[2]}, {sW}, 1
s_lshl_b32 {sT[3]}, {sT[2]}, 8
s_add_u32 {sT[1]}, {sT[1]}, {sT[3]}
v_add_u32 v{qOA}, {sT[1]}, v13
s_lshl_b32 {sT[3]}, {sT[2]}, 12
s_add_u32 {sT[3]}, {sT[3]}, {QF}
v_lshlrev_b32 v13, 4, v10
v_add_u32 v{qQB}, {sT[3]}, v13
s_lshl_b32 {sT[3]}, {sT[0]}, 12
s_add_u32 {sT[3]}, {sT[3]}, {QVX}
v_add_u32 v{qVB}, {sT[3]}, v13
s_lshl_b32 {sT[3]}, {sT[0]}, 11
s_add_u32 {sT[3]}, {sT[3]}, {QVM}
v_add_u32 v{qL8}, {sT[3]}, v{qL8}
s_lshl_b32 {sT[2]}, {sT[2]}, 4
v_add_u32 v14, {sT[2]}, v14
v_lshlrev_b32 v5, 2, v5
v_sub_u32 v14, v14, v5
v_mov_b32 v13, {NEG}
""")
    for t in range(2):
        for r in range(4):
            A(f"v_cmp_gt_i32 vcc, {16*t+r}, v14\nv_cndmask_b32 v{MASK+4*t+r}, 0, v13, vcc")
    for i in range(4): A(f"v_mov_b32 v{qONES+i}, 0x3f803f80")
    for i in range(2): A(f"v_mov_b32 v{qHALF+i}, 0x3f003f00")
    A(f"""s_mov_b32 s60, {hex(f2u(SCALE_LOG2E))}
s_mov_b32 s61, {hex(f2u(SCALE_LOG2E))}
s_lshl_b32 {sT[0]}, {sI}, 19
s_lshl_b32 {sT[1]}, {sW}, 11
s_add_u32 {sT[0]}, {sT[0]}, {sT[1]}
s_add_u32 {sKX}, {sT[0]}, {KXF}
s_add_u32 {sVX}, {sT[0]}, {VXF}
s_lshl_b32 {sT[0]}, {sI}, 17
s_lshl_b32 {sT[1]}, {sW}, 9
s_add_u32 {sKM}, {sT[0]}, {sT[1]}
s_add_u32 {sKM}, {sKM}, {KMF}
s_lshl_b32 {sT[0]}, {sI}, 18
s_lshl_b32 {sT[1]}, {sW}, 10
s_add_u32 {sVM}, {sT[0]}, {sT[1]}
s_add_u32 {sVM}, {sVM}, {VMF}
s_lshl_b32 {sO}, {sI}, 13
s_add_u32 {sO}, {sO}, {OF}
s_lshl_b32 {sT[0]}, {sW}, 10
s_add_u32 s45, {sT[0]}, {QF}
v_add_u32 v69, s45, v3
""")
def q_prefetch(A,vm,sS):
    A(f"s_add_u32 s46, {sS}, 1")
    poll_ge(A,f"v{qKV}","v6","s46",WS,0x220,sleep=4)
    A(f"s_lshl_b32 {sT[0]}, {sW}, 11\ns_add_u32 m0, {sT[0]}, {QKX}\ns_nop 0")
    for k in range(2): vm.issue(f"buffer_load_dwordx4 v1, {WS}, {sKX} offen offset:{1024*k} lds")
    A(f"s_add_u32 m0, {sT[0]}, {QVX}\ns_add_u32 {sKX}, {sKX}, 8192")
    for k in range(2): vm.issue(f"buffer_load_dwordx4 v1, {WS}, {sVX} offen offset:{1024*k} lds")
    A(f"s_add_u32 {sVX}, {sVX}, 8192")
def q_attention(A,vm,lg,sS,vST,O,sFlag):
    for a in range(2): lg.issue(f"ds_write_b128 v69, {vr(O+4*a,4)} offset:{512*a}")
    poll_ge(A,f"v{qKMF}","v6","s46",WS,0x221,sleep=2)
    A(f"""s_lshl_b32 {sT[0]}, {sW}, 9
s_add_u32 m0, {sT[0]}, {QKM}
s_mov_b32 exec_hi, 0
buffer_load_dwordx4 v1, {WS}, {sKM} offen lds
s_mov_b32 exec_hi, -1
s_lshl_b32 {sT[0]}, {sW}, 10
s_add_u32 m0, {sT[0]}, {QVM}
s_add_u32 {sKM}, {sKM}, 2048
buffer_load_dwordx4 v1, {WS}, {sVM} offen lds
s_add_u32 {sVM}, {sVM}, 4096
s_waitcnt vmcnt(0) lgkmcnt(0)
s_barrier""")
    lg=Cnt(A,"lgkmcnt",15)
    QB,KXr,KMr,VX,VM=88,104,136,152,168
    SX0,SX1,SM,LT,OA=16,20,24,28,176
    tk={}
    A(f"v_add_u32 v5, {QKX}, v1")
    for j in range(4):
        lg.issue(f"ds_read_b128 {vr(QB+4*j,4)}, v{qQB} offset:{1024*j}")
        lg.issue(f"ds_read_b128 {vr(KXr+4*j,4)}, v5 offset:{1024*j}")
        lg.issue(f"ds_read_b128 {vr(KXr+16+4*j,4)}, v5 offset:{4096+1024*j}")
        lg.issue(f"ds_read_b64_tr_b16 {vr(KMr+4*j,2)}, v{qZR0} offset:{512*j}")
        tk[j]=lg.issue(f"ds_read_b64_tr_b16 {vr(KMr+4*j+2,2)}, v{qZR1} offset:{512*j}")
        if j==1: lg.wait(tk[0])
    mm=lambda d,a,b,c: A(f"v_mfma_f32_16x16x32_bf16 {vr(d,4)}, {vr(a,4)}, {vr(b,4)}, {c}")
    for j in range(4):
        lg.wait(tk[j])
        mm(SX0,KXr+4*j,QB+4*j,vr(MASK,4) if j==0 else vr(SX0,4))
        mm(SX1,KXr+16+4*j,QB+4*j,vr(MASK+4,4) if j==0 else vr(SX1,4))
        mm(SM,KMr+4*j,QB+4*j,"0" if j==0 else vr(SM,4))
    for T in range(4): lg.issue(f"ds_read_b128 {vr(VX+4*T,4)}, v{qVB} offset:{1024*T}")
    for T in range(4): tv=lg.issue(f"ds_read_b64 {vr(VM+2*T,2)}, v{qL8} offset:{512*T}")
    m,t,mc=32,33,34
    A(f"""
v_max3_f32 v{m}, v{SX0}, v{SX0+1}, v{SX0+2}
v_max3_f32 v{t}, v{SX1}, v{SX1+1}, v{SX1+2}
v_max3_f32 v{m}, v{m}, v{SX0+3}, v{SX1+3}
v_max3_f32 v{t}, v{t}, v{SM}, v{SM+1}
v_max3_f32 v{m}, v{m}, v{SM+2}, v{SM+3}
v_max_f32 v{mc}, v{m}, v{t}
v_max_f32 v{m}, v{m}, v{t}
v_permlane32_swap_b32 v{m}, v{mc}
v_max_f32 v{t}, v{m}, v{mc}
v_max_f32 v{m}, v{m}, v{mc}
v_permlane16_swap_b32 v{m}, v{t}
v_max_f32 v{m}, v{m}, v{t}
v_mul_f32 v{mc}, {hex(f2u(-SCALE_LOG2E))}, v{m}
""")
    for r in range(SX0,SX0+12,2): A(f"v_pk_fma_f32 {vr(r,2)}, {vr(r,2)}, s[60:61], {vr(mc,2)} op_sel_hi:[1,0,0]")
    for r in range(SX0,SX0+12): A(f"v_exp_f32 v{r}, v{r}")
    PX,PM=36,40
    for i in range(6): A(f"v_cvt_pk_bf16_f32 v{PX+i}, v{SX0+2*i}, v{SX0+2*i+1}")
    lg.wait(tv)
    mm(LT,qONES,PX,"0")
    for T in range(4): mm(OA+4*T,VX+4*T,PX,"0")
    mm16=lambda d,a,b: A(f"v_mfma_f32_16x16x16_bf16 {vr(d,4)}, {vr(a,2)}, {vr(b,2)}, {vr(d,4)}")
    mm16(LT,qHALF,PM)
    for T in range(4): mm16(OA+4*T,VM+2*T,PM)
    A(f"v_rcp_f32 v42, v{LT}")
    for r in range(OA,OA+16,2): A(f"v_pk_mul_f32 {vr(r,2)}, {vr(r,2)}, v[42:43] op_sel_hi:[1,0]")
    for i in range(8): A(f"v_cvt_pk_bf16_f32 v{OA+i}, v{OA+2*i}, v{OA+2*i+1}")
    for pp in range(2): vm.issue(f"buffer_store_dwordx4 {vr(OA+4*pp,4)}, v{qOA}, {WS}, {sO} offen offset:{2048*pp} sc1")
    A(f"s_add_u32 {sO}, {sO}, {32*8192}")

def role_final(A,opt):
    sCG,sSet="s17","s18"
    vL16,vTR,vFO,vFH,vRW,vRR,vXO,vRB=1,2,3,4,5,6,7,8
    ACC=16; FB=32; NF=4; HB=128; RED=131072; NSL=32
    sL,sS,sO,sH,sX=[f"s{i}" for i in range(32,37)]
    vm=Cnt(A,"vmcnt",63); lg=Cnt(A,"lgkmcnt",15)
    A(f"""
v_and_b32 v10, 63, v0
v_lshlrev_b32 v{vL16}, 4, v10
s_mul_i32 {sL}, {sW}, 40960
""")
    ustep=tr_base(A,f"v{vTR}","v10",1,sL)
    if opt.get('gateO',0):
        A(f"v_mov_b32 v5, {D_C1}")
        wg_wait(A,"v5","v6",NAUX,DB,0x232,sleep=16)
        A(f"s_lshl_b32 {sT[0]}, {sCG}, 8\ns_add_u32 {sT[0]}, {sT[0]}, {F_KM}\nv_mov_b32 v5, {sT[0]}")
        wg_wait(A,"v5","v6",1,WS,0x233,sleep=32)
    srd(A,S_T,P_WO,5242880); srd(A,20,P_WD,1728*1280)
    A(f"""
v_lshrrev_b32 v11, 2, v10
v_and_b32 v12, 3, v10
v_mul_u32_u24 v14, 1280, v11
v_lshl_add_u32 v14, v12, 4, v14
v_lshrrev_b32 v13, 3, v11
v_lshlrev_b32 v13, 4, v13
v_and_b32 v11, 7, v11
v_add_u32 v13, v13, v11
v_mul_u32_u24 v13, 1280, v13
v_lshl_add_u32 v13, v12, 4, v13
s_lshl_b32 {sT[0]}, {sCG}, 6
s_mul_i32 {sT[1]}, {sW}, {1024*1280}
s_add_u32 {sT[1]}, {sT[1]}, {sT[0]}
s_mul_i32 {sT[2]}, {sW}, {27*16*1280}
s_add_u32 {sT[2]}, {sT[2]}, {sT[0]}
""")
    NST=40
    def wdst(n,u): return ar(4*n+2*u,2) if n<64 else vr(HB+4*(n-64)+2*u,2)
    toks={}
    def wdma(n):
        A(f"s_add_u32 m0, {sL}, {(n%NST)*1024}")
        if n<64:
            hh,i=divmod(n,8)
            A(f"s_add_u32 {sT[3]}, {sT[1]}, {(hh*128+32*(i>>1)+8*(i&1))*1280}")
            toks[n]=vm.issue(f"buffer_load_dwordx4 v13, {TS}, {sT[3]} offen lds")
        else:
            A(f"s_add_u32 {sT[3]}, {sT[2]}, {(n-64)*16*1280}")
            toks[n]=vm.issue(f"buffer_load_dwordx4 v14, s[20:23], {sT[3]} offen lds")
    for n in range(NST): wdma(n)
    pend=None
    for n in range(91):
        vm.wait(toks[n])
        for u in range(2): tk=lg.issue(f"ds_read_b64_tr_b16 {wdst(n,u)}, v{vTR} offset:{(n%NST)*1024+u*ustep}")
        if pend is not None and pend[0]+NST<91:
            lg.wait(pend[1]); wdma(pend[0]+NST)
        pend=(n,tk)
    rstamp(A,opt,1)
    srd(A,S_T,P_X,2048*1280); srd(A,20,P_OUT,2048*1280)
    A(f"""
s_waitcnt lgkmcnt(0)
s_barrier
v_and_b32 v11, 31, v10
v_lshrrev_b32 v12, 2, v11
v_and_b32 v11, 3, v11
v_lshlrev_b32 v11, 2, v11
v_lshl_add_u32 v11, v12, 7, v11
s_lshl_b32 {sT[0]}, {sW}, 10
s_add_u32 {sT[0]}, {sT[0]}, {F_OP}
v_add_u32 v{vFO}, {sT[0]}, v11
v_min_u32 v11, 26, v10
s_mul_i32 {sT[0]}, {sW}, 27
v_add_u32 v11, {sT[0]}, v11
v_lshrrev_b32 v12, 2, v11
v_and_b32 v11, 3, v11
v_lshlrev_b32 v11, 2, v11
v_lshl_add_u32 v11, v12, 7, v11
v_add_u32 v{vFH}, {F_HP}, v11
v_and_b32 v11, 31, v10
v_mul_u32_u24 v11, 144, v11
v_lshrrev_b32 v12, 5, v10
v_lshl_add_u32 v11, v12, 4, v11
s_mul_i32 {sT[0]}, {sW}, 4608
s_add_u32 {sT[0]}, {sT[0]}, {RED}
v_add_u32 v{vRW}, {sT[0]}, v11
v_lshrrev_b32 v11, 3, v0
v_and_b32 v12, 7, v0
v_mul_u32_u24 v13, 144, v11
v_lshl_add_u32 v13, v12, 4, v13
v_add_u32 v{vRR}, {RED}, v13
v_mul_u32_u24 v13, 1280, v11
v_lshl_add_u32 v13, v12, 3, v13
s_lshl_b32 {sT[0]}, {sCG}, 6
v_add_u32 v{vXO}, {sT[0]}, v13
s_lshl_b32 {sL}, {sW}, 15
v_add_u32 v{vRB}, {sL}, v{vL16}
s_mov_b32 {sS}, {sSet}
L_fin_loop:
s_mul_i32 {sX}, {sS}, {32*1280}
s_mul_i32 {sH}, {sS}, 110592
s_mul_i32 {sT[0]}, {sW}, {27*1024}
s_add_u32 {sH}, {sH}, {sT[0]}
s_add_u32 {sH}, {sH}, {HF}
s_lshl_b32 {sO}, {sS}, 18
s_lshl_b32 {sT[0]}, {sW}, 16
s_add_u32 {sO}, {sO}, {sT[0]}
s_add_u32 {sO}, {sO}, {OF}
s_add_u32 s46, {sS}, 1
""")
    vm=Cnt(A,"vmcnt",63); lg=Cnt(A,"lgkmcnt",15)
    poll_ge(A,f"v{vFH}","v9","s46",WS,0x230,sleep=8)
    A(f"buffer_load_dwordx2 v[12:13], v{vXO}, {TS}, {sX} offen")
    seq=[("H",k) for k in range(27)]+[("O",k) for k in range(64)]
    dt={}
    def fdma(n):
        kind,k=seq[n]
        A(f"s_add_u32 m0, {sL}, {(n%NSL)*1024}\ns_add_u32 {sT[0]}, {sH if kind=='H' else sO}, {k*1024}")
        dt[n]=vm.issue(f"buffer_load_dwordx4 v{vL16}, {WS}, {sT[0]} offen lds")
    ft={}
    def fr(n):
        vm.wait(dt[n])
        ft[n]=lg.issue(f"ds_read_b128 {vr(FB+4*(n%NF),4)}, v{vRB} offset:{(n%NSL)*1024}")
    def mf(n):
        kind,k=seq[n]
        lg.wait(ft[n])
        w=vr(HB+4*k,4) if kind=="H" else ar(4*k,4)
        A(f"v_mfma_f32_32x32x16_bf16 {vr(ACC,16)}, {w}, {vr(FB+4*(n%NF),4)}, {'0' if n==0 else vr(ACC,16)}")
    for n in range(27): fdma(n)
    for n in range(27+NF-1):
        if n<27: fr(n)
        if n>=NF-1: mf(n-(NF-1))
    poll_ge(A,f"v{vFO}","v9","s46",WS,0x231,sleep=2)
    if opt.get('prof'):
        L=A.label("L_sk"); A(f"s_cmp_lt_u32 {sS}, 61\ns_cbranch_scc1 {L}"); rstamp(A,opt,11); A(f"{L}:")
    vm=Cnt(A,"vmcnt",63)
    for n in range(27,27+NSL): fdma(n)
    for n in range(27,91+NF-1):
        if n<91: fr(n)
        if n>=27+NF-1:
            mf(n-(NF-1))
            if n-(NF-1)+NSL<91: fdma(n-(NF-1)+NSL)
    A("s_barrier")
    for a in range(4): A(f"ds_write_b128 v{vRW}, {vr(ACC+4*a,4)} offset:{32*a}")
    A("s_waitcnt lgkmcnt(0)\ns_barrier")
    for w in range(4): A(f"ds_read_b128 {vr(FB+4*w,4)}, v{vRR} offset:{4608*w}")
    A(f"""
v_lshlrev_b32 v48, 16, v12
v_and_b32 v49, 0xffff0000, v12
v_lshlrev_b32 v50, 16, v13
v_and_b32 v51, 0xffff0000, v13
s_waitcnt lgkmcnt(2)
v_pk_add_f32 v[32:33], v[32:33], v[36:37]
v_pk_add_f32 v[34:35], v[34:35], v[38:39]
s_waitcnt lgkmcnt(0)
v_pk_add_f32 v[40:41], v[40:41], v[44:45]
v_pk_add_f32 v[42:43], v[42:43], v[46:47]
v_pk_add_f32 v[32:33], v[32:33], v[40:41]
v_pk_add_f32 v[34:35], v[34:35], v[42:43]
v_pk_add_f32 v[32:33], v[32:33], v[48:49]
v_pk_add_f32 v[34:35], v[34:35], v[50:51]
v_cvt_pk_bf16_f32 v32, v32, v33
v_cvt_pk_bf16_f32 v33, v34, v35
buffer_store_dwordx2 v[32:33], v{vXO}, s[20:23], {sX} offen""")
    if opt.get('prof'):
        for kk,lo,hi in ((3,0,3),(4,3,6),(5,15,18),(6,30,33),(7,45,48),(8,61,64)):
            L=A.label("L_sk"); A(f"s_sub_u32 s47, {sS}, {lo}\ns_cmp_ge_u32 s47, 3\ns_cbranch_scc1 {L}"); rstamp(A,opt,kk); A(f"{L}:")
    A(f"""s_add_u32 {sS}, {sS}, 3
s_cmp_lt_u32 {sS}, 64
s_cbranch_scc1 L_fin_loop
s_waitcnt vmcnt(0)
s_endpgm""")
```

```python
from common import *

MB, ZB, VB, KVB, KVX, WOB = 0, 10240, 14336, 40960, 0x1E000, 20480
vIDX,vL16,vL8,vMA16a,vMA8a,vMA16b,vMA8b,vZW,vZR0,vZR1,vVW,vP0,vP2,vFLG,vKV,vWO,vMW16,vMW8 = range(18)
SENT=108; S_MC=84; HALF=18; ACCQ=20; ACCK=24; ACCV=28; MF=[32,36,40]; ONES=44; KX=48; ZQ=80; ZK=96
sH,sC,sB="s17","s18","s19"
sS,sTask,sPGa,sPGb,sMa,sMb,sMc,sPubO,sMLO,sPstO,sRdO,sKX,sVX,sKM,sVM,sKMFL,sKVB = [f"s{i}" for i in range(32,49)]
sPGc="s49"; sBO="s56"; sMCl="s57"; sMC2="s58"; S_KM=8
sT=[f"s{i}" for i in range(50,60)]
sSC=60; sSpin="s62"
WORD=[(0,0),(1,0),(2,0),(0,1),(1,1),(3,0),(2,1),(3,1),(4,0),(4,1)]
OPS=[(m,t) for t in range(2,20) for m in "QK"]+[("V",t) for t in range(10)]+[("O",u) for u in range(6,10)]+[(m,t) for t in range(2) for m in "QK"]+[("O",u) for u in range(6)]
OPI={o:i for i,o in enumerate(OPS)}
def wreg(oi):
    return ar(8*oi,8) if oi<32 else vr(112+8*(oi-32),8)
def wreg_pair(oi,d):
    return ar(8*oi+d,2) if oi<32 else vr(112+8*(oi-32)+d,2)
def m_off(tt,u):
    w2,p=divmod(tt,5)
    if p<4: return 16, w2*2560+(p>>1)*1024+(p&1)*8+u*512
    return 8, w2*2560+2048+u*256

def lane_setup(A,SH=14,WOB=WOB):
    t=[108,109,110,111,100,101,102,103,104,105]
    l,n,g,x,sg,a,b,c,d,e=[f"v{i}" for i in t]
    A(f"""
v_and_b32 {l}, 63, v0
v_lshlrev_b32 v{vL16}, 4, {l}
v_lshlrev_b32 v{vL8}, 3, {l}
v_and_b32 {n}, 15, {l}
v_lshrrev_b32 {g}, 4, {l}
v_and_b32 {x}, 1, {g}
v_lshrrev_b32 {sg}, 1, {g}
v_mov_b32 {a}, 0x88888888
v_mov_b32 {b}, 0xdddddddd
v_cmp_gt_u32 vcc, 8, {n}
v_cndmask_b32 v{vIDX}, {b}, {a}, vcc
v_lshrrev_b32 {a}, 3, {n}
v_lshlrev_b32 {a}, 4, {a}
v_lshl_add_u32 {a}, {sg}, 5, {a}
v_lshl_add_u32 {a}, {x}, 3, {a}
v_and_b32 {b}, 7, {n}
v_add_u32 {a}, {a}, {b}
v_lshrrev_b32 {c}, 3, {a}
v_lshlrev_b32 {c}, {SH}, {c}
v_lshl_add_u32 v{vP0}, {b}, 4, {c}
v_lshrrev_b32 {c}, 4, {a}
v_lshlrev_b32 {c}, {SH}, {c}
v_and_b32 {d}, 15, {a}
v_lshl_add_u32 v{vP2}, {d}, 3, {c}
v_mov_b32 v106, {a}
v_lshrrev_b32 {a}, 2, {n}
v_lshl_add_u32 {b}, {sg}, 1, {x}
v_xor_b32 {b}, {b}, {a}
v_lshlrev_b32 {b}, 5, {b}
v_lshl_add_u32 {b}, {a}, 7, {b}
v_and_b32 {c}, 3, {n}
v_lshl_add_u32 {b}, {c}, 3, {b}
s_lshl_b32 {sT[0]}, {sW}, 10
s_add_u32 {sT[0]}, {sT[0]}, {ZB}
v_add_u32 v{vZW}, {sT[0]}, {b}
v_lshrrev_b32 {a}, 3, {n}
v_lshlrev_b32 {a}, 9, {a}
v_lshl_add_u32 {a}, {x}, 7, {a}
v_and_b32 {b}, 7, {n}
v_lshl_add_u32 {b}, {b}, 1, {sg}
v_lshl_add_u32 {a}, {b}, 3, {a}
s_lshr_b32 {sT[0]}, {sW}, 1
s_lshl_b32 {sT[0]}, {sT[0]}, 10
s_xor_b32 {sT[1]}, {sW}, {sC}
s_and_b32 {sT[1]}, {sT[1]}, 1
s_lshl_b32 {sT[2]}, {sT[1]}, 8
s_add_u32 {sT[0]}, {sT[0]}, {sT[2]}
s_add_u32 {sT[0]}, {sT[0]}, {VB}
v_add_u32 v{vVW}, {sT[0]}, {a}
v_lshrrev_b32 {a}, 2, {l}
v_and_b32 {a}, 3, {a}
v_and_b32 {b}, 1, {l}
; M: n' = 4g+r ; idx = (n'>>3)*16 + x*8 + (n'&7)
v_lshl_add_u32 {c}, {g}, 2, {a}
v_lshrrev_b32 {d}, 3, {c}
v_lshlrev_b32 {d}, 4, {d}
v_lshl_add_u32 {d}, {b}, 3, {d}
v_and_b32 {c}, 7, {c}
v_add_u32 {d}, {d}, {c}
s_mul_i32 {sT[2]}, {sT[1]}, 5120
s_sub_u32 {sT[3]}, {5120+MB}, {sT[2]}
s_add_u32 {sT[2]}, {sT[2]}, {MB}
v_lshl_add_u32 v{vMA16a}, {d}, 4, {sT[3]}
v_lshl_add_u32 v{vMA8a}, {d}, 3, {sT[3]}
v_lshl_add_u32 v{vMA16b}, {d}, 4, {sT[2]}
v_lshl_add_u32 v{vMA8b}, {d}, 3, {sT[2]}
v_and_b32 {c}, 1, {a}
v_lshl_add_u32 {c}, {c}, 1, {b}
v_lshrrev_b32 {d}, 1, {a}
v_lshl_add_u32 {d}, {x}, 1, {d}
v_lshlrev_b32 {d}, 3, {d}
v_add_u32 {d}, {ZB}, {d}
""")
    for u,dst in ((0,vZR0),(1,vZR1)):
        A(f"""
v_lshl_add_u32 {e}, {sg}, 1, {u}
v_xor_b32 {a}, {c}, {e}
v_lshlrev_b32 {a}, 5, {a}
v_lshl_add_u32 {a}, {e}, 7, {a}
v_add_u32 v{dst}, {a}, {d}
""")
    A(f"""
v_and_b32 {a}, 4, {l}
v_lshlrev_b32 {a}, 10, {a}
v_and_b32 {b}, 3, {l}
v_lshl_add_u32 {a}, {b}, 2, {a}
s_lshl_b32 {sT[0]}, {sH}, 7
s_add_u32 {sT[0]}, {sT[0]}, {F_KP}
v_add_u32 v{vFLG}, {sT[0]}, {a}
v_add_u32 v{vKV}, {KVB}, v{vL16}
s_mul_i32 {sT[0]}, {sW}, 40960
s_add_u32 {sT[0]}, {sT[0]}, {WOB}
v_add_u32 v{vWO}, {sT[0]}, v{vL16}
s_mul_i32 {sT[0]}, {sW}, 2560
s_add_u32 {sT[0]}, {sT[0]}, {MB}
v_add_u32 v{vMW16}, {sT[0]}, v{vL16}
s_add_u32 {sT[1]}, {sT[0]}, 2048
v_add_u32 v{vMW8}, {sT[1]}, v{vL8}
v_lshl_add_u32 v107, v106, 3, {sT[1]}
v_lshl_add_u32 v106, v106, 4, {sT[0]}
""")

def weights_prologue(A,WOFF=0):
    NSLOT=20
    vm=Cnt(A,"vmcnt",63); lg=Cnt(A,"lgkmcnt",15)
    l,a,b="v108","v109","v110"
    srd(A,S_T,P_MEM0,10240)
    A(f"""
v_and_b32 {a}, 15, {l}
v_lshlrev_b32 {a}, 2, {a}
v_lshrrev_b32 {b}, 4, {l}
v_and_b32 {b}, 1, {b}
v_mul_u32_u24 {b}, 5120, {b}
v_add_u32 {a}, {a}, {b}
s_mul_i32 {sT[0]}, {sW}, 320
""")
    for p in range(5):
        A(f"s_add_u32 {sT[1]}, {sT[0]}, {64*p}")
        for r in range(4):
            tk0=vm.issue(f"buffer_load_dword v{18+4*p+r}, {a}, s[{S_T}:{S_T+3}], {sT[1]} offen offset:{1280*r}")
    A(f"s_cmp_lt_u32 {sW}, 2\ns_cselect_b32 s24, s{P_WQ}, s{P_WK}\ns_cselect_b32 s25, s{P_WQ+1}, s{P_WK+1}")
    srd(A,20,24,5242880); srd(A,28,P_WV,5242880); srd(A,52,P_WO,5242880)
    sQK,sV,sO,sL,sX="s56","s57","s58","s59","s50"
    A(f"""
v_lshrrev_b32 {a}, 4, {l}
v_lshlrev_b32 {a}, 1, {a}
v_bfe_u32 {b}, {l}, 3, 1
v_lshl_add_u32 {a}, {b}, 3, {a}
v_bfe_u32 {b}, {l}, 2, 1
v_add_u32 {a}, {a}, {b}
v_lshlrev_b32 {a}, 13, {a}
v_and_b32 {b}, 3, {l}
v_lshl_add_u32 v104, {b}, 4, {a}
v_lshrrev_b32 {a}, 4, {l}
v_bfe_u32 v100, {l}, 3, 1
v_lshl_add_u32 {a}, v100, 2, {a}
v_bfe_u32 v100, {l}, 2, 1
v_lshl_add_u32 {a}, v100, 4, {a}
v_mul_u32_u24 {a}, 1280, {a}
v_lshl_add_u32 v105, {b}, 4, {a}
s_mul_i32 {sL}, {sW}, 40960
v_lshlrev_b32 {a}, 2, {l}
v_add_u32 v103, {sL}, {a}
v_lshrrev_b32 {a}, 5, {l}
v_lshlrev_b32 {a}, 1, {a}
v_bfe_u32 v100, {l}, 4, 1
v_lshl_add_u32 {a}, v100, 3, {a}
v_bfe_u32 v100, {l}, 3, 1
v_add_u32 {a}, {a}, v100
v_lshlrev_b32 {a}, 13, {a}
v_lshlrev_b32 v100, 2, v100
v_and_b32 {b}, 7, {l}
v_xor_b32 {b}, {b}, v100
v_lshl_add_u32 v102, {b}, 4, {a}
v_lshrrev_b32 {a}, 4, {l}
v_and_b32 {b}, 1, {a}
v_lshlrev_b32 {a}, 7, {a}
v_lshl_add_u32 {a}, {b}, 6, {a}
v_and_b32 {b}, 15, {l}
v_lshl_add_u32 {a}, {b}, 2, {a}
v_add_u32 v64, {sL}, {a}
v_xor_b32 v65, 64, v64
s_lshl_b32 {sQK}, {sH}, 8
s_and_b32 {sX}, {sW}, 1
s_lshl_b32 {sX}, {sX}, 7
s_add_u32 {sQK}, {sQK}, {sX}          ; h*256 + (w&1)*128
s_lshl_b32 {sV}, {sH}, 8
s_lshl_b32 {sX}, {sC}, 7
s_add_u32 {sV}, {sV}, {sX}
s_lshr_b32 {sX}, {sW}, 1
s_lshl_b32 {sX}, {sX}, 6
s_add_u32 {sV}, {sV}, {sX}            ; h*256 + c*128 + (w>>1)*64
s_xor_b32 {sX}, {sW}, {sC}
s_and_b32 {sX}, {sX}, 1
s_mul_i32 s51, {sX}, {320*8192}
s_add_u32 {sV}, {sV}, s51
s_add_u32 s49, {sQK}, s51
s_sub_u32 s51, {320*8192}, s51
s_add_u32 {sQK}, {sQK}, s51
s_lshl_b32 {sO}, {sH}, 7
s_lshl_b32 {sX}, {sC}, 6
s_add_u32 {sO}, {sO}, {sX}
s_mul_i32 {sO}, {sO}, 1280
s_mul_i32 {sX}, {sW}, 320
s_add_u32 {sO}, {sO}, {sX}            ; (h*128+64c)*1280 + 320w
""")
    ops=[]
    for m,t in OPS:
        if m in "QK": ops.append((20, sQK if t<10 else "s49",(t%10)*32*8192,None,"v102"))
        elif m=="V": ops.append((28,sV,t*32*8192,16*8192,"v104"))
        else:
            p,P=WORD[t]; ops.append((52,sO,32*P*1280+64*p,8*1280,"v105"))
    toks={}
    def dma(i):
        d,base,off,hstep,vv=ops[i]
        for hh in range(2):
            A(f"s_add_u32 m0, {sL}, {(i%NSLOT)*2048+hh*1024}")
            if hstep is None:
                k=2*(i&1)+hh
                A(f"s_add_u32 {sX}, {base}, {off+(16*(k>>1)+4*(k&1))*8192}")
            else: A(f"s_add_u32 {sX}, {base}, {off+hh*hstep}")
            toks[i]=vm.issue(f"buffer_load_dwordx4 {vv}, s[{d}:{d+3}], {sX} offen lds")
    for i in range(NSLOT): dma(i)
    vm.wait(tk0)
    A(f"""
v_mov_b32 v100, 0x05040100
v_mov_b32 v101, 0x07060302
v_cmp_gt_u32 vcc, 32, {l}
v_cndmask_b32 v111, v101, v100, vcc
""")
    for p in range(5):
        A(f"v_perm_b32 v{38+2*p}, v{19+4*p}, v{18+4*p}, v111")
        A(f"v_perm_b32 v{39+2*p}, v{21+4*p}, v{20+4*p}, v111")
    TMP=[48,56]
    units=[]; i=0
    while i<60:
        n=2 if OPS[i][0] in "QK" else 1
        units.append(list(range(i,i+n))); i+=n
    pend=None
    def finish(u,tj):
        lg.wait(tj)
        for j in u:
            if j+NSLOT<60: dma(j+NSLOT)
        for j in u:
            if j>=50:
                for hf in range(2): lg.issue(f"ds_write_b128 v{vWO}, {vr(TMP[j&1]+4*hf,4)} offset:{WOFF+(j-50)*2048+hf*1024}")
    for u in units:
        if u[0]>=50 and pend is not None: finish(*pend); pend=None
        vm.wait(toks[u[-1]])
        for j in u:
            for d in range(0,8,2):
                dst = wreg_pair(j,d) if j<50 else vr(TMP[j&1]+d,2)
                if len(u)==2:
                    o=(u[0]%NSLOT)*8+2*d
                    tk=lg.issue(f"ds_read2st64_b32 {dst}, v{64+(j&1)} offset0:{o} offset1:{o+2}")
                else:
                    tk=lg.issue(f"ds_read2st64_b32 {dst}, v103 offset0:{(j%NSLOT)*8+d} offset1:{(j%NSLOT)*8+d+1}")
        if pend is not None: finish(*pend)
        pend=(u,tk)
    finish(*pend)
    lg.waitall()
    A("s_barrier")
    for p in range(4): A(f"ds_write_b64 v106, {vr(38+2*p,2)} offset:{(p>>1)*1024+(p&1)*8}")
    A(f"ds_write_b64 v107, {vr(46,2)}")

def kv_dma(A,vm,nw):
    WS=f"s[{S_WS}:{S_WS+3}]"
    if nw==4:
        A(f"s_lshl_b32 {sT[0]}, {sW}, 11\ns_add_u32 m0, {sKVB}, {sT[0]}\ns_add_u32 {sT[1]}, {sKX}, {sT[0]}")
        vm.issue(f"buffer_load_dwordx4 v{vL16}, {WS}, {sT[1]} offen lds")
        vm.issue(f"buffer_load_dwordx4 v{vL16}, {WS}, {sT[1]} offen offset:1024 lds")
        A(f"s_lshr_b32 {sT[0]}, {sT[0]}, 1\ns_add_u32 {sT[1]}, {sVX}, {sT[0]}\ns_add_u32 {sT[0]}, {sT[0]}, 8192\ns_add_u32 m0, {sKVB}, {sT[0]}")
        t=vm.issue(f"buffer_load_dwordx4 v{vL16}, {WS}, {sT[1]} offen lds")
    else:
        A(f"s_and_b32 {sT[0]}, {sW}, 1\ns_lshl_b32 {sT[0]}, {sT[0]}, 12\ns_add_u32 m0, {sKVB}, {sT[0]}\ns_add_u32 {sT[1]}, {sKX}, {sT[0]}")
        for k in range(4): vm.issue(f"buffer_load_dwordx4 v{vL16}, {WS}, {sT[1]} offen offset:{1024*k} lds")
        A(f"s_lshr_b32 {sT[0]}, {sT[0]}, 1\ns_add_u32 {sT[1]}, {sVX}, {sT[0]}\ns_add_u32 {sT[0]}, {sT[0]}, 8192\ns_add_u32 m0, {sKVB}, {sT[0]}")
        for k in range(2): t=vm.issue(f"buffer_load_dwordx4 v{vL16}, {WS}, {sT[1]} offen offset:{1024*k} lds")
    return t
def kv_advance(A,three=False):
    A(f"s_add_u32 {sKX}, {sKX}, 8192\ns_add_u32 {sVX}, {sVX}, 8192")
    if three: A(f"s_mov_b32 {sKVR}, {sKVB}\ns_add_u32 {sKVB}, {sKVB}, 40960\ns_cmp_eq_u32 {sKVB}, 163840\ns_cselect_b32 {sKVB}, {KVB}, {sKVB}")
    else: A(f"s_xor_b32 {sKVB}, {sKVB}, {KVX}")

def wait_kv(A,needreg,vflag,code):
    L=A.label("L_kvw")
    A(f"s_mov_b32 {sSpin}, 0\n{L}:")
    A(f"buffer_load_dword v{vflag}, v{vFLG}, s[{S_WS}:{S_WS+3}], 0 offen sc1\ns_waitcnt vmcnt(0)")
    ok=A.label("L_kvok")
    A(f"v_cmp_gt_u32 vcc, {needreg}, v{vflag}\ns_cbranch_vccz {ok}")
    spin_tail(A,sSpin,L,code,sleep=2)
    A(f"{ok}:")

def pstamp(A,opt,reg):
    if opt.get('prof')==3: A(f"s_memrealtime s[98:99]\ns_waitcnt lgkmcnt(0)\ns_mov_b32 {reg}, s98")
def role_chain(A, opt):
    WS=f"s[{S_WS}:{S_WS+3}]"
    lane_setup(A)
    weights_prologue(A)
    pstamp(A,opt,"s3")
    A(f"""
v_mov_b32 v{HALF}, 0x3f003f00
v_mov_b32 v{HALF+1}, 0x3f003f00
v_mov_b32 v{ONES}, 0x3f803f80
v_mov_b32 v{ONES+1}, 0x3f803f80
v_mov_b32 v{ONES+2}, 0x3f803f80
v_mov_b32 v{ONES+3}, 0x3f803f80
s_mov_b32 s{sSC}, {hex(f2u(SCALE_LOG2E))}
s_mov_b32 s{sSC+1}, {hex(f2u(SCALE_LOG2E))}
v_and_b32 v48, 1, v108
v_mul_u32_u24 v49, {D_POL}, v48
v_mov_b32 v50, {NAUX}
v_mov_b32 v51, 0x80000000
v_cmp_eq_u32 vcc, 1, v48
v_cndmask_b32 v50, v50, v51, vcc
s_mov_b32 {sSpin}, 0
s_cmp_lg_u32 {sW}, 0
s_cbranch_scc1 L_cst_bar
L_cst:
buffer_load_dword v51, v49, s[{S_DB}:{S_DB+3}], 0 offen sc1
s_waitcnt vmcnt(0)
v_cmp_gt_u32 vcc, v50, v51
s_cbranch_vccz L_cst_ok
""")
    spin_tail(A,sSpin,"L_cst",0x101,sleep=8)
    A(f"""
L_cst_ok:
L_cst_bar:
s_barrier
buffer_load_dword v51, v49, s[{S_DB}:{S_DB+3}], 0 offen sc1
s_waitcnt vmcnt(0)""")
    pstamp(A,opt,"s63")
    A(f"""
v_readlane_b32 {sT[0]}, v51, 1
s_and_b32 {sT[1]}, {sT[0]}, 1
s_lshl_b32 {sPGa}, {sT[1]}, 13
s_lshr_b32 {sT[1]}, {sT[0]}, 1
s_and_b32 {sT[1]}, {sT[1]}, 1
s_lshl_b32 {sT[1]}, {sT[1]}, 13
s_add_u32 {sPGb}, {sT[1]}, {PAGE}
s_lshr_b32 {sT[1]}, {sT[0]}, 2
s_and_b32 {sT[1]}, {sT[1]}, 1
s_lshl_b32 {sT[1]}, {sT[1]}, 13
s_add_u32 {sPGc}, {sT[1]}, {2*PAGE}
s_add_u32 {sMa}, {sPGa}, {80*16384}
s_add_u32 {sMb}, {sPGa}, {82*16384}
s_add_u32 {sMc}, {sPGa}, {84*16384}
s_lshr_b32 {sT[0]}, {sB}, 4
s_mul_i32 {sT[0]}, {sT[0]}, 20
s_and_b32 {sT[1]}, {sB}, 15
s_add_u32 {sT[0]}, {sT[0]}, {sT[1]}
s_add_u32 {sT[0]}, {sT[0]}, 4
s_lshr_b32 {sT[1]}, {sB}, 2
s_mul_i32 {sT[1]}, {sT[1]}, 20
s_and_b32 {sT[2]}, {sB}, 3
s_add_u32 {sT[1]}, {sT[1]}, {sT[2]}
s_cmp_lt_u32 {sB}, 16
s_cselect_b32 {sT[1]}, {sT[1]}, -1
s_bitcmp1_b32 {sW}, 0
s_cselect_b32 {sTask}, {sT[1]}, {sT[0]}
s_max_i32 {sT[0]}, {sTask}, 0
s_lshl_b32 {sRdO}, {sT[0]}, 14
s_mul_i32 {sT[1]}, {sT[0]}, 3277
s_lshr_b32 {sT[1]}, {sT[1]}, 16          ; task / 20
s_mul_i32 {sT[2]}, {sT[1]}, 20
s_sub_u32 {sT[2]}, {sT[0]}, {sT[2]}
s_lshl_b32 {sPubO}, {sT[2]}, 7
s_lshr_b32 {sT[2]}, {sT[1]}, 1
s_lshl_b32 {sT[2]}, {sT[2]}, 14
s_add_u32 {sPubO}, {sPubO}, {sT[2]}
s_and_b32 {sT[2]}, {sT[1]}, 1
s_lshl_b32 {sT[2]}, {sT[2]}, 12
s_add_u32 {sPubO}, {sPubO}, {sT[2]}
s_lshr_b32 {sT[2]}, {sW}, 1
s_lshl_b32 {sMLO}, {sT[2]}, 14
s_and_b32 {sT[2]}, {sW}, 1
s_lshl_b32 {sT[2]}, {sT[2]}, 12
s_add_u32 {sMLO}, {sMLO}, {sT[2]}
s_mul_i32 {sPstO}, {sW}, {20*16384}
s_lshl_b32 {sT[2]}, {sB}, 7
s_add_u32 {sPstO}, {sPstO}, {sT[2]}
s_lshl_b32 {sT[0]}, {sH}, 19
s_add_u32 {sKX}, {sT[0]}, {KXF}
s_lshl_b32 {sT[1]}, {sC}, 12
s_add_u32 {sVX}, {sT[0]}, {sT[1]}
s_add_u32 {sVX}, {sVX}, {VXF}
s_lshl_b32 {sT[0]}, {sH}, 17
s_add_u32 {sKM}, {sT[0]}, {KMF-ZB-2048}
s_lshl_b32 {sT[0]}, {sH}, 18
s_lshl_b32 {sT[1]}, {sC}, 11
s_add_u32 {sVM}, {sT[0]}, {sT[1]}
s_add_u32 {sVM}, {sVM}, {VMF-VB}
s_lshl_b32 {sT[0]}, {sH}, 1
s_add_u32 {sT[0]}, {sT[0]}, {sC}
s_lshl_b32 {sT[0]}, {sT[0]}, 7
s_lshl_b32 {sT[1]}, {sW}, 2
s_add_u32 {sKMFL}, {sT[0]}, {sT[1]}
s_add_u32 {sKMFL}, {sKMFL}, {F_KM}
s_mov_b32 {sKVB}, {KVB}
s_mov_b32 {sS}, 0
s_and_b32 {sT[0]}, {sW}, 1
s_mul_i32 {sBO}, {sT[0]}, {40*16384}
s_lshl_b32 {sT[1]}, {sB}, 7
s_add_u32 {sBO}, {sBO}, {sT[1]}
s_mov_b32 s{S_KM}, s{S_WS}
s_mov_b32 s{S_KM+1}, s{S_WS+1}
s_cmp_eq_u32 {sC}, 0
s_cselect_b32 s{S_KM+2}, {hex(WS_SIZE)}, 0
s_cmp_ge_u32 {sW}, 2
s_cselect_b32 s{S_KM+2}, s{S_KM+2}, 0
s_mov_b32 s{S_KM+3}, 0x20000
""")
    vm=Cnt(A,"vmcnt",63)
    wait_kv(A,"1",98,0x102)
    pstamp(A,opt,"s59")
    kv_dma(A,vm,4); kv_advance(A)
    qk_preload(A,Cnt(A,"lgkmcnt",15))
    sent_setup(A,opt)
    A(f"s_add_u32 {sT[0]}, {sPGb}, {sPstO}\nbuffer_store_dword v{SENT}, v{SENT+1}, {WS}, {sT[0]} offen sc1")
    A(f"""s_mov_b32 s{S_MC}, s{S_WS}
s_mov_b32 s{S_MC+1}, s{S_WS+1}
s_cmp_lt_u32 {sW}, 2
s_cselect_b32 s{S_MC+2}, 0, {hex(WS_SIZE)}
s_cmp_lt_i32 {sTask}, 0
s_cselect_b32 s{S_MC+2}, 0, s{S_MC+2}
s_mov_b32 s{S_MC+3}, 0x20000""")
    for i in range(0,12,2): A(f"v_mov_b64 {vr(ACCQ+i,2)}, 0")
    A("s_waitcnt vmcnt(0) lgkmcnt(0)")
    if opt.get('prof'):
        A("s_memrealtime s[92:93]\ns_memtime s[28:29]\ns_waitcnt lgkmcnt(0)\ns_mov_b32 s30, s28\ns_mov_b32 s97, s28")
        for i in range(8): A(f"s_mov_b32 s{20+i}, 0")
        A("s_mov_b32 s94, 0\ns_mov_b32 s95, 0")
        if opt.get('prof')==2:
            for r in FACC: A(f"s_mov_b32 {r}, 0")
    step(A,opt)

def stamp(A,opt,i):
    if opt.get('prof')!=1: return
    A(f"""s_memtime s[28:29]
s_waitcnt lgkmcnt(0)
s_sub_u32 s31, s28, s30
s_add_u32 s{20+i}, s{20+i}, s31
s_mov_b32 s30, s28""")

def ts(A,opt,i):
    if opt.get('prof')==4: A(f"s_memrealtime s[{64+2*i}:{65+2*i}]")
def ts_flush(A,opt):
    if opt.get('prof')!=4: return
    A(f"""s_waitcnt lgkmcnt(0)
s_lshl_b32 s31, {sB}, 2
s_add_u32 s31, s31, {sW}
s_lshl_b32 s31, s31, 6
s_add_u32 s31, s31, {sS}
s_lshl_b32 s31, s31, 5
s_add_u32 s31, s31, {PROF+0x10000}
s_and_b32 s30, s94, 0xffff
s_lshl_b32 s29, s95, 16
s_or_b32 s30, s30, s29
v_mov_b32 v100, s64
v_mov_b32 v101, s66
v_mov_b32 v102, s68
v_mov_b32 v103, s70
v_mov_b32 v104, s72
v_mov_b32 v105, s74
v_mov_b32 v106, s76
v_mov_b32 v107, s30
s_mov_b64 exec, 1
buffer_store_dwordx4 v[100:103], v{vL16}, s[{S_WS}:{S_WS+3}], s31 offen
buffer_store_dwordx4 v[104:107], v{vL16}, s[{S_WS}:{S_WS+3}], s31 offen offset:16
s_mov_b64 exec, -1""")
FINE=[]
FACC=["s3","s20","s21","s22","s23","s24","s25","s26","s27","s59","s63","s98","s99"]
sKVB2="s[100:101]"; sKVR="s88"
CUTS=["start","qk","zbar","vpass","scores","max","expx","pv","a1","stores"]
def fs(A,opt,name):
    if opt.get('cut',-1)>=0 and CUTS[opt['cut']]==name:
        if CUTS.index(name)<CUTS.index("stores"): A(f"s_add_u32 {sS}, {sS}, 1")
        A(f"s_waitcnt vmcnt(20)\ns_cmp_ge_u32 {sS}, 63\ns_cbranch_scc1 L_chain_exit\ns_branch L_step")
    if opt.get('prof')!=2: return
    i=len(FINE); FINE.append(name)
    A(f"s_memtime s[{64+2*i}:{65+2*i}]")
    assert 65+2*i<84
def fs_collect(A,opt):
    if opt.get('prof')!=2: return
    A("s_waitcnt lgkmcnt(0)")
    for i in range(1,len(FINE)):
        A(f"s_sub_u32 s31, s{64+2*i}, s{62+2*i}\ns_add_u32 {FACC[i]}, {FACC[i]}, s31")
def sent_setup(A,opt):
    if True:
        A(f"""v_mov_b32 v{SENT}, -1
v_lshrrev_b32 v{SENT+1}, 5, v{vL16}
v_lshlrev_b32 v{SENT+1}, 14, v{SENT+1}
v_and_b32 v{SENT+2}, 16, v{vL16}
v_lshlrev_b32 v{SENT+2}, 2, v{SENT+2}
v_add_u32 v{SENT+1}, v{SENT+1}, v{SENT+2}
v_mov_b32 v{SENT+3}, 0x7ffffff0
v_cmp_gt_u32 vcc, {40*16}, v{vL16}
v_cndmask_b32 v{SENT+1}, v{SENT+3}, v{SENT+1}, vcc
v_cmp_gt_u32 vcc, 32, v{vL16}
v_cndmask_b32 v{SENT+2}, v{SENT+3}, v{SENT+2}, vcc""")
    else:
        A(f"v_mov_b64 {vr(SENT,2)}, -1\nv_mov_b64 {vr(SENT+2,2)}, -1")

def lds_op(A,lg,o,dst,hf):
    return lg.issue(f"ds_read_b128 {vr(dst+4*hf,4)}, v{vWO} offset:{(OPI[o]-50)*2048+hf*1024}")
def qk_preload(A,lg):
    for i,o in enumerate([("Q",0),("K",0),("Q",1),("K",1)]):
        for hf in range(2): lds_op(A,lg,o,KX+8*i,hf)

def step(A,opt):
    WS=f"s[{S_WS}:{S_WS+3}]"
    lg=Cnt(A,"lgkmcnt",15); vm=Cnt(A,"vmcnt",63)
    NOHK=opt.get('nohk',0)
    keep=[ZQ,ZK,ZQ+4,ZK+4,ZQ+8,ZK+8,ZQ+12,ZK+12]
    D=4
    def freg(tau): return keep[tau%5] if tau<10 else keep[tau-10] if tau<18 else MF[2] if tau==18 else MF[0]
    ftok={}
    def fread(tau,u):
        st,off=m_off(tau%10,u)
        base={(16,0):vMA16a,(8,0):vMA8a,(16,1):vMA16b,(8,1):vMA8b}[(st,tau//10)]
        ftok[tau]=lg.issue(f"ds_read_b64_tr_b16 {vr(freg(tau)+2*u,2)}, v{base} offset:{off}")
    def smf(acc,a,b): A(f"v_smfmac_f32_16x16x64_bf16 {vr(acc,4)}, {vr(a,4)}, {b}, v{vIDX}")
    def wop(m,t):
        if m in "QK" and t<2: return vr(KX+16*t+(8 if m=="K" else 0),8)
        return wreg(OPI[(m,t)])
    def cvt(d,a,b): A(f"v_cvt_pk_bf16_f32 v{d}, v{a}, v{b}")
    A(".p2align 6\nL_step:\ns_waitcnt lgkmcnt(0)\ns_barrier")
    fs(A,opt,"start"); ts(A,opt,0)
    if opt.get('prof')==4: A("s_memtime s[76:77]")
    for tau in range(D):
        fread(tau,0); fread(tau,1)
        if tau==0 and not NOHK:
            tfl=vm.issue(f"buffer_load_dword v{MF[0]}, v{vFLG}, {WS}, 0 offen sc1"); A(f"s_add_u32 {sT[4]}, {sS}, 2\ns_min_u32 {sT[4]}, {sT[4]}, 64")
        if tau==1 and not NOHK:
            A(f"s_add_u32 {sT[0]}, {sPGc}, {sPstO}\ns_add_u32 {sT[1]}, {sMb}, {sPubO}")
            vm.issue(f"buffer_store_dword v{SENT}, v{SENT+1}, {WS}, {sT[0]} offen sc1")
        if tau==2 and not NOHK:
            vm.issue(f"buffer_store_dword v{SENT}, v{SENT+2}, s[{S_MC}:{S_MC+3}], {sT[1]} offen sc1")
        if tau==3 and not NOHK:
            A(f"v_mov_b32 v{SENT+3}, {sS}\ns_mov_b64 exec, 1")
            vm.issue(f"buffer_store_dword v{SENT+3}, v{vL16}, {WS}, {sKMFL} offen sc1")
            A("s_mov_b64 exec, -1")
    kxi=0
    for tau in range(20):
        lg.wait(ftok[tau])
        smf(ACCQ,freg(tau),wop("Q",tau))
        if tau+D<20: fread(tau+D,0)
        smf(ACCK,freg(tau),wop("K",tau))
        if tau+D<20: fread(tau+D,1)
        if not NOHK:
            if tau==13: vm.wait(tfl); A(f"v_cmp_gt_u32 vcc, {sT[4]}, v{MF[0]}")
            if tau==14: A(f"s_cbranch_vccnz L_kv_slow\nL_kv_ready:")
            if tau==15: A(f"s_lshl_b32 {sT[0]}, {sW}, 11\ns_add_u32 m0, {sKVB}, {sT[0]}\ns_add_u32 {sT[1]}, {sKX}, {sT[0]}"); vm.issue(f"buffer_load_dwordx4 v{vL16}, {WS}, {sT[1]} offen lds")
            if tau==16: vm.issue(f"buffer_load_dwordx4 v{vL16}, {WS}, {sT[1]} offen offset:1024 lds"); A(f"s_lshr_b32 {sT[0]}, {sT[0]}, 1\ns_add_u32 {sT[1]}, {sVX}, {sT[0]}\ns_add_u32 {sT[0]}, {sT[0]}, 8192\ns_add_u32 m0, {sKVB}, {sT[0]}")
            if tau==17: vm.issue(f"buffer_load_dwordx4 v{vL16}, {WS}, {sT[1]} offen lds"); kv_advance(A)
        if tau>=5 and tau%2==1 and kxi<8:
            lg.issue(f"ds_read_b128 {vr(KX+4*kxi,4)}, v{vKV} offset:{kxi*1024}"); kxi+=1
    assert kxi==8 and len(ftok)==20
    fs(A,opt,"qk")
    vf=keep+[freg(18),freg(19)]
    sv=lambda i: smf(ACCV,vf[i],wop("V",i))
    sv(0); sv(1)
    cvt(ACCQ,ACCQ,ACCQ+1); cvt(ACCQ+1,ACCQ+2,ACCQ+3)
    lg.issue(f"ds_write_b64 v{vZW}, {vr(ACCQ,2)}")
    cvt(ACCK,ACCK,ACCK+1); cvt(ACCK+1,ACCK+2,ACCK+3)
    tz=lg.issue(f"ds_write_b64 v{vZW}, {vr(ACCK,2)} offset:512")
    sv(2); sv(3); sv(4); sv(5)
    lg.wait(tz)
    A("s_barrier")
    fs(A,opt,"zbar")
    ztok={}
    def zr(j,k):
        dst,base,off=[(ZQ+4*j,vZR0,0),(ZQ+4*j+2,vZR1,0),(ZK+4*j,vZR0,2048),(ZK+4*j+2,vZR1,2048)][k]
        ztok[j]=lg.issue(f"ds_read_b64_tr_b16 {vr(dst,2)}, v{base} offset:{off+512*j}")
    for k in range(4): zr(0,k)
    sv(6); zr(1,0); zr(1,1); sv(7); zr(1,2); zr(1,3)
    sv(8); zr(2,0); zr(2,1); sv(9); zr(2,2); zr(2,3)
    vm.issue(f"buffer_store_dwordx2 {vr(ACCQ,2)}, v{vZW}, s[{S_KM}:{S_KM+3}], {sKM} offen sc1")
    vm.issue(f"buffer_store_dwordx2 {vr(ACCK,2)}, v{vZW}, s[{S_KM}:{S_KM+3}], {sKM} offen offset:512 sc1")
    fs(A,opt,"vpass")
    SX0,SX1,SM=ACCQ,ACCK,MF[1]
    def mm(d,a,b,first): A(f"v_mfma_f32_16x16x32_bf16 {vr(d,4)}, {vr(a,4)}, {vr(b,4)}, {'0' if first else vr(d,4)}")
    VX,VM,OACC=KX,KX+16,ZK
    WB=[72,80,88,48,56,64]
    wtok={}
    def wread(u,hf): wtok[u]=lds_op(A,lg,("O",u),WB[u],hf)
    def vxread(T): return lg.issue(f"ds_read_b128 {vr(VX+4*T,4)}, v{vKV} offset:{8192+T*1024}")
    vmread=lambda T: lg.issue(f"ds_read_b64 {vr(VM+2*T,2)}, v{vL8} offset:{VB+T*512}")
    x0=lambda j: mm(SX0,KX+4*j,ZQ+4*j,j==0)
    xm=lambda j: mm(SM,ZK+4*j,ZQ+4*j,j==0)
    x1=lambda j: mm(SX1,KX+16+4*j,ZQ+4*j,j==0)
    lg.wait(ztok[0])
    x0(0); zr(3,0); zr(3,1); xm(0); zr(3,2); zr(3,3); x1(0)
    lg.wait(ztok[1])
    x0(1); cvt(ACCV,ACCV,ACCV+1); xm(1); cvt(ACCV+1,ACCV+2,ACCV+3); x1(1)
    tv=lg.issue(f"ds_write_b64 v{vVW}, {vr(ACCV,2)}")
    lg.wait(ztok[2])
    x0(2); tvm_store=vm.issue(f"buffer_store_dwordx2 {vr(ACCV,2)}, v{vVW}, {WS}, {sVM} offen sc1")
    xm(2); A(f"s_cmp_eq_u32 {sS}, 63\ns_cbranch_scc1 L_chain_exit")
    x1(2); vxread(0); vxread(1)
    lg.wait(ztok[3])
    x0(3)
    lg.wait(tv); A("s_barrier")
    xm(3); vxread(2); tvx=vxread(3)
    x1(3)
    for T in range(4): tvm=vmread(T)
    fs(A,opt,"scores")
    m,t,mc=32,33,34
    A(f"""
v_max3_f32 v{m}, v{SX0}, v{SX0+1}, v{SX0+2}
v_max3_f32 v{t}, v{SM}, v{SM+1}, v{SM+2}
v_max3_f32 v{m}, v{m}, v{SX0+3}, v{SM+3}
v_max3_f32 v{t}, v{t}, v{SX1}, v{SX1+1}
v_max3_f32 v{m}, v{m}, v{SX1+2}, v{SX1+3}
v_max_f32 v{mc}, v{m}, v{t}
v_max_f32 v{m}, v{m}, v{t}
""")
    wread(0,0); wread(0,1)
    A(f"v_permlane32_swap_b32 v{m}, v{mc}\nv_max_f32 v{t}, v{m}, v{mc}\nv_max_f32 v{m}, v{m}, v{mc}")
    wread(1,0); wread(1,1)
    A(f"v_permlane16_swap_b32 v{m}, v{t}\nv_max_f32 v{m}, v{m}, v{t}\nv_mul_f32 v{mc}, {hex(f2u(-SCALE_LOG2E))}, v{m}")
    fs(A,opt,"max")
    def pkf(r): A(f"v_pk_fma_f32 {vr(r,2)}, {vr(r,2)}, s[{sSC}:{sSC+1}], {vr(mc,2)} op_sel_hi:[1,0,0]")
    ex=lambda r: A(f"v_exp_f32 v{r}, v{r}")
    pkf(SX0); pkf(SX0+2); ex(SX0); pkf(SX1); ex(SX0+1); pkf(SX1+2); ex(SX0+2); wread(2,0); ex(SX0+3); wread(2,1)
    PX,PM,RI=SX0,40,42
    ex(SX1); cvt(PX,SX0,SX0+1); ex(SX1+1); cvt(PX+1,SX0+2,SX0+3); ex(SX1+2); pkf(SM); ex(SX1+3); pkf(SM+2)
    cvt(PX+2,SX1,SX1+1); cvt(PX+3,SX1+2,SX1+3)
    fs(A,opt,"expx")
    LT=ACCV
    lg.wait(tvx)
    ex(SM); mm(LT,ONES,PX,True)
    ex(SM+1); mm(OACC,VX,PX,True)
    ex(SM+2); mm(OACC+4,VX+4,PX,True)
    ex(SM+3); mm(OACC+8,VX+8,PX,True)
    cvt(PM,SM,SM+1); cvt(PM+1,SM+2,SM+3)
    mm(OACC+12,VX+12,PX,True)
    def mm16(d,a,b): A(f"v_mfma_f32_16x16x16_bf16 {vr(d,4)}, {vr(a,2)}, {vr(b,2)}, {vr(d,4)}")
    z=lambda r: A(f"v_mov_b64 {vr(r,2)}, 0")
    wread(3,0); wread(3,1)
    mm16(LT,HALF,PM); wread(4,0); z(20)
    mm16(OACC,VM,PM); wread(4,1); z(22)
    mm16(OACC+4,VM+2,PM); z(24); z(26)
    mm16(OACC+8,VM+4,PM); A(f"v_xor_b32 v{vKV}, {KVX}, v{vKV}")
    mm16(OACC+12,VM+6,PM)
    wread(5,0); wread(5,1)
    A(f"v_rcp_f32 v{RI}, v{LT}")
    z(28); z(30)
    fs(A,opt,"pv")
    def pkm(r): A(f"v_pk_mul_f32 {vr(r,2)}, {vr(r,2)}, {vr(RI,2)} op_sel_hi:[1,0]")
    for r in range(0,8,2): pkm(OACC+r)
    for i in range(4): cvt(OACC+i,OACC+2*i,OACC+2*i+1)
    WACC=20
    def wo(u):
        p,P=WORD[u]
        if u<6: lg.wait(wtok[u])
        smf(WACC+4*p,OACC+4*P,vr(WB[u],8) if u<6 else wop("O",u))
    pkm(OACC+8); pkm(OACC+10)
    wo(0)
    pkm(OACC+12); pkm(OACC+14)
    wo(1)
    cvt(OACC+4,OACC+8,OACC+9); cvt(OACC+5,OACC+10,OACC+11)
    wo(2)
    cvt(OACC+6,OACC+12,OACC+13); cvt(OACC+7,OACC+14,OACC+15)
    z(32); z(34)
    fs(A,opt,"a1")
    wo(3)
    A(f"s_add_u32 {sT[0]}, {sPGa}, {sPstO}\ns_add_u32 {sT[1]}, {sT[0]}, {8*16384}")
    z(36)
    wo(4)
    A(f"s_add_u32 {sT[2]}, {sT[0]}, {16*16384}\ns_mov_b32 {sT[5]}, 0xfffffffe")
    z(38)
    wo(5)
    A(f"s_add_u32 {sKM}, {sKM}, 2048\ns_add_u32 {sVM}, {sVM}, 4096\ns_add_u32 {sS}, {sS}, 1")
    wo(6)
    A(f"s_add_u32 {sT[3]}, {sPGa}, {sRdO}\ns_add_u32 {sT[4]}, {sT[3]}, 4096")
    mn=lambda r: A(f"v_min_u32 v{r}, {sT[5]}, v{r}")
    cvt(20,20,21); cvt(21,22,23)
    wo(7)
    cvt(22,24,25); cvt(23,26,27)
    wo(8)
    mn(20)
    vm.issue(f"buffer_store_dwordx4 {vr(20,4)}, v{vP0}, {WS}, {sT[0]} offen sc1")
    wo(9)
    cvt(28,28,29); cvt(29,30,31); mn(28); cvt(30,32,33); cvt(31,34,35)
    vm.issue(f"buffer_store_dwordx4 {vr(28,4)}, v{vP0}, {WS}, {sT[1]} offen sc1")
    cvt(36,36,37); cvt(37,38,39); mn(36)
    vm.issue(f"buffer_store_dwordx2 {vr(36,2)}, v{vP2}, {WS}, {sT[2]} offen sc1")
    fs(A,opt,"stores"); ts(A,opt,1)
    stamp(A,opt,0); fs_collect(A,opt)
    RL,RACC,SEL=48,24,80
    A(f"""
s_cmp_ge_u32 {sW}, 2
s_cbranch_scc1 L_plain
s_cmp_lt_i32 {sTask}, 0
s_cbranch_scc1 L_plain
s_add_u32 {sT[2]}, {sMa}, {sPubO}
s_mov_b32 {sSpin}, 0
s_waitcnt vmcnt({max(opt.get('W1',0),opt.get('W1b',2))})
s_cmp_eq_u32 {sW}, 1
s_cbranch_scc1 L_sel
s_waitcnt vmcnt({opt.get('W1',0)})
L_sel:
v_lshrrev_b32 v86, 4, v{vL16}
v_and_b32 v84, 1, v86
v_lshlrev_b32 v84, 4, v84
v_mov_b32 v85, 0x3f80
v_lshlrev_b32 v85, v84, v85
v_bfe_u32 v84, v86, 1, 2
""")
    for j in range(4):
        A(f"v_cmp_eq_u32 vcc, {j}, v84\nv_cndmask_b32 v{SEL+j}, 0, v85, vcc")
    A(f"""
v_and_b32 v84, 0x70, v{vL16}
v_bfe_u32 v86, v86, 4, 1
v_lshl_add_u32 v86, v86, 3, v84
""")
    if opt.get('d1',0): A(f"s_sleep {opt['d1']}")
    ts(A,opt,2)
    A("L_poll1:")
    for j in range(8): A(f"buffer_load_dwordx4 {vr(RL+4*j,4)}, v{vL16}, {WS}, {sT[3+(j>>2)]} offen offset:{(j&3)*1024} sc1")
    for j in range(8):
        A(f"s_waitcnt vmcnt({7-j})")
        if j==7: A(f"v_max3_u32 v84, v84, v{RL+24}, v{RL+28}")
        mm(RACC,SEL,RL+4*j,j==0)
        if j==1: A(f"v_max_u32 v84, v{RL}, v{RL+4}")
        elif j in (3,5): A(f"v_max3_u32 v84, v84, v{RL+4*j-4}, v{RL+4*j}")
    A("v_cmp_eq_u32 vcc, -1, v84")
    for i in range(4): A(f"v_add_f32_dpp v{28+i}, v{RACC+i}, v{RACC+i} row_ror:8 row_mask:0xf bank_mask:0xf")
    A(f"""
v_cvt_pk_bf16_f32 v28, v28, v29
v_cvt_pk_bf16_f32 v29, v30, v31
v_min_u32 v28, {sT[5]}, v28
s_cbranch_vccnz L_retry1
s_mov_b64 exec, 0x00ff00ff
buffer_store_dwordx2 v[28:29], v86, {WS}, {sT[2]} offen sc1
s_mov_b64 exec, 1""")
    ts(A,opt,3)
    A("s_barrier")
    if opt.get('prof'): A(f"s_add_u32 s94, s94, {sSpin}")
    stamp(A,opt,1)
    A("s_mov_b64 exec, -1")
    def prep(parts):
        if parts&1: qk_preload(A,Cnt(A,"lgkmcnt",15))
        if parts&2: sent_setup(A,opt)
        if parts&4:
            for i in range(0,12,2): z(ACCQ+i)
    prep(7)
    if opt.get('W2',0): A("s_waitcnt vmcnt(0)")
    if opt.get('d2r',4): A(f"s_sleep {opt.get('d2r',4)}")
    A("L_gather:")
    stamp(A,opt,2); ts(A,opt,4)
    NC=1
    CP=[(80,84,88),(32,36,40),(104,92,42)]
    def cload(k,so):
        a,b,c=CP[k]
        A(f"""buffer_load_dwordx4 {vr(a,4)}, v{vL16}, {WS}, {so} offen sc1
buffer_load_dwordx4 {vr(b,4)}, v{vL16}, {WS}, {so} offen offset:1024 sc1
buffer_load_dwordx2 {vr(c,2)}, v{vL8}, {WS}, {so} offen offset:2048 sc1""")
    def ctake(k,left,fail,first=False):
        a,b,c=CP[k]
        A(f"""s_waitcnt vmcnt({left+2})
ds_write_b128 v{vMW16}, {vr(a,4)}
s_waitcnt vmcnt({left+1})
ds_write_b128 v{vMW16}, {vr(b,4)} offset:1024
s_waitcnt vmcnt({left})
ds_write_b64 v{vMW8}, {vr(c,2)}
v_max3_u32 v90, v{a}, v{b}, v{c}
v_cmp_eq_u32 vcc, -1, v90""")
    A(f"""
s_add_u32 {sT[0]}, {sMa}, {sMLO}
s_add_u32 {sT[2]}, {sT[0]}, 32768
s_add_u32 {sT[3]}, {sT[0]}, 65536""")
    cload(0,sT[0])
    if NC>1:
        for _ in range(opt.get('dc',0)): A("s_nop 15")
        cload(1,sT[2])
    if NC>2:
        for _ in range(opt.get('dc',0)): A("s_nop 15")
        cload(2,sT[3])
    A(f"""s_mov_b32 {sSpin}, 0
s_mov_b32 {sT[1]}, {sPGa}""")
    ctake(0,3*(NC-1),None,True)
    A("s_cbranch_vccnz L_copy1\nL_got2:")
    if opt.get('prof'): A(f"s_add_u32 s95, s95, {sSpin}")
    stamp(A,opt,3); ts(A,opt,5); ts_flush(A,opt)
    A(f"""s_mov_b32 {sPGa}, {sPGb}
s_mov_b32 {sPGb}, {sPGc}
s_mov_b32 {sPGc}, {sT[1]}
s_mov_b32 {sT[1]}, {sMa}
s_mov_b32 {sMa}, {sMb}
s_mov_b32 {sMb}, {sMc}
s_mov_b32 {sMc}, {sT[1]}
s_branch L_step
L_plain:""")
    ts(A,opt,2); ts(A,opt,3)
    prep(opt.get('pre',0))
    A("s_barrier")
    prep(7-opt.get('pre',0))
    if opt.get('d2n',4): A(f"s_sleep {opt.get('d2n',4)}")
    A(f"""s_branch L_gather
L_kv_slow:""")
    wait_kv(A,sT[4],79,0x103)
    A(("s_endpgm" if NOHK else "s_branch L_kv_ready")+"\nL_retry1:\ns_waitcnt vmcnt(0)")
    spin_tail(A,sSpin,"L_poll1",0x104)
    A("L_copy1:")
    if opt.get('prof'): A(f"s_add_u32 {sSpin}, {sSpin}, 1")
    for k in range(1,NC):
        A(f"s_add_u32 {sSpin}, {sSpin}, 1")
        ctake(k,3*(NC-1-k),None)
        A("s_cbranch_vccz L_got2")
    A("L_poll2:")
    cload(0,sT[0]); ctake(0,0,None)
    A("s_cbranch_vccz L_got2")
    spin_tail(A,sSpin,"L_poll2",0x105)
    A(f"""L_chain_exit:
s_waitcnt vmcnt(0)
v_mov_b32 v{KX+4}, 64
s_mov_b64 exec, 1
buffer_store_dword v{KX+4}, v{vL16}, {WS}, {sKMFL} offen sc1
s_waitcnt vmcnt(0)""")
    if opt.get('prof'):
        A(f"""s_memtime s[90:91]
s_memrealtime s[28:29]
s_waitcnt lgkmcnt(0)
s_sub_u32 s24, s90, s97
s_sub_u32 s30, s92, s96
s_sub_u32 s29, s28, s92
s_lshl_b32 s31, {sB}, 2
s_add_u32 s31, s31, {sW}
s_lshl_b32 s31, s31, 7
s_add_u32 s31, s31, {PROF}""")
        for i,r in enumerate(["s20","s21","s22","s23","s24","s30","s29","s94","s95","s96"]+(FACC[1:] if opt.get('prof')==2 else ["s3","s63","s59"])):
            A(f"v_mov_b32 v20, {r}\nbuffer_store_dword v20, v{vL16}, {WS}, s31 offen offset:{4*i}")
        A("s_waitcnt vmcnt(0)")
    A("s_endpgm")
```

```python
from common import *
import chain as C
from chain import (MB,ZB,VB,KVB,KVX,vIDX,vL16,vL8,vMA16a,vMA8a,vMA16b,vMA8b,vZW,vZR0,vZR1,vVW,vP0,vP2,vFLG,vKV,vWO,vMW16,vMW8,
  HALF,ACCQ,ACCK,ACCV,MF,ONES,KX,ZQ,ZK,sH,sC,sB,sT,sSC,sSpin,WORD,OPS,OPI,wreg,m_off,kv_dma,kv_advance,wait_kv,pstamp,stamp,ts,ts_flush,fs,fs_collect,FACC,S_KM,sKX,sVX,sKM,sVM,sKMFL,sKVB,sS)
WS=f"s[{S_WS}:{S_WS+3}]"; DB=f"s[{S_DB}:{S_DB+3}]"
PAB, PASL, PAGR = PAGE, 163840, 491520
LMB = 2*PAGE
XSL = 8*16384
WOFF=4096
SENT=108
sK,sPA0,sXB0,sLM0,sPstO,sRdO,sXO,sXPO,sLPO,sMLO = "s33","s34","s35","s36","s37","s38","s39","s40","s41","s42"
sPA,sXB,sLM,sK1,sK2 = "s49","s56","s57","s58","s59"
D_XCC=64
def lds_op(A,lg,o,dst,hf):
    return lg.issue(f"ds_read_b128 {vr(dst+4*hf,4)}, v{vWO} offset:{WOFF+(OPI[o]-50)*2048+hf*1024}")
def qk_preload(A,lg):
    for i,o in enumerate([("Q",0),("K",0),("Q",1),("K",1)]):
        for hf in range(2): lds_op(A,lg,o,KX+8*i,hf)

def role_chain(A,opt):
    A(f"""s_getreg_b32 s92, hwreg(HW_REG_XCC_ID)
s_and_b32 s92, s92, 15
s_add_u32 s92, s92, 1
s_add_u32 s93, {sB}, {D_XCC}
v_mov_b32 v1, s92
v_mov_b32 v2, s93
s_mov_b64 exec, 1
buffer_store_byte v1, v2, {DB}, 0 offen sc1
s_mov_b64 exec, -1
s_mov_b32 s63, s92""")
    C.lane_setup(A,11,16384)
    C.weights_prologue(A,WOFF)
    pstamp(A,opt,"s3")
    l="v108"
    A(f"""
v_mov_b32 v{HALF}, 0x3f003f00
v_mov_b32 v{HALF+1}, 0x3f003f00
v_mov_b32 v{ONES}, 0x3f803f80
v_mov_b32 v{ONES+1}, 0x3f803f80
v_mov_b32 v{ONES+2}, 0x3f803f80
v_mov_b32 v{ONES+3}, 0x3f803f80
s_mov_b32 s{sSC}, {hex(f2u(SCALE_LOG2E))}
s_mov_b32 s{sSC+1}, {hex(f2u(SCALE_LOG2E))}
v_and_b32 v52, 1, {l}
v_lshlrev_b32 v52, 4, v52
v_mov_b32 v53, 0x3f80
v_lshlrev_b32 v53, v52, v53
v_bfe_u32 v52, {l}, 1, 2
""")
    for j in range(4): A(f"v_cmp_eq_u32 vcc, {j}, v52\nv_cndmask_b32 v{48+j}, 0, v53, vcc")
    A(f"""
ds_write_b128 v{vWO}, v[48:51]
v_and_b32 v56, 7, {l}
v_lshlrev_b32 v56, 4, v56               ; piece * 16
v_bfe_u32 v57, {l}, 3, 1
v_lshrrev_b32 v58, 4, {l}               ; g
v_lshl_add_u32 v59, v58, 7, v56         ; g*128 + piece*16
v_and_b32 v60, 1, v58
v_lshl_add_u32 v60, v60, 3, v56         ; piece*16 + (g&1)*8
v_lshl_add_u32 v52, v57, 11, v59
v_lshl_add_u32 v53, v57, 9, v60
v_lshl_add_u32 v54, v57, 9, v59
v_lshl_add_u32 v55, v57, 7, v60
s_cmp_eq_u32 {sW}, 2
s_cselect_b32 {sT[0]}, 1, 2
v_mov_b32 v61, 0x7ffffff0
v_cmp_gt_u32 vcc, {sT[0]}, v57
v_cndmask_b32 v52, v61, v52, vcc
v_cndmask_b32 v53, v61, v53, vcc
v_cndmask_b32 v54, v61, v54, vcc
v_cndmask_b32 v55, v61, v55, vcc
ds_write_b128 v{vWO}, v[52:55] offset:1024
v_mov_b32 v48, -1
v_lshrrev_b32 v56, 1, {l}
v_and_b32 v57, 1, {l}
v_lshlrev_b32 v57, 6, v57
v_lshl_add_u32 v49, v56, 11, v57
v_lshl_add_u32 v50, v56, 9, v57
v_lshl_add_u32 v51, v56, 7, v57
v_cmp_gt_u32 vcc, 40, {l}
v_cndmask_b32 v49, v61, v49, vcc
s_cmp_eq_u32 {sW}, 3
s_cselect_b32 {sT[0]}, 0, {sT[0]}
v_cmp_gt_u32 vcc, {sT[0]}, v56
v_cndmask_b32 v50, v61, v50, vcc
v_cndmask_b32 v51, v61, v51, vcc
ds_write_b128 v{vWO}, v[48:51] offset:2048
v_and_b32 v48, 1, {l}
v_mul_u32_u24 v49, {D_POL}, v48
v_mov_b32 v50, {NAUX}
v_mov_b32 v51, 0x80000000
v_cmp_eq_u32 vcc, 1, v48
v_cndmask_b32 v50, v50, v51, vcc
v_and_b32 v52, 15, {l}
s_and_b32 {sT[0]}, {sB}, 48
s_add_u32 {sT[0]}, {sT[0]}, {D_XCC}
v_add_u32 v52, {sT[0]}, v52
s_mov_b32 {sSpin}, 0
s_cmp_lg_u32 {sW}, 0
s_cbranch_scc1 L_cst_bar
L_cst:
buffer_load_dword v51, v49, {DB}, 0 offen sc1
buffer_load_ubyte v53, v52, {DB}, 0 offen sc1
s_waitcnt vmcnt(0)
v_cmp_gt_u32 s[50:51], v50, v51
v_cmp_eq_u32 vcc, 0, v53
s_or_b64 vcc, vcc, s[50:51]
s_cbranch_vccz L_cst_bar
""")
    spin_tail(A,sSpin,"L_cst",0x101,sleep=8)
    A(f"""
L_cst_bar:
s_barrier
buffer_load_dword v51, v49, {DB}, 0 offen sc1
buffer_load_ubyte v53, v52, {DB}, 0 offen sc1
s_waitcnt vmcnt(0)""")
    pstamp(A,opt,"s63x") if False else None
    A(f"""
v_cmp_ne_u32 s[90:91], s63, v53
v_readlane_b32 {sT[0]}, v51, 1
s_and_b32 {sT[1]}, {sT[0]}, 1
s_lshl_b32 {sXB0}, {sT[1]}, 13
s_lshr_b32 {sT[0]}, {sB}, 4               ; group
s_and_b32 {sT[1]}, {sB}, 15               ; member
s_mul_i32 {sPA0}, {sT[0]}, {PAGR}
s_add_u32 {sPA0}, {sPA0}, {PAB}
s_lshl_b32 {sLM0}, {sT[0]}, 15
s_add_u32 {sLM0}, {sLM0}, {LMB}
s_mul_i32 {sPstO}, {sW}, {20*2048}
s_lshl_b32 {sT[2]}, {sT[1]}, 7
s_add_u32 {sPstO}, {sPstO}, {sT[2]}
s_mul_i32 {sT[2]}, {sT[1]}, 5
s_lshl_b32 {sT[3]}, {sW}, 1
s_add_u32 {sT[2]}, {sT[2]}, {sT[3]}
s_lshl_b32 {sRdO}, {sT[2]}, 11
s_lshl_b32 {sLPO}, {sT[2]}, 7
s_lshr_b32 {sT[2]}, {sT[1]}, 1
s_lshl_b32 {sXO}, {sT[2]}, 14
s_and_b32 {sT[2]}, {sT[1]}, 1
s_lshl_b32 {sT[2]}, {sT[2]}, 12
s_add_u32 {sXO}, {sXO}, {sT[2]}
s_lshl_b32 {sT[2]}, {sW}, 10
s_add_u32 {sXO}, {sXO}, {sT[2]}
s_lshl_b32 {sT[2]}, {sT[0]}, 7
s_add_u32 {sXPO}, {sXO}, {sT[2]}
s_mul_i32 {sMLO}, {sW}, 2560
s_lshl_b32 {sT[0]}, {sH}, 19
s_add_u32 {sKX}, {sT[0]}, {KXF}
s_lshl_b32 {sT[1]}, {sC}, 12
s_add_u32 {sVX}, {sT[0]}, {sT[1]}
s_add_u32 {sVX}, {sVX}, {VXF}
s_lshl_b32 {sT[0]}, {sH}, 17
s_add_u32 {sKM}, {sT[0]}, {KMF-ZB-2048}
s_lshl_b32 {sT[0]}, {sH}, 18
s_lshl_b32 {sT[1]}, {sC}, 11
s_add_u32 {sVM}, {sT[0]}, {sT[1]}
s_add_u32 {sVM}, {sVM}, {VMF-VB}
s_lshl_b32 {sT[0]}, {sH}, 1
s_add_u32 {sT[0]}, {sT[0]}, {sC}
s_lshl_b32 {sT[0]}, {sT[0]}, 7
s_lshl_b32 {sT[1]}, {sW}, 2
s_add_u32 {sKMFL}, {sT[0]}, {sT[1]}
s_add_u32 {sKMFL}, {sKMFL}, {F_KM}
s_mov_b32 {sKVB}, {KVB}
s_mov_b32 {sS}, 0
s_mov_b32 {sK}, 0
s_mov_b32 s{S_KM}, s{S_WS}
s_mov_b32 s{S_KM+1}, s{S_WS+1}
s_cmp_eq_u32 {sC}, 0
s_cselect_b32 s{S_KM+2}, {hex(WS_SIZE)}, 0
s_cmp_ge_u32 {sW}, 2
s_cselect_b32 s{S_KM+2}, s{S_KM+2}, 0
s_mov_b32 s{S_KM+3}, 0x20000
""")
    vm=Cnt(A,"vmcnt",63)
    wait_kv(A,"1",98,0x102)
    pstamp(A,opt,"s59")
    kv_dma(A,vm,4); kv_advance(A)
    A(f"s_waitcnt lgkmcnt(0)\nds_read_b128 {vr(SENT,4)}, v{vWO} offset:2048")
    qk_preload(A,Cnt(A,"lgkmcnt",15))
    for i in range(0,12,2): A(f"v_mov_b64 {vr(ACCQ+i,2)}, 0")
    A(f"s_add_u32 {sT[0]}, {sPA0}, {sPstO}\ns_add_u32 {sT[0]}, {sT[0]}, {PASL}\ns_waitcnt lgkmcnt(0)")
    A(f"buffer_store_dword v{SENT}, v{SENT+1}, {WS}, {sT[0]} offen sc1")
    A("s_waitcnt vmcnt(0)")
    if opt.get('prof'):
        A("s_memrealtime s[92:93]\ns_memtime s[28:29]\ns_waitcnt lgkmcnt(0)\ns_mov_b32 s30, s28\ns_mov_b32 s97, s28")
        for i in range(8): A(f"s_mov_b32 s{20+i}, 0")
        A("s_mov_b32 s94, 0\ns_mov_b32 s95, 0\ns_mov_b32 s63, 0")
    if opt.get('slow',0)==1: A("s_branch L_step_s")
    elif opt.get('fastonly',0)==0: A("s_cmp_lg_u64 s[90:91], 0\ns_cbranch_scc1 L_step_s")
    step(A,opt,True)
    if opt.get('fastonly',0)==0: step(A,opt,False)
    A(f"""L_chain_exit:
s_waitcnt vmcnt(0)
v_mov_b32 v{KX+4}, 64
s_mov_b64 exec, 1
buffer_store_dword v{KX+4}, v{vL16}, {WS}, {sKMFL} offen sc1
s_waitcnt vmcnt(0)""")
    if opt.get('prof'):
        A(f"""s_memtime s[90:91]
s_memrealtime s[28:29]
s_waitcnt lgkmcnt(0)
s_sub_u32 s24, s90, s97
s_sub_u32 s30, s92, s96
s_sub_u32 s29, s28, s92
s_lshl_b32 s31, {sB}, 2
s_add_u32 s31, s31, {sW}
s_lshl_b32 s31, s31, 7
s_add_u32 s31, s31, {PROF}""")
        for i,r in enumerate(["s20","s21","s22","s23","s24","s30","s29","s94","s95","s96","s3","s3","s3","s63"]):
            A(f"v_mov_b32 v20, {r}\nbuffer_store_dword v20, v{vL16}, {WS}, s31 offen offset:{4*i}")
        A("s_waitcnt vmcnt(0)")
    A("s_endpgm")

def step(A,opt,fast):
    X="" if fast else "_s"
    LC="" if fast else " sc1"
    if not fast: opt={k:v for k,v in opt.items() if k not in('cut',)}; opt['prof']=3 if opt.get('prof') else 0
    lg=Cnt(A,"lgkmcnt",15); vm=Cnt(A,"vmcnt",63)
    NOHK=opt.get('nohk',0)
    keep=[ZQ,ZK,ZQ+4,ZK+4,ZQ+8,ZK+8,ZQ+12,ZK+12]
    D=4
    def freg(tau): return keep[tau%5] if tau<10 else keep[tau-10] if tau<18 else MF[2] if tau==18 else MF[0]
    ftok={}
    def fread(tau,u):
        st,off=m_off(tau%10,u)
        base={(16,0):vMA16a,(8,0):vMA8a,(16,1):vMA16b,(8,1):vMA8b}[(st,tau//10)]
        ftok[tau]=lg.issue(f"ds_read_b64_tr_b16 {vr(freg(tau)+2*u,2)}, v{base} offset:{off}")
    def smf(acc,a,b): A(f"v_smfmac_f32_16x16x64_bf16 {vr(acc,4)}, {vr(a,4)}, {b}, v{vIDX}")
    def wop(m,t):
        if m in "QK" and t<2: return vr(KX+16*t+(8 if m=="K" else 0),8)
        return wreg(OPI[(m,t)])
    def cvt(d,a,b): A(f"v_cvt_pk_bf16_f32 v{d}, v{a}, v{b}")
    A(f".p2align 6\nL_step{X}:\ns_waitcnt lgkmcnt(0)\ns_barrier")
    if fast: fs(A,opt,"start"); ts(A,opt,0)
    for tau in range(D):
        fread(tau,0); fread(tau,1)
        if tau==0 and not NOHK:
            tfl=vm.issue(f"buffer_load_dword v{MF[0]}, v{vFLG}, {WS}, 0 offen sc1")
        if tau==0:
            A(f"""s_add_u32 {sK1}, {sK}, 1
s_cmp_eq_u32 {sK1}, 3
s_cselect_b32 {sK1}, 0, {sK1}""")
        if tau==1:
            A(f"""s_add_u32 {sK2}, {sK1}, 1
s_cmp_eq_u32 {sK2}, 3
s_cselect_b32 {sK2}, 0, {sK2}
s_mul_i32 {sT[0]}, {sK2}, {PASL}
s_add_u32 {sT[0]}, {sT[0]}, {sPA0}
s_add_u32 {sT[0]}, {sT[0]}, {sPstO}""")
            if not NOHK: vm.issue(f"buffer_store_dword v{SENT}, v{SENT+1}, {WS}, {sT[0]} offen{LC}")
        if tau==2:
            A(f"""s_mul_i32 {sT[1]}, {sK1}, {XSL}
s_add_u32 {sT[1]}, {sT[1]}, {sXB0}
s_add_u32 {sT[1]}, {sT[1]}, {sXPO}""")
            if not NOHK: vm.issue(f"buffer_store_dword v{SENT}, v{SENT+2}, {WS}, {sT[1]} offen sc1")
        if tau==3:
            A(f"""s_mul_i32 {sT[2]}, {sK1}, 10240
s_add_u32 {sT[2]}, {sT[2]}, {sLM0}
s_add_u32 {sT[2]}, {sT[2]}, {sLPO}""")
            if not NOHK: vm.issue(f"buffer_store_dword v{SENT}, v{SENT+3}, {WS}, {sT[2]} offen{LC}")
    kxi=0
    for tau in range(20):
        lg.wait(ftok[tau])
        smf(ACCQ,freg(tau),wop("Q",tau))
        if tau+D<20: fread(tau+D,0)
        smf(ACCK,freg(tau),wop("K",tau))
        if tau+D<20: fread(tau+D,1)
        if tau==1 and not NOHK:
            A(f"v_mov_b32 v{SENT}, {sS}\ns_mov_b64 exec, 1")
            vm.issue(f"buffer_store_dword v{SENT}, v{vL16}, {WS}, {sKMFL} offen sc1")
            A("s_mov_b64 exec, -1")
        if tau==3: A(f"s_mul_i32 {sPA}, {sK}, {PASL}\ns_add_u32 {sPA}, {sPA}, {sPA0}")
        if tau==4: A(f"s_mul_i32 {sXB}, {sK}, {XSL}\ns_add_u32 {sXB}, {sXB}, {sXB0}")
        if tau==5: A(f"s_mul_i32 {sLM}, {sK}, 10240\ns_add_u32 {sLM}, {sLM}, {sLM0}")
        if tau==6: A(f"s_add_u32 {sT[4]}, {sS}, 2\ns_min_u32 {sT[4]}, {sT[4]}, 64\ns_mov_b32 {sK}, {sK1}")
        if not NOHK:
            if tau==13: vm.wait(tfl); A(f"v_cmp_gt_u32 vcc, {sT[4]}, v{MF[0]}")
            if tau==14: A(f"s_cbranch_vccnz L_kv_slow{X}\nL_kv_ready{X}:")
            if tau==15: A(f"s_lshl_b32 {sT[0]}, {sW}, 11\ns_add_u32 m0, {sKVB}, {sT[0]}\ns_add_u32 {sT[1]}, {sKX}, {sT[0]}"); vm.issue(f"buffer_load_dwordx4 v{vL16}, {WS}, {sT[1]} offen lds")
            if tau==16: vm.issue(f"buffer_load_dwordx4 v{vL16}, {WS}, {sT[1]} offen offset:1024 lds"); A(f"s_lshr_b32 {sT[0]}, {sT[0]}, 1\ns_add_u32 {sT[1]}, {sVX}, {sT[0]}\ns_add_u32 {sT[0]}, {sT[0]}, 8192\ns_add_u32 m0, {sKVB}, {sT[0]}")
            if tau==17: vm.issue(f"buffer_load_dwordx4 v{vL16}, {WS}, {sT[1]} offen lds"); kv_advance(A)
        if tau>=5 and tau%2==1 and kxi<8:
            lg.issue(f"ds_read_b128 {vr(KX+4*kxi,4)}, v{vKV} offset:{kxi*1024}"); kxi+=1
    assert kxi==8 and len(ftok)==20
    if fast: fs(A,opt,"qk")
    vf=keep+[freg(18),freg(19)]
    sv=lambda i: smf(ACCV,vf[i],wop("V",i))
    sv(0); sv(1)
    cvt(ACCQ,ACCQ,ACCQ+1); cvt(ACCQ+1,ACCQ+2,ACCQ+3)
    lg.issue(f"ds_write_b64 v{vZW}, {vr(ACCQ,2)}")
    cvt(ACCK,ACCK,ACCK+1); cvt(ACCK+1,ACCK+2,ACCK+3)
    tz=lg.issue(f"ds_write_b64 v{vZW}, {vr(ACCK,2)} offset:512")
    sv(2); sv(3); sv(4); sv(5)
    lg.wait(tz)
    A("s_barrier")
    if fast: fs(A,opt,"zbar")
    ztok={}
    def zr(j,k):
        dst,base,off=[(ZQ+4*j,vZR0,0),(ZQ+4*j+2,vZR1,0),(ZK+4*j,vZR0,2048),(ZK+4*j+2,vZR1,2048)][k]
        ztok[j]=lg.issue(f"ds_read_b64_tr_b16 {vr(dst,2)}, v{base} offset:{off+512*j}")
    for k in range(4): zr(0,k)
    sv(6); zr(1,0); zr(1,1); sv(7); zr(1,2); zr(1,3)
    sv(8); zr(2,0); sv(9); zr(2,1)
    if fast: fs(A,opt,"vpass")
    SX0,SX1,SM=MF[2],MF[0],MF[1]
    def mm(d,a,b,first): A(f"v_mfma_f32_16x16x32_bf16 {vr(d,4)}, {vr(a,4)}, {vr(b,4)}, {'0' if first else vr(d,4)}")
    VX,VM,OACC=KX,KX+16,ZK
    WB=[72,80,88,48,56,64]
    wtok={}
    def wread(u,hf): wtok[u]=lds_op(A,lg,("O",u),WB[u],hf)
    def vxread(T): return lg.issue(f"ds_read_b128 {vr(VX+4*T,4)}, v{vKV} offset:{8192+T*1024}")
    vmread=lambda T: lg.issue(f"ds_read_b64 {vr(VM+2*T,2)}, v{vL8} offset:{VB+T*512}")
    x0=lambda j: mm(SX0,KX+4*j,ZQ+4*j,j==0)
    xm=lambda j: mm(SM,ZK+4*j,ZQ+4*j,j==0)
    x1=lambda j: mm(SX1,KX+16+4*j,ZQ+4*j,j==0)
    lg.wait(ztok[0])
    xm(0); zr(2,2); zr(2,3); x0(0); zr(3,0); zr(3,1); x1(0); zr(3,2); zr(3,3)
    lg.wait(ztok[1])
    xm(1); cvt(ACCV,ACCV,ACCV+1); x0(1); cvt(ACCV+1,ACCV+2,ACCV+3); x1(1)
    tv=lg.issue(f"ds_write_b64 v{vVW}, {vr(ACCV,2)}")
    lg.wait(ztok[2])
    xm(2); vm.issue(f"buffer_store_dwordx2 {vr(ACCQ,2)}, v{vZW}, s[{S_KM}:{S_KM+3}], {sKM} offen sc1")
    x0(2); vm.issue(f"buffer_store_dwordx2 {vr(ACCK,2)}, v{vZW}, s[{S_KM}:{S_KM+3}], {sKM} offen offset:512 sc1")
    x1(2); tvm_store=vm.issue(f"buffer_store_dwordx2 {vr(ACCV,2)}, v{vVW}, {WS}, {sVM} offen sc1")
    lg.wait(ztok[3])
    xm(3); A(f"s_cmp_eq_u32 {sS}, 63\ns_cbranch_scc1 L_chain_exit")
    x0(3)
    lg.wait(tv); A("s_barrier")
    x1(3)
    vxread(0); vxread(1); vxread(2); tvx=vxread(3)
    if fast: fs(A,opt,"scores")
    m,t,mc=24,25,26
    A(f"""
v_max3_f32 v{m}, v{SM}, v{SM+1}, v{SM+2}
v_max3_f32 v{t}, v{SX0}, v{SX0+1}, v{SX0+2}
v_max3_f32 v{m}, v{m}, v{SM+3}, v{SX0+3}
v_max3_f32 v{t}, v{t}, v{SX1}, v{SX1+1}
v_max3_f32 v{m}, v{m}, v{SX1+2}, v{SX1+3}
v_max_f32 v{mc}, v{m}, v{t}
v_max_f32 v{m}, v{m}, v{t}
""")
    vmread(0); vmread(1)
    A(f"v_permlane32_swap_b32 v{m}, v{mc}\nv_max_f32 v{t}, v{m}, v{mc}\nv_max_f32 v{m}, v{m}, v{mc}")
    vmread(2); tvm=vmread(3)
    A(f"v_permlane16_swap_b32 v{m}, v{t}\nv_max_f32 v{m}, v{m}, v{t}\nv_mul_f32 v{mc}, {hex(f2u(-SCALE_LOG2E))}, v{m}")
    if fast: fs(A,opt,"max")
    def pkf(r): A(f"v_pk_fma_f32 {vr(r,2)}, {vr(r,2)}, s[{sSC}:{sSC+1}], {vr(mc,2)} op_sel_hi:[1,0,0]")
    ex=lambda r: A(f"v_exp_f32 v{r}, v{r}")
    PX,PM,RI=20,42,40
    pkf(SX0); pkf(SX0+2); ex(SX0); pkf(SX1); ex(SX0+1); pkf(SX1+2); ex(SX0+2); wread(0,0); ex(SX0+3); wread(0,1)
    ex(SX1); wread(1,0); ex(SX1+1); wread(1,1); ex(SX1+2); cvt(PX,SX0,SX0+1); ex(SX1+3); cvt(PX+1,SX0+2,SX0+3)
    pkf(SM); cvt(PX+2,SX1,SX1+1); pkf(SM+2); cvt(PX+3,SX1+2,SX1+3)
    if fast: fs(A,opt,"expx")
    LT=ACCV
    z=lambda r: A(f"v_mov_b64 {vr(r,2)}, 0")
    lg.wait(tvx)
    ex(SM); mm(LT,ONES,PX,True)
    ex(SM+1); mm(OACC,VX,PX,True)
    ex(SM+2); mm(OACC+4,VX+4,PX,True)
    ex(SM+3); mm(OACC+8,VX+8,PX,True)
    cvt(PM,SM,SM+1); cvt(PM+1,SM+2,SM+3)
    mm(OACC+12,VX+12,PX,True)
    def mm16(d,a,b): A(f"v_mfma_f32_16x16x16_bf16 {vr(d,4)}, {vr(a,2)}, {vr(b,2)}, {vr(d,4)}")
    wread(2,0); wread(2,1)
    lg.wait(tvm)
    mm16(LT,HALF,PM); wread(3,0); z(20)
    mm16(OACC,VM,PM); wread(3,1); z(22)
    mm16(OACC+4,VM+2,PM); wread(4,0); z(24)
    mm16(OACC+8,VM+4,PM); wread(4,1); z(26)
    mm16(OACC+12,VM+6,PM)
    wread(5,0); wread(5,1)
    A(f"v_rcp_f32 v{RI}, v{LT}")
    z(28); z(30)
    if fast: fs(A,opt,"pv")
    def pkm(r): A(f"v_pk_mul_f32 {vr(r,2)}, {vr(r,2)}, {vr(RI,2)} op_sel_hi:[1,0]")
    for r in range(0,8,2): pkm(OACC+r)
    for i in range(4): cvt(OACC+i,OACC+2*i,OACC+2*i+1)
    WACC=20
    def wo(u):
        p,P=WORD[u]
        if u<6: lg.wait(wtok[u])
        smf(WACC+4*p,OACC+4*P,vr(WB[u],8) if u<6 else wop("O",u))
    pkm(OACC+8); pkm(OACC+10)
    wo(0)
    pkm(OACC+12); pkm(OACC+14)
    wo(1)
    cvt(OACC+4,OACC+8,OACC+9); cvt(OACC+5,OACC+10,OACC+11)
    wo(2)
    cvt(OACC+6,OACC+12,OACC+13); cvt(OACC+7,OACC+14,OACC+15)
    z(32); z(34)
    if fast: fs(A,opt,"a1")
    wo(3)
    A(f"s_add_u32 {sT[0]}, {sPA}, {sPstO}\ns_add_u32 {sT[1]}, {sT[0]}, {8*2048}")
    z(36)
    wo(4)
    A(f"s_add_u32 {sT[2]}, {sT[0]}, {16*2048}\ns_mov_b32 {sT[5]}, 0xfffffffe")
    z(38)
    wo(5)
    A(f"s_add_u32 {sKM}, {sKM}, 2048\ns_add_u32 {sVM}, {sVM}, 4096\ns_add_u32 {sS}, {sS}, 1")
    SEL,RA,XP,XL,LP=80,84,85,86,87
    lg.issue(f"ds_read_b128 {vr(SEL,4)}, v{vWO}")
    wo(6)
    A(f"s_add_u32 {sT[3]}, {sPA}, {sRdO}\ns_add_u32 {sT[4]}, {sXB}, {sXPO}")
    mn=lambda r: A(f"v_min_u32 v{r}, {sT[5]}, v{r}")
    cvt(20,20,21); cvt(21,22,23)
    wo(7)
    cvt(22,24,25); cvt(23,26,27)
    lg.issue(f"ds_read_b128 {vr(RA,4)}, v{vWO} offset:1024")
    wo(8)
    mn(20)
    vm.issue(f"buffer_store_dwordx4 {vr(20,4)}, v{vP0}, {WS}, {sT[0]} offen{LC}")
    wo(9)
    A(f"v_xor_b32 v{vKV}, {KVX}, v{vKV}")
    cvt(28,28,29); cvt(29,30,31); mn(28); cvt(30,32,33); cvt(31,34,35)
    vm.issue(f"buffer_store_dwordx4 {vr(28,4)}, v{vP0}, {WS}, {sT[1]} offen{LC}")
    cvt(36,36,37); cvt(37,38,39); mn(36)
    vm.issue(f"buffer_store_dwordx2 {vr(36,2)}, v{vP2}, {WS}, {sT[2]} offen{LC}")
    if fast: fs(A,opt,"stores"); ts(A,opt,1)
    def prep():
        qk_preload(A,Cnt(A,"lgkmcnt",15))
        A(f"ds_read_b128 {vr(SENT,4)}, v{vWO} offset:2048")
        for i in range(0,12,2): z(ACCQ+i)
    RL,RACC=48,40
    A(f"""
s_cmp_eq_u32 {sW}, 3
s_cbranch_scc1 L_plain{X}
s_add_u32 {sT[0]}, {sXB}, {sXO}
s_add_u32 {sT[1]}, {sLM}, {sLPO}
s_mov_b32 {sSpin}, 0
s_waitcnt lgkmcnt(0)""")
    if 'WA' in opt: A(f"s_waitcnt vmcnt({opt['WA']})")
    if opt.get('dA',0): A(f"s_sleep {opt['dA']}")
    if fast: ts(A,opt,2)
    A(f"L_pollA{X}:")
    for j in range(4): A(f"buffer_load_dwordx4 {vr(RL+4*j,4)}, v{RA}, {WS}, {sT[3]} offen offset:{j*512} sc1")
    for j in range(4):
        A(f"s_waitcnt vmcnt({3-j})")
        if j==3: A(f"v_max3_u32 v64, v64, v{RL+8}, v{RL+12}")
        mm(RACC,SEL,RL+4*j,j==0)
        if j==1: A(f"v_max_u32 v64, v{RL}, v{RL+4}")
    A(f"""v_cmp_eq_u32 vcc, -1, v64
s_cbranch_vccnz L_retryA{X}
v_cvt_pk_bf16_f32 v66, v{RACC}, v{RACC+1}
v_cvt_pk_bf16_f32 v67, v{RACC+2}, v{RACC+3}
v_min_u32 v66, {sT[5]}, v66
s_mov_b32 exec_hi, 0
buffer_store_dwordx2 v[66:67], v{XP}, {WS}, {sT[4]} offen sc1
s_mov_b32 exec_hi, -1""")
    if fast: ts(A,opt,3)
    if opt.get('prof'): A(f"s_add_u32 s94, s94, {sSpin}")
    A(f"s_mov_b32 {sSpin}, 0")
    for i in range(0,12,2): z(ACCQ+i)
    if opt.get('WB',0): A("s_waitcnt vmcnt(0)")
    if opt.get('dB',6): A(f"s_sleep {opt.get('dB',6)}")
    A(f"""L_pollB{X}:
buffer_load_dwordx4 v[68:71], v{XL}, {WS}, {sT[0]} offen sc1
s_waitcnt vmcnt(0)""")
    mm(RACC,SEL,68,True)
    A(f"""v_cmp_eq_u32 vcc, -1, v68
s_cbranch_vccnz L_retryB{X}
v_cvt_pk_bf16_f32 v66, v{RACC}, v{RACC+1}
v_cvt_pk_bf16_f32 v67, v{RACC+2}, v{RACC+3}
v_min_u32 v66, {sT[5]}, v66
s_mov_b32 exec_hi, 0
buffer_store_dwordx2 v[66:67], v{LP}, {WS}, {sT[1]} offen{LC}
s_mov_b32 exec_hi, -1
s_barrier""")
    if opt.get('prof'): A(f"s_add_u32 s63, s63, {sSpin}")
    qk_preload(A,Cnt(A,"lgkmcnt",15))
    A(f"ds_read_b128 {vr(SENT,4)}, v{vWO} offset:2048")
    if opt.get('dC',0): A(f"s_sleep {opt['dC']}")
    A(f"L_gather{X}:")
    if fast: ts(A,opt,4)
    A(f"""
s_add_u32 {sT[0]}, {sLM}, {sMLO}
s_mov_b32 {sSpin}, 0
L_pollC{X}:
buffer_load_dwordx4 v[80:83], v{vL16}, {WS}, {sT[0]} offen sc1
buffer_load_dwordx4 v[84:87], v{vL16}, {WS}, {sT[0]} offen offset:1024 sc1
buffer_load_dwordx2 v[88:89], v{vL8}, {WS}, {sT[0]} offen offset:2048 sc1
s_waitcnt vmcnt(2)
ds_write_b128 v{vMW16}, v[80:83]
s_waitcnt vmcnt(1)
ds_write_b128 v{vMW16}, v[84:87] offset:1024
s_waitcnt vmcnt(0)
ds_write_b64 v{vMW8}, v[88:89]
v_max3_u32 v90, v80, v84, v88
v_cmp_eq_u32 vcc, -1, v90
s_cbranch_vccnz L_retryC{X}""")
    if opt.get('prof'): A(f"s_add_u32 s95, s95, {sSpin}")
    if fast: ts(A,opt,5); ts_flush(A,opt)
    A(f"s_branch L_step{X}\nL_plain{X}:")
    if fast: ts(A,opt,2); ts(A,opt,3)
    prep()
    A("s_barrier")
    if opt.get('dCn',2): A(f"s_sleep {opt.get('dCn',2)}")
    A(f"s_branch L_gather{X}\nL_kv_slow{X}:")
    wait_kv(A,sT[4],79,0x103)
    A("s_endpgm" if NOHK else f"s_branch L_kv_ready{X}")
    for n,code in (("A",0x104),("B",0x105),("C",0x106)):
        A(f"L_retry{n}{X}:")
        spin_tail(A,sSpin,f"L_poll{n}{X}",code)
```

```python
import sys
from common import *
import chain, chain2, bulk

def build(opt):
    A=Asm()
    K=NAME+"_kernel"
    A(f"; @launch grid=(256,1,1) block=(256,1,1) lds=163840")
    A('.amdgcn_target "amdgcn-amd-amdhsa--gfx950"')
    kernel_begin(A,K)
    A(f"""
s_cmp_ge_u32 s2, 256
s_cbranch_scc1 L_exit
s_load_dwordx16 s[64:79], s[0:1], 0
s_load_dwordx8 s[80:87], s[0:1], 64
s_load_dwordx4 s[88:91], s[0:1], 96
v_lshrrev_b32 v1, 6, v0
s_nop 0
v_readfirstlane_b32 {sW}, v1
s_waitcnt lgkmcnt(0)
s_add_u32 s{S_WS}, s{P_WSP}, {PAGE-1}
s_addc_u32 s{S_WS+1}, s{P_WSP+1}, 0
s_and_b32 s{S_WS}, s{S_WS}, {hex(0x100000000-PAGE)}
s_and_b32 s{S_WS+1}, s{S_WS+1}, 0xffff
s_mov_b32 s{S_WS+2}, {hex(WS_SIZE)}
s_mov_b32 s{S_WS+3}, 0x20000
""")
    srd(A,S_DB,P_DBG,256)
    if opt.get('prof'): A("s_memrealtime s[96:97]\ns_waitcnt lgkmcnt(0)")
    bulk.rstamp(A,opt,0)
    A(f"""
s_and_b32 s20, s2, 7
s_lshr_b32 s21, s2, 3
s_cmp_ge_u32 s20, 4
s_cbranch_scc1 L_side_b
s_cmp_ge_u32 s21, 16
s_cbranch_scc1 L_side_a_rest
s_lshr_b32 s22, s21, 1
s_lshl_b32 {chain.sH}, s20, 3
s_add_u32 {chain.sH}, {chain.sH}, s22
s_and_b32 {chain.sC}, s21, 1
s_lshl_b32 {chain.sB}, s20, 4
s_add_u32 {chain.sB}, {chain.sB}, s21
""")
    if opt.get('roles',255)&1: (chain2 if opt.get('h4',0) else chain).role_chain(A,opt)
    else: A('s_endpgm')
    roles=opt.get('roles',255)
    A(f"""
L_side_a_rest:
s_lshl_b32 s17, s20, 3
s_and_b32 s22, s21, 7
s_add_u32 s17, s17, s22
s_cmp_lt_u32 s21, 24
s_cbranch_scc1 L_role_Q
s_cmp_lg_u32 s17, 31
s_cbranch_scc1 {"L_exit" if opt.get('kv',1) else "L_role_K"}
""")
    if roles&64: bulk.probe_side(A,opt)
    A("s_endpgm\nL_role_Q:")
    if roles&2: bulk.role_proj(A,"Q",opt)
    else: A("s_endpgm")
    A("L_role_K:")
    if roles&4 and not opt.get('kv',1): bulk.role_proj(A,"K",opt)
    else: A("s_endpgm")
    A(f"""
L_side_b:
s_sub_u32 s20, s20, 4
s_cmp_eq_u32 s20, 3
s_cbranch_scc1 L_die7
s_cmp_lt_u32 s21, 20
s_cbranch_scc1 L_role_fin
s_lshl_b32 s17, s20, 3
s_add_u32 s17, s17, s21
s_sub_u32 s17, s17, 20
s_cmp_lt_u32 s21, 28
s_cbranch_scc1 L_role_V
s_lshl_b32 s17, s20, 2
s_add_u32 s17, s17, s21
s_sub_u32 s17, s17, 28
s_branch L_role_F
L_die7:
s_add_u32 s17, s21, 24
s_cmp_lt_u32 s21, 8
s_cbranch_scc1 L_role_V
s_add_u32 s17, s21, 4
s_cmp_lt_u32 s21, 23
s_cbranch_scc1 L_role_F
s_mov_b32 s17, 31
s_cmp_eq_u32 s21, 23
s_cbranch_scc1 {"L_exit" if opt.get('kv',1) else "L_role_K"}
s_cmp_ge_u32 s21, 28
s_cbranch_scc1 L_exit
s_add_u32 s19, s21, 36
s_mov_b32 s18, 3
s_branch L_aux
L_role_fin:
s_mov_b32 s17, s21
s_mov_b32 s18, s20
s_mul_i32 s19, s20, 20
s_add_u32 s19, s19, s21
L_aux:
""")
    if roles&128: bulk.aux_work(A,"s19",opt)
    A("s_cmp_eq_u32 s18, 3\ns_cbranch_scc1 L_exit")
    if roles&32: bulk.role_final(A,opt)
    else: A("s_endpgm")
    A("L_role_V:")
    if roles&8 and opt.get('kv',1): bulk.role_kv(A,opt)
    elif roles&8: bulk.role_proj(A,"V",opt)
    else: A("s_endpgm")
    A("L_role_F:")
    if roles&16: bulk.role_proj(A,"F",opt)
    else: A("s_endpgm")
    A("L_exit:\ns_endpgm")
    kernel_desc(A,K,512,256)
    lines,n=fix_hazards(A.lines, verbose=opt.get('verbose',False))
    print("inserted nops:",n,"lines:",len(lines),file=sys.stderr)
    return "\n".join(lines)+"\n"
if __name__=="__main__":
    out=sys.argv[1] if len(sys.argv)>1 else "out.s"
    opt={}
    for a in sys.argv[2:]:
        k,v=a.split("="); opt[k]=int(v)
    open(out,"w").write(build(opt))
```

```python
from common import *
WS=f"s[{S_WS}:{S_WS+3}]"; DB=f"s[{S_DB}:{S_DB+3}]"; TS=f"s[{S_T}:{S_T+3}]"
sI="s17"
sT=[f"s{i}" for i in range(50,60)]
sSpin="s62"
LOG2E=1.4426950408889634

def poll_ge(A,vaddr,vtmp,need,srd,code,sleep=4,soff="0"):
    L=A.label("L_pw"); ok=A.label("L_pok")
    A(f"s_mov_b32 {sSpin}, 0\n{L}:\nbuffer_load_dword {vtmp}, {vaddr}, {srd}, {soff} offen sc1\ns_waitcnt vmcnt(0)")
    A(f"v_cmp_gt_u32 vcc, {need}, {vtmp}\ns_cbranch_vccz {ok}")
    spin_tail(A,sSpin,L,code,sleep=sleep)
    A(f"{ok}:")

def wg_wait(A,vaddr,vtmp,need,srd,code,sleep,first=0):
    L=A.label("L_ww")
    A(f"s_cmp_lg_u32 {sW}, 0\ns_cbranch_scc1 {L}")
    poll_ge(A,vaddr,vtmp,need,srd,code,sleep=sleep)
    A(f"{L}:\ns_barrier")

def rstamp(A,opt,k):
    if not opt.get('prof'): return
    L=A.label("L_rs")
    A(f"""s_cmp_lg_u32 {sW}, 0
s_cbranch_scc1 {L}
s_memrealtime s[98:99]
s_waitcnt lgkmcnt(0)
s_lshl_b32 s99, s2, 6
s_add_u32 s99, s99, {PROF+0xC0000+4*k}
v_mov_b32 v126, s98
v_mov_b32 v127, 0
s_mov_b64 exec, 1
buffer_store_dword v126, v127, {WS}, s99 offen
s_mov_b64 exec, -1
{L}:""")

def rstamp_at(A,opt,k,sS,val):
    if opt.get('prof')!=5: return
    L=A.label("L_ra")
    A(f"s_cmp_lg_u32 {sS}, {val}\ns_cbranch_scc1 {L}\ns_memtime s[{64+2*k}:{65+2*k}]\n{L}:")
def rflush(A,opt,n):
    if opt.get('prof')!=5: return
    A(f"s_waitcnt lgkmcnt(0)\ns_lshl_b32 s99, s2, 8\ns_lshl_b32 s98, {sW}, 6\ns_add_u32 s99, s99, s98\ns_add_u32 s99, s99, {PROF+0xE0000}\nv_mov_b32 v127, 0\ns_mov_b64 exec, 1")
    for k in range(n): A(f"v_mov_b32 v126, s{64+2*k}\nbuffer_store_dword v126, v127, {WS}, s99 offen offset:{4*k}")
    A("s_waitcnt vmcnt(0)\ns_mov_b64 exec, -1")

def xlane_sum(A,v,t):
    A(f"""v_add_f32_dpp {v}, {v}, {v} row_ror:8 row_mask:0xf bank_mask:0xf
v_mov_b32 {t}, {v}
v_permlane16_swap_b32 {v}, {t}
v_add_f32 {v}, {v}, {t}
v_mov_b32 {t}, {v}
v_permlane32_swap_b32 {v}, {t}
v_add_f32 {v}, {v}, {t}""")

def aux_work(A,sA,opt):
    RAW,X=16,64
    srd(A,S_T,P_X,2048*1280)
    A(f"""
v_and_b32 v10, 63, v0
v_and_b32 v1, 7, v10
v_lshrrev_b32 v2, 3, v10
v_mul_u32_u24 v3, 1280, v1
v_lshl_add_u32 v3, v2, 4, v3
s_lshl_b32 {sT[0]}, {sA}, 2
s_add_u32 {sT[0]}, {sT[0]}, {sW}
s_mul_i32 {sT[0]}, {sT[0]}, {8*1280}
""")
    for j in range(10): A(f"buffer_load_dwordx4 {vr(RAW+4*j,4)}, v3, {TS}, {sT[0]} offen offset:{128*j}")
    A(f"""
v_mov_b32 v4, 0
v_mov_b32 v5, 0
v_mov_b32 v6, 0
v_mov_b32 v7, 0
v_lshlrev_b32 v8, 4, v0
v_mov_b32 v9, 0x7ffffff0
v_cmp_gt_u32 vcc, 24, v0
v_cndmask_b32 v8, v9, v8, vcc
s_mul_i32 {sT[1]}, {sA}, 384
s_add_u32 {sT[1]}, {sT[1]}, {FLAGS}
buffer_store_dwordx4 v[4:7], v8, {WS}, {sT[1]} offen sc1
v_lshrrev_b32 v4, 1, v2
v_lshlrev_b32 v4, 10, v4
v_and_b32 v5, 1, v2
v_lshl_add_u32 v4, v5, 9, v4
v_lshl_add_u32 v4, v1, 4, v4
s_mul_i32 {sT[2]}, {sA}, 40960
s_lshl_b32 {sT[3]}, {sW}, 7
s_add_u32 {sT[2]}, {sT[2]}, {sT[3]}
s_add_u32 {sT[2]}, {sT[2]}, {XNF}
""")
    (ring_reset4 if opt.get('h4',0) else ring_reset)(A,sA)
    for j in range(10):
        A(f"s_waitcnt vmcnt({(14 if opt.get('h4',0) else 17)-j})")
        for k in range(4):
            A(f"v_lshlrev_b32 v{X+8*j+2*k}, 16, v{RAW+4*j+k}\nv_and_b32 v{X+8*j+2*k+1}, 0xffff0000, v{RAW+4*j+k}")
    A(f"v_pk_add_f32 v[6:7], {vr(X,2)}, {vr(X+2,2)}")
    for i in range(4,80,2): A(f"v_pk_add_f32 v[6:7], v[6:7], {vr(X+i,2)}")
    A("v_add_f32 v6, v6, v7"); xlane_sum(A,"v6","v7")
    A(f"v_mul_f32 v6, {hex(f2u(1/640))}, v6")
    A(f"v_pk_add_f32 v[12:13], {vr(X,2)}, v[6:7] op_sel_hi:[1,0] neg_lo:[0,1] neg_hi:[0,1]\nv_pk_mul_f32 v[8:9], v[12:13], v[12:13]")
    for i in range(2,80,2):
        A(f"v_pk_add_f32 v[12:13], {vr(X+i,2)}, v[6:7] op_sel_hi:[1,0] neg_lo:[0,1] neg_hi:[0,1]\nv_pk_fma_f32 v[8:9], v[12:13], v[12:13], v[8:9]")
    A("v_add_f32 v8, v8, v9"); xlane_sum(A,"v8","v9")
    A(f"""
v_mul_f32 v8, {hex(f2u(1/640))}, v8
v_cvt_pk_bf16_f32 v6, v6, v6
v_and_b32 v6, 0xffff0000, v6
v_cvt_pk_bf16_f32 v8, v8, v8
v_and_b32 v8, 0xffff0000, v8
v_add_f32 v8, {hex(f2u(1e-5))}, v8
v_cvt_pk_bf16_f32 v8, v8, v8
v_and_b32 v8, 0xffff0000, v8
v_sqrt_f32 v8, v8
v_cvt_pk_bf16_f32 v8, v8, v8
v_and_b32 v8, 0xffff0000, v8
v_rcp_f32 v8, v8
""")
    for j in range(10):
        for k in range(4):
            r=X+8*j+2*k
            A(f"""v_pk_add_f32 {vr(r,2)}, {vr(r,2)}, v[6:7] op_sel_hi:[1,0] neg_lo:[0,1] neg_hi:[0,1]
v_cvt_pk_bf16_f32 v12, v{r}, v{r+1}
v_lshlrev_b32 v{r}, 16, v12
v_and_b32 v{r+1}, 0xffff0000, v12
v_pk_mul_f32 {vr(r,2)}, {vr(r,2)}, v[8:9] op_sel_hi:[1,0]
v_cvt_pk_bf16_f32 v{RAW+4*j+k}, v{r}, v{r+1}""")
        A(f"buffer_store_dwordx4 {vr(RAW+4*j,4)}, v4, {WS}, {sT[2]} offen sc1")
        if j<9: A(f"s_add_u32 {sT[2]}, {sT[2]}, 4096")
    A(f"""
s_waitcnt vmcnt(0)
s_barrier
s_cmp_lg_u32 {sW}, 0
s_cbranch_scc1 L_aux1
v_mov_b32 v4, 1
v_mov_b32 v5, {D_C1}
s_mov_b64 exec, 1
buffer_atomic_add v4, v5, {DB}, 0 offen sc1
s_mov_b64 exec, -1
L_aux1:
""")
    rstamp(A,opt,9)

def ring_reset(A,sA):
    A(f"""
v_mov_b32 v56, -1
v_mov_b32 v57, -1
v_mov_b32 v58, -1
v_mov_b32 v59, -1
v_lshrrev_b32 v60, 4, v10
v_lshlrev_b32 v60, 14, v60
v_bfe_u32 v61, v10, 3, 1
v_lshl_add_u32 v60, v61, 13, v60
v_and_b32 v62, 7, v10
v_lshl_add_u32 v60, v62, 4, v60
s_mul_i32 s21, {sW}, {20*16384}
s_lshl_b32 s22, {sA}, 7
s_add_u32 s21, s21, s22
""")
    for k in range(5):
        A(f"s_add_u32 s23, s21, {k*4*16384}\nbuffer_store_dwordx4 v[56:59], v60, {WS}, s23 offen sc1")
    A(f"""
s_lshl_b32 s23, {sW}, 6
s_add_u32 s23, s23, {sA}
s_cmp_lt_u32 s23, 80
s_cselect_b32 s24, 16, 0
v_mov_b32 v61, 0x7ffffff0
v_cmp_gt_u32 vcc, s24, v10
v_cndmask_b32 v60, v61, v60, vcc
s_min_u32 s23, s23, 79
s_mul_i32 s24, s23, 3277
s_lshr_b32 s24, s24, 16
s_mul_i32 s25, s24, 20
s_sub_u32 s23, s23, s25
s_lshl_b32 s23, s23, 7
s_lshr_b32 s25, s24, 1
s_lshl_b32 s25, s25, 14
s_add_u32 s23, s23, s25
s_and_b32 s25, s24, 1
s_lshl_b32 s25, s25, 12
s_add_u32 s23, s23, s25
s_add_u32 s23, s23, {80*16384}
buffer_store_dwordx4 v[56:59], v60, {WS}, s23 offen sc1
s_cmp_eq_u32 {sW}, 2
s_cselect_b32 s24, 16, 0
v_lshlrev_b32 v60, 13, v10
v_and_b32 v60, 0x10000, v60
v_lshrrev_b32 v60, 3, v60
v_lshl_add_u32 v60, v62, 4, v60
v_cmp_gt_u32 vcc, s24, v10
v_cndmask_b32 v60, v61, v60, vcc
s_lshr_b32 s23, {sA}, 5
s_lshl_b32 s23, s23, 14
s_and_b32 s24, {sA}, 31
s_lshl_b32 s24, s24, 8
s_add_u32 s23, s23, s24
s_add_u32 s23, s23, {112*16384}
buffer_store_dwordx4 v[56:59], v60, {WS}, s23 offen sc1
""")

def ring_reset4(A,sA):
    import chain2 as H
    A(f"""
v_mov_b32 v56, -1
v_mov_b32 v57, -1
v_mov_b32 v58, -1
v_mov_b32 v59, -1
v_and_b32 v62, 7, v10
v_lshlrev_b32 v62, 4, v62
v_lshrrev_b32 v63, 3, v10
v_lshl_add_u32 v60, v63, 11, v62
v_mov_b32 v61, 0x7ffffff0
s_lshr_b32 s20, {sA}, 4
s_and_b32 s21, {sA}, 15
s_mul_i32 s22, s20, {H.PAGR}
s_lshl_b32 s23, s21, 7
s_add_u32 s22, s22, s23
s_mul_i32 s23, {sW}, {20*2048}
s_add_u32 s22, s22, s23
s_add_u32 s22, s22, {H.PAB}
buffer_store_dwordx4 v[56:59], v60, {WS}, s22 offen sc1
s_add_u32 s22, s22, {8*2048}
buffer_store_dwordx4 v[56:59], v60, {WS}, s22 offen sc1
s_add_u32 s22, s22, {8*2048}
v_cmp_gt_u32 vcc, 32, v10
v_cndmask_b32 v60, v61, v60, vcc
buffer_store_dwordx4 v[56:59], v60, {WS}, s22 offen sc1
s_lshr_b32 s22, s21, 1
s_lshl_b32 s22, s22, 14
s_and_b32 s23, s21, 1
s_lshl_b32 s23, s23, 12
s_add_u32 s22, s22, s23
s_lshl_b32 s23, s20, 7
s_add_u32 s22, s22, s23
s_lshl_b32 s23, {sW}, 13
s_add_u32 s22, s22, s23
s_lshl_b32 s23, s20, 15
s_mul_i32 s24, s21, 640
s_add_u32 s23, s23, s24
s_add_u32 s23, s23, {H.LMB}
s_cmp_eq_u32 {sW}, 2
s_cselect_b32 s22, s23, s22
s_cselect_b32 s25, 7, 9
s_lshr_b32 s23, {sA}, 5
s_lshl_b32 s23, s23, 14
s_and_b32 s24, {sA}, 31
s_lshl_b32 s24, s24, 8
s_add_u32 s23, s23, s24
s_add_u32 s23, s23, {112*16384}
s_cmp_eq_u32 {sW}, 3
s_cselect_b32 s22, s23, s22
s_cselect_b32 s25, 13, s25
s_cselect_b32 s24, 16, 40
v_lshlrev_b32 v60, s25, v63
v_add_u32 v60, v60, v62
v_cmp_gt_u32 vcc, s24, v10
v_cndmask_b32 v60, v61, v60, vcc
buffer_store_dwordx4 v[56:59], v60, {WS}, s22 offen sc1
""")

def probe_side(A,opt):
    A(f"""
v_and_b32 v10, 63, v0
v_mov_b32 v3, 0
v_mov_b32 v4, -1
v_mov_b32 v5, -1
ds_write_b64 v3, v[4:5]
v_mov_b32 v5, {D_C1}
s_waitcnt lgkmcnt(0)
""")
    wg_wait(A,"v5","v6",NAUX,DB,0x202,sleep=12)
    A(f"""
s_and_b32 s25, {sW}, 1
s_lshl_b32 s26, s25, 2
v_mov_b32 v8, s26
s_lshl_b32 s20, s25, 13
s_lshr_b32 s21, {sW}, 1
s_lshl_b32 s21, s21, 8
s_add_u32 s20, s20, s21
s_add_u32 s20, s20, {112*16384}
s_mov_b32 s24, 0                  ; round
s_mov_b64 exec, 1
buffer_load_dword v16, v3, {WS}, s20 offen offset:128 sc1
s_waitcnt vmcnt(0)
L_probe:
s_and_b32 s22, s24, 15
s_lshl_b32 s22, s22, 9
s_lshr_b32 s23, s24, 4
s_lshl_b32 s23, s23, 14
s_add_u32 s22, s22, s23
s_add_u32 s22, s22, s20
s_memtime s[26:27]
s_waitcnt lgkmcnt(0)
buffer_load_dword v16, v3, {WS}, s22 offen sc1
s_waitcnt vmcnt(0)
s_memtime s[28:29]
s_waitcnt lgkmcnt(0)
s_sub_u32 s23, s28, s26
v_mov_b32 v7, s23
ds_min_u32 v8, v7
s_waitcnt lgkmcnt(0)
s_barrier
ds_read_b64 v[6:7], v3
s_waitcnt lgkmcnt(0)
v_readfirstlane_b32 s26, v6
v_readfirstlane_b32 s27, v7
s_barrier""")
    if opt.get('prof'):
        A(f"""v_mov_b32 v20, s23
s_lshl_b32 s29, s24, 2
s_add_u32 s29, s29, {sW}
s_lshl_b32 s29, s29, 2
s_add_u32 s29, s29, {PROF+0xD0000}
buffer_store_dword v20, v3, {WS}, s29 offen""")
    A(f"""
s_add_u32 s24, s24, 1
s_cmp_lt_u32 s24, 3
s_cbranch_scc1 L_probe
s_sub_i32 s28, s26, s27
s_abs_i32 s28, s28
s_min_u32 s29, s26, s27
s_lshr_b32 s29, s29, 2
s_cmp_ge_u32 s28, {"s29" if 'pgap' not in opt else opt['pgap']}
s_cbranch_scc1 L_probe_end
s_cmp_lt_u32 s24, {opt.get('prounds',32)}
s_cbranch_scc1 L_probe
L_probe_end:
s_cmp_lt_u32 s26, s27
s_cselect_b32 s21, 2, 5
""")
    if 'pol' in opt: A(f"s_mov_b32 s21, {opt['pol']}")
    if opt.get('prof'): A("s_lshl_b32 s24, s24, 4\ns_or_b32 s21, s21, s24\ns_lshr_b32 s26, s26, 2\ns_lshl_b32 s26, s26, 10\ns_or_b32 s21, s21, s26\ns_lshr_b32 s27, s27, 2\ns_lshl_b32 s27, s27, 20\ns_or_b32 s21, s21, s27")
    A(f"""
s_or_b32 s21, s21, 0x80000000
v_mov_b32 v2, s21
v_mov_b32 v5, {D_POL}
buffer_store_dword v2, v5, {DB}, 0 offen sc1
s_mov_b64 exec, -1
""")
    rstamp(A,opt,9)

def tr_base(A,dst,l,order,base):
    A(f"""v_lshrrev_b32 v11, 5, {l}
v_lshlrev_b32 v11, {9 if order==0 else 8}, v11
v_bfe_u32 v12, {l}, 2, 2
v_lshl_add_u32 v11, v12, 6, v11
v_bfe_u32 v12, {l}, 4, 1
v_lshl_add_u32 v11, v12, 5, v11
v_and_b32 v12, 3, {l}
v_lshl_add_u32 v11, v12, 3, v11
v_add_u32 {dst}, {base}, v11""")
    return 256 if order==0 else 512

def prefetch(A,sP,nw,vL16,base=0):
    G=-(-160//(nw//16))
    A(f"""s_sub_u32 {sT[0]}, {sP}, {base}
s_lshl_b32 {sT[0]}, {sT[0]}, 2
s_add_u32 {sT[0]}, {sT[0]}, {sW}
s_bitcmp1_b32 {sT[0]}, 3
s_cselect_b32 s24, s{P_WQ}, s{P_WK}
s_cselect_b32 s25, s{P_WQ+1}, s{P_WK+1}""")
    srd(A,20,24,5242880)
    A(f"""v_lshrrev_b32 v11, 4, v10
v_lshlrev_b32 v11, 13, v11
v_and_b32 v12, 15, v10
v_lshl_add_u32 v11, v12, 4, v11
s_and_b32 {sT[1]}, {sT[0]}, 7
s_lshl_b32 {sT[1]}, {sT[1]}, 10
s_add_u32 {sT[1]}, {sT[1]}, 256
s_lshr_b32 {sT[2]}, {sT[0]}, 4
s_mul_i32 {sT[2]}, {sT[2]}, {G}""")
    for i in range(G):
        if i>=48 and i%8==0: A("s_waitcnt vmcnt(40)")
        A(f"""s_add_u32 {sT[3]}, {sT[2]}, {i}
s_lshl_b32 {sT[3]}, {sT[3]}, 15
s_add_u32 {sT[3]}, {sT[3]}, {sT[1]}
buffer_load_dwordx4 v[16:19], v11, s[20:23], {sT[3]} offen""")
    n=-(-5120//nw); n+=(-n)%4
    A(f"s_waitcnt vmcnt({max(62-n,30)})")
    srd(A,S_T,P_WO,5242880)
    A(f"s_mul_i32 {sT[0]}, {sT[0]}, {n*1024}")
    for i in range(n):
        if i%4==0 and i: A(f"s_add_u32 {sT[0]}, {sT[0]}, 4096")
        if i>=32 and i%8==0: A("s_waitcnt vmcnt(54)")
        A(f"buffer_load_dwordx4 v[16:19], v{vL16}, {TS}, {sT[0]} offen offset:{(i%4)*1024}")
    A("s_waitcnt vmcnt(0)")

def role_proj(A,kind,opt):
    tag=kind
    NS=2 if kind=="Q" else 3
    vL16,vTR,vST,vFL=1,2,3,4
    ACC=16; FB=32; NF=6
    sL,sS,sXN,sSlot,sOut,sFlag,sDst=[f"s{i}" for i in range(32,39)]
    vm=Cnt(A,"vmcnt",63); lg=Cnt(A,"lgkmcnt",15)
    A(f"""
v_and_b32 v10, 63, v0
v_lshlrev_b32 v{vL16}, 4, v10
""")
    if kind=="F":
        if opt.get('pf',3): prefetch(A,sI,108,vL16)
        A(f"v_mov_b32 v5, {D_C1}")
        wg_wait(A,"v5","v6",NAUX,DB,0x214,sleep=48)
        if opt.get('gateF',0):
            A(f"s_lshl_b32 {sT[0]}, {sI}, 8\ns_add_u32 {sT[0]}, {sT[0]}, {F_KM}\nv_mov_b32 v5, {sT[0]}")
            wg_wait(A,"v5","v6",1,WS,0x215,sleep=32)
    if kind=="Q" and opt.get('qpf',1) and opt.get('qb',1): prefetch(A,sI,128,vL16)
    if kind=="Q" and opt.get('gateQ',1):
        A(f"v_mov_b32 v5, {D_POL}\ns_mov_b32 s20, 0x80000000")
        wg_wait(A,"v5","v6","s20",DB,0x216,sleep=32)
    A(f"""v_lshrrev_b32 v11, 4, v10
v_lshlrev_b32 v12, 2, v11
v_sub_u32 v12, v10, v12
v_and_b32 v12, 15, v12
s_lshl_b32 {sT[0]}, {sW}, 2
v_add_u32 v11, {sT[0]}, v11
s_lshl_b32 {sL}, {sW}, 10""")
    toks=[]
    if kind!="F":
        srd(A,S_T,{"K":P_WK,"V":P_WV,"Q":P_WQ}[kind],5242880)
        A(f"""v_lshlrev_b32 v11, 13, v11
v_lshl_add_u32 v13, v12, 4, v11
s_lshl_b32 {sT[0]}, {sI}, 8""")
        for i in range(40):
            A(f"s_add_u32 m0, {sL}, {i*4096}\ns_add_u32 {sT[1]}, {sT[0]}, {i*16*8192}")
            toks.append(vm.issue(f"buffer_load_dwordx4 v13, {TS}, {sT[1]} offen lds"))
    else:
        A(f"""v_mul_u32_u24 v11, 3456, v11
v_and_b32 v5, 7, v12
v_lshl_add_u32 v11, v5, 4, v11
s_lshl_b32 {sT[0]}, {sI}, 7
v_add_u32 v11, {sT[0]}, v11
v_cmp_gt_u32 vcc, 8, v12
v_mov_b32 v12, s{P_WG}
v_mov_b32 v13, s{P_WG+1}
v_mov_b32 v14, s{P_WU}
v_mov_b32 v15, s{P_WU+1}
v_cndmask_b32 v12, v14, v12, vcc
v_cndmask_b32 v13, v15, v13, vcc
v_add_co_u32 v12, vcc, v12, v11
v_addc_co_u32 v13, vcc, 0, v13, vcc""")
        for i in range(40):
            A(f"s_add_u32 m0, {sL}, {i*4096}\ns_nop 0")
            toks.append(vm.issue(f"global_load_lds_dwordx4 v[12:13], off"))
            if i<39: A(f"v_add_co_u32 v12, vcc, {16*3456}, v12\nv_addc_co_u32 v13, vcc, 0, v13, vcc")
    A(f"""v_bfe_u32 v11, v10, 2, 2
v_bfe_u32 v12, v10, 4, 1
v_lshlrev_b32 v12, {3 if kind=="F" else 1}, v12
v_lshl_add_u32 v12, v11, 2, v12
v_bfe_u32 v14, v10, 1, 1
v_add_u32 v12, v12, v14
s_lshl_b32 {sT[0]}, {sW}, {1 if kind=="F" else 2}
v_add_u32 v12, {sT[0]}, v12
v_and_b32 v12, 15, v12
v_lshlrev_b32 v12, 4, v12
v_lshl_add_u32 v12, v11, 8, v12
v_lshrrev_b32 v11, 5, v10
v_lshl_add_u32 v12, v11, 11, v12
v_and_b32 v11, 1, v10
v_lshl_add_u32 v{vTR}, v11, 3, v12
v_add_u32 v15, 65536, v{vTR}
v_add_u32 v14, 131072, v{vTR}""")
    ustep=1024
    if kind in "KQ":
        A(f"""v_bfe_u32 v11, v10, 4, 1
v_lshlrev_b32 v11, 12, v11
v_lshrrev_b32 v12, 5, v10
v_lshl_add_u32 v11, v12, 8, v11
v_and_b32 v12, 15, v10
v_lshl_add_u32 v{vST}, v12, 4, v11""")
    elif kind=="V":
        A(f"""v_bfe_u32 v11, v10, 4, 1
v_lshlrev_b32 v11, 10, v11
v_lshrrev_b32 v12, 5, v10
v_lshl_add_u32 v11, v12, 8, v11
v_and_b32 v12, 15, v10
v_lshl_add_u32 v{vST}, v12, 4, v11""")
    else: A(f"v_mov_b32 v{vST}, v{vL16}")
    if kind=="K": A(f"s_lshl_b32 {sOut}, {sI}, 19\ns_lshl_b32 {sT[2]}, {sW}, 10\ns_add_u32 {sOut}, {sOut}, {sT[2]}\ns_add_u32 {sOut}, {sOut}, {KXF}")
    if kind=="V": A(f"s_lshl_b32 {sOut}, {sI}, 19\ns_lshl_b32 {sT[2]}, {sW}, 11\ns_add_u32 {sOut}, {sOut}, {sT[2]}\ns_add_u32 {sOut}, {sOut}, {VXF}")
    if kind=="F": A(f"s_lshl_b32 {sOut}, {sI}, 2\ns_add_u32 {sOut}, {sOut}, {sW}\ns_lshl_b32 {sOut}, {sOut}, 10\ns_add_u32 {sOut}, {sOut}, {HF}")
    fbase={"K":F_KP,"V":F_VP,"F":F_HP,"Q":F_OP}[kind]
    A(f"s_lshl_b32 {sFlag}, {sI}, 7\ns_lshl_b32 {sT[2]}, {sW}, 2\ns_add_u32 {sFlag}, {sFlag}, {sT[2]}\ns_add_u32 {sFlag}, {sFlag}, {fbase}")
    for i in range(40):
        if i%8==0:
            vm.wait(toks[i+7]); A("s_barrier")
        for u in range(2): lg.issue(f"ds_read_b64_tr_b16 {ar(4*i+2*u,2)}, v{(vTR,15,14)[i//16]} offset:{(i%16)*4096+u*ustep}")
    rstamp(A,opt,1)
    if kind=="Q": q_setup(A)
    if kind!="F":
        A(f"v_mov_b32 v5, {D_C1}")
        wg_wait(A,"v5","v6",NAUX,DB,0x210+"KVQF".index(kind),sleep=12)
    rstamp(A,opt,2)
    if opt.get('fake'+kind):
        A(f"v_mov_b32 v6, 64\ns_mov_b64 exec, 1\nbuffer_store_dword v6, v{vL16}, {WS}, {sFlag} offen sc1\ns_waitcnt vmcnt(0)\ns_endpgm")
    A(f"""s_waitcnt lgkmcnt(0)
s_barrier
s_mul_i32 {sXN}, {sW}, 10240
s_add_u32 {sXN}, {sXN}, {XNF}
s_mul_i32 {sDst}, {sW}, 10240
s_mov_b32 {sSlot}, 0
s_mov_b32 {sS}, 0
""")
    def xdma(k):
        so=f"{sT[3]}"
        if k%4==0: A(f"s_add_u32 m0, {sDst}, {k*1024}\ns_add_u32 {so}, {sXN}, {k*1024}")
        vm.issue(f"buffer_load_dwordx4 v{vL16}, {WS}, {so} offen offset:{(k%4)*1024} lds")
    def xadv():
        A(f"""s_add_u32 {sXN}, {sXN}, 40960
s_add_u32 {sDst}, {sDst}, 40960
s_cmp_ge_u32 {sDst}, {NS*40960}
s_cselect_b32 {sT[4]}, {NS*40960}, 0
s_sub_u32 {sDst}, {sDst}, {sT[4]}""")
    QE=(kind=="Q" and opt.get('qe',0))
    Q3=(kind=="Q" and not QE)
    for n in range(NS if QE else NS-1):
        for k in range(10): xdma(k)
        xadv()
    if QE:
        A("s_mov_b32 s49, 0\ns_mov_b32 s46, 1")
        q_prefetch(A,vm,sS,early=True)
    A(f"s_waitcnt vmcnt({0 if QE else 10*(NS-2)})")
    A(f"L_{tag}_loop:")
    vm=Cnt(A,"vmcnt",63); lg=Cnt(A,"lgkmcnt",15)
    A(f"s_barrier\nv_add_u32 v5, {sSlot}, v{vL16}")
    if kind=="Q": rstamp_at(A,opt,0,sS,40)
    if Q3: A(f"s_add_u32 s46, {sS}, 1\ns_mov_b32 s49, 0")
    ft={}
    def fr(i): ft[i]=lg.issue(f"ds_read_b128 {vr(FB+4*(i%NF),4)}, v5 offset:{i*1024}")
    for i in range(NF-1): fr(i)
    for i in range(40):
        lg.wait(ft[i])
        x=vr(FB+4*(i%NF),4); w=ar(4*i,4); c="0" if i==0 else vr(ACC,16)
        if kind=="V": A(f"v_mfma_f32_32x32x16_bf16 {vr(ACC,16)}, {x}, {w}, {c}")
        else: A(f"v_mfma_f32_32x32x16_bf16 {vr(ACC,16)}, {w}, {x}, {c}")
        if i+NF-1<40: fr(i+NF-1)
        if i<10 and not QE: xdma(i)
        if Q3 and i==11: q_check(A)
        if Q3 and 12<=i<16: q_kv(A,vm,i-12)
        if Q3 and i==19: tkm=vm.issue(f"buffer_load_dword v71, v{qKMF}, {WS}, 0 offen sc1")
        if i==10:
            if not QE: xadv()
            A(f"""s_add_u32 {sSlot}, {sSlot}, 40960
s_cmp_ge_u32 {sSlot}, {NS*40960}
s_cselect_b32 {sT[4]}, {NS*40960}, 0
s_sub_u32 {sSlot}, {sSlot}, {sT[4]}""")
        if i==(20 if kind=='Q' else 30):
            A(f"s_waitcnt vmcnt({0 if QE else 15 if kind=='Q' else 10})\nv_mov_b32 v6, {sS}\ns_mov_b64 exec, 1")
            vm.issue(f"buffer_store_dword v6, v{vL16}, {WS}, {sFlag} offen sc1")
            A("s_mov_b64 exec, -1")
    cvt=lambda d,a,b: A(f"v_cvt_pk_bf16_f32 v{d}, v{a}, v{b}")
    O=56
    if kind in "KQ":
        for i in range(8): cvt(O+i,ACC+2*i,ACC+2*i+1)
    elif kind=="V":
        for i in range(2):
            cvt(O+4*i,ACC+4*i,ACC+4*i+1); cvt(O+4*i+1,ACC+4*i+2,ACC+4*i+3)
            cvt(O+4*i+2,ACC+8+4*i,ACC+9+4*i); cvt(O+4*i+3,ACC+10+4*i,ACC+11+4*i)
    else:
        for i in range(8): A(f"v_mul_f32 v{O+i}, {hex(f2u(-LOG2E))}, v{ACC+i}")
        for i in range(8): A(f"v_exp_f32 v{O+i}, v{O+i}")
        for i in range(8): A(f"v_add_f32 v{O+i}, 1.0, v{O+i}")
        for i in range(8): A(f"v_rcp_f32 v{O+i}, v{O+i}")
        for i in range(8): A(f"v_mul_f32 v{ACC+i}, v{ACC+i}, v{ACC+8+i}")
        for i in range(8): A(f"v_mul_f32 v{ACC+i}, v{ACC+i}, v{O+i}")
        for i in range(4): cvt(O+i,ACC+2*i,ACC+2*i+1)
    if kind=="Q":
        rstamp_at(A,opt,1,sS,40)
        def nxt():
            A(f"s_add_u32 s46, {sS}, 2\ns_min_u32 s46, s46, 64")
            q_prefetch(A,vm,sS,early=True)
            for k in range(10): xdma(k)
            xadv()
        if Q3: q_attention3(A,vm,lg,sS,O,opt,tkm)
        else: q_attention(A,vm,lg,sS,vST,O,sFlag,opt,nxt if QE else None)
        nst=63 if QE else 2
    else:
        nst=1 if kind=="F" else 2
        for i in range(nst): vm.issue(f"buffer_store_dwordx4 {vr(O+4*i,4)}, v{vST}, {WS}, {sOut} offen offset:{512*i} sc1")
        A(f"s_add_u32 {sOut}, {sOut}, {110592 if kind=='F' else 8192}")
    if opt.get('prof'):
        for kk,sv in ((3,0),(4,3),(5,15),(6,31),(7,47),(8,63)):
            L=A.label("L_sk"); A(f"s_cmp_lg_u32 {sS}, {sv}\ns_cbranch_scc1 {L}"); rstamp(A,opt,kk); A(f"{L}:")
    A(f"""s_add_u32 {sS}, {sS}, 1
s_cmp_lt_u32 {sS}, 64
s_waitcnt vmcnt({min(63,(11 if NS==3 else 0)+nst)})
s_cbranch_scc1 L_{tag}_loop""")
    if kind=="Q": rflush(A,opt,6)
    A(f"""s_waitcnt vmcnt(0)
v_mov_b32 v6, 64
s_mov_b64 exec, 1
buffer_store_dword v6, v{vL16}, {WS}, {sFlag} offen sc1
s_waitcnt vmcnt(0)
s_endpgm""")

def role_kv(A,opt,F=False):
    NS=3
    vL16,vTR,vSK,vSV,vFA=1,2,3,4,7
    AK,AV=16,32; FB=48; NF=6; O=72
    sL,sS,sXN,sSlot,sOK,sFlag,sDst,sOV=[f"s{i}" for i in range(32,40)]
    vm=Cnt(A,"vmcnt",63); lg=Cnt(A,"lgkmcnt",15)
    TAG="F2" if F else "KV"
    A(f"v_and_b32 v10, 63, v0\nv_lshlrev_b32 v{vL16}, 4, v10")
    if F:
        if opt.get('pf',3) and opt.get('fpf',0) and not opt.get('qpf',1): prefetch(A,sI,96,vL16)
        if opt.get('fgate',1):
            A(f"v_mov_b32 v5, {D_C1}")
            wg_wait(A,"v5","v6",NAUX,DB,0x214,sleep=48)
    else:
        srd(A,S_T,P_WK,5242880); srd(A,20,P_WV,5242880)
    A(f"""
v_lshrrev_b32 v11, 4, v10
v_lshlrev_b32 v12, 2, v11
v_sub_u32 v12, v10, v12
v_and_b32 v12, 15, v12
s_lshl_b32 {sT[0]}, {sW}, 2
v_add_u32 v11, {sT[0]}, v11
s_lshl_b32 {sL}, {sW}, 10""")
    if not F:
        A(f"v_lshlrev_b32 v11, 13, v11\nv_lshl_add_u32 v13, v12, 4, v11\ns_lshl_b32 {sT[0]}, {sI}, 8")
    else:
        A(f"""v_mul_u32_u24 v11, 3456, v11
v_and_b32 v5, 7, v12
v_lshl_add_u32 v11, v5, 4, v11
s_lshl_b32 {sT[0]}, {sI}, 8
v_add_u32 v11, {sT[0]}, v11
v_cmp_gt_u32 vcc, 8, v12
v_mov_b32 v12, s{P_WG}
v_mov_b32 v13, s{P_WG+1}
v_mov_b32 v14, s{P_WU}
v_mov_b32 v15, s{P_WU+1}
v_cndmask_b32 v12, v14, v12, vcc
v_cndmask_b32 v13, v15, v13, vcc
v_add_co_u32 v12, vcc, v12, v11
v_addc_co_u32 v13, vcc, 0, v13, vcc
s_cmp_lt_u32 {sI}, 13
s_cselect_b32 {sT[0]}, 128, 0
v_add_co_u32 v8, vcc, {sT[0]}, v12
v_addc_co_u32 v9, vcc, 0, v13, vcc""")
    toks={}
    def wdma(n):
        c,k=divmod(n,8); m,i=c&1,(c>>1)*8+k
        if F:
            r=8 if m else 12
            A(f"s_add_u32 m0, {sL}, {(n%40)*4096}\ns_nop 0")
            toks[n]=vm.issue(f"global_load_lds_dwordx4 v[{r}:{r+1}], off")
            A(f"v_add_co_u32 v{r}, vcc, {16*3456}, v{r}\nv_addc_co_u32 v{r+1}, vcc, 0, v{r+1}, vcc")
            return
        A(f"s_add_u32 m0, {sL}, {(n%40)*4096}\ns_add_u32 {sT[1]}, {sT[0]}, {i*16*8192}")
        toks[n]=vm.issue(f"buffer_load_dwordx4 v13, {'s[20:23]' if m else TS}, {sT[1]} offen lds")
    def wreg(m,i,u):
        r=160*m+4*i+2*u
        return ar(r,2) if r<256 else vr(192+r-256,2)
    for n in range(40): wdma(n)
    A(f"""v_bfe_u32 v11, v10, 2, 2
v_bfe_u32 v88, v10, 4, 1
v_lshlrev_b32 v88, {3 if F else 1}, v88
v_lshl_add_u32 v88, v11, 2, v88
v_bfe_u32 v14, v10, 1, 1
v_add_u32 v88, v88, v14
s_lshl_b32 {sT[2]}, {sW}, {1 if F else 2}
v_add_u32 v88, {sT[2]}, v88
v_and_b32 v88, 15, v88
v_lshlrev_b32 v88, 4, v88
v_lshl_add_u32 v88, v11, 8, v88
v_lshrrev_b32 v11, 5, v10
v_lshl_add_u32 v88, v11, 11, v88
v_and_b32 v11, 1, v10
v_lshl_add_u32 v{vTR}, v11, 3, v88
v_add_u32 v15, 65536, v{vTR}
v_add_u32 v14, 131072, v{vTR}""")
    if F: A(f"""
v_mov_b32 v{vSK}, v{vL16}
v_mov_b32 v88, 0x7ffffff0
s_cmp_lt_u32 {sI}, 13
s_cselect_b64 vcc, -1, 0
v_cndmask_b32 v{vSV}, v88, v{vL16}, vcc
v_lshlrev_b32 v{vFA}, 7, v10
s_cselect_b32 {sT[2]}, 2, 1
v_cmp_gt_u32 vcc, {sT[2]}, v10
v_cndmask_b32 v{vFA}, v88, v{vFA}, vcc
s_lshl_b32 {sOK}, {sI}, 3
s_add_u32 {sOK}, {sOK}, {sW}
s_lshl_b32 {sOK}, {sOK}, 10
s_add_u32 {sOK}, {sOK}, {HF}
s_add_u32 {sOV}, {sOK}, 4096
s_lshl_b32 {sFlag}, {sI}, 8
s_lshl_b32 {sT[2]}, {sW}, 2
s_add_u32 {sFlag}, {sFlag}, {sT[2]}
s_add_u32 {sFlag}, {sFlag}, {F_HP}""")
    else: A(f"""
v_bfe_u32 v11, v10, 4, 1
v_lshrrev_b32 v12, 5, v10
v_lshlrev_b32 v12, 8, v12
v_and_b32 v5, 15, v10
v_lshl_add_u32 v12, v5, 4, v12
v_lshl_add_u32 v{vSK}, v11, 12, v12
v_lshl_add_u32 v{vSV}, v11, 10, v12
v_lshlrev_b32 v{vFA}, 12, v10
s_lshl_b32 {sOK}, {sI}, 19
s_lshl_b32 {sT[2]}, {sW}, 10
s_add_u32 {sOV}, {sOK}, {sT[2]}
s_add_u32 {sOK}, {sOV}, {KXF}
s_add_u32 {sOV}, {sOV}, {sT[2]}
s_add_u32 {sOV}, {sOV}, {VXF}
s_lshl_b32 {sFlag}, {sI}, 7
s_lshl_b32 {sT[2]}, {sW}, 2
s_add_u32 {sFlag}, {sFlag}, {sT[2]}
s_add_u32 {sFlag}, {sFlag}, {F_KP}""")
    for c in range(10):
        vm.wait(toks[8*c+7]); A("s_barrier")
        if c>=1 and c+4<10:
            for n in range(8*(c+4),8*(c+5)): wdma(n)
        for k in range(8):
            n=8*c+k; m,i=c&1,(c>>1)*8+k; sl=n%40
            for u in range(2): lg.issue(f"ds_read_b64_tr_b16 {wreg(m,i,u)}, v{(vTR,15,14)[sl//16]} offset:{(sl%16)*4096+u*1024}")
        lg.waitall()
    rstamp(A,opt,1)
    if F and opt.get('fgate',1): A("s_barrier")
    else:
        A(f"v_mov_b32 v5, {D_C1}")
        wg_wait(A,"v5","v6",NAUX,DB,0x210,sleep=12)
    rstamp(A,opt,2)
    A(f"""
s_mul_i32 {sXN}, {sW}, 10240
s_add_u32 {sXN}, {sXN}, {XNF}
s_mul_i32 {sDst}, {sW}, 10240
s_mov_b32 {sSlot}, 0
s_mov_b32 {sS}, 0
""")
    def xdma(k):
        so=f"{sT[3]}"
        if k%4==0: A(f"s_add_u32 m0, {sDst}, {k*1024}\ns_add_u32 {so}, {sXN}, {k*1024}")
        vm.issue(f"buffer_load_dwordx4 v{vL16}, {WS}, {so} offen offset:{(k%4)*1024} lds")
    def xadv():
        A(f"""s_add_u32 {sXN}, {sXN}, 40960
s_add_u32 {sDst}, {sDst}, 40960
s_cmp_ge_u32 {sDst}, {NS*40960}
s_cselect_b32 {sT[4]}, {NS*40960}, 0
s_sub_u32 {sDst}, {sDst}, {sT[4]}""")
    for n in range(NS-1):
        for k in range(10): xdma(k)
        xadv()
    A(f"s_waitcnt vmcnt({10*(NS-2)})")
    A(f"L_{TAG}_loop:")
    vm=Cnt(A,"vmcnt",63); lg=Cnt(A,"lgkmcnt",15)
    A(f"s_barrier\nv_add_u32 v5, {sSlot}, v{vL16}")
    ft={}
    def fr(i): ft[i]=lg.issue(f"ds_read_b128 {vr(FB+4*(i%NF),4)}, v5 offset:{i*1024}")
    def w4(m,i):
        r=160*m+4*i
        return ar(r,4) if r<256 else vr(192+r-256,4)
    for i in range(NF-1): fr(i)
    for i in range(40):
        lg.wait(ft[i])
        x=vr(FB+4*(i%NF),4)
        A(f"v_mfma_f32_32x32x16_bf16 {vr(AK,16)}, {w4(0,i)}, {x}, {'0' if i==0 else vr(AK,16)}")
        if i+NF-1<40: fr(i+NF-1)
        if F: A(f"v_mfma_f32_32x32x16_bf16 {vr(AV,16)}, {w4(1,i)}, {x}, {'0' if i==0 else vr(AV,16)}")
        else: A(f"v_mfma_f32_32x32x16_bf16 {vr(AV,16)}, {x}, {w4(1,i)}, {'0' if i==0 else vr(AV,16)}")
        if i<10: xdma(i)
        if i==10:
            xadv()
            A(f"""s_add_u32 {sSlot}, {sSlot}, 40960
s_cmp_ge_u32 {sSlot}, {NS*40960}
s_cselect_b32 {sT[4]}, {NS*40960}, 0
s_sub_u32 {sSlot}, {sSlot}, {sT[4]}""")
        if i==14:
            A(f"s_waitcnt vmcnt(10)\nv_mov_b32 v6, {sS}\ns_mov_b64 exec, 3")
            vm.issue(f"buffer_store_dword v6, v{vFA}, {WS}, {sFlag} offen sc1")
            A("s_mov_b64 exec, -1")
    cvt=lambda d,a,b: A(f"v_cvt_pk_bf16_f32 v{d}, v{a}, v{b}")
    if F:
        for acc,va,so in ((AK,vSK,sOK),(AV,vSV,sOV)):
            for i in range(8): A(f"v_mul_f32 v{O+i}, {hex(f2u(-LOG2E))}, v{acc+i}")
            for i in range(8): A(f"v_exp_f32 v{O+i}, v{O+i}")
            for i in range(8): A(f"v_add_f32 v{O+i}, 1.0, v{O+i}")
            for i in range(8): A(f"v_rcp_f32 v{O+i}, v{O+i}")
            for i in range(8): A(f"v_mul_f32 v{acc+i}, v{acc+i}, v{acc+8+i}")
            for i in range(8): A(f"v_mul_f32 v{acc+i}, v{acc+i}, v{O+i}")
            d=O+8+(4 if acc==AV else 0)
            for i in range(4): cvt(d+i,acc+2*i,acc+2*i+1)
            vm.issue(f"buffer_store_dwordx4 {vr(d,4)}, v{va}, {WS}, {so} offen sc1")
        A(f"s_add_u32 {sOK}, {sOK}, 110592\ns_add_u32 {sOV}, {sOV}, 110592")
    else:
        for i in range(8): cvt(O+i,AK+2*i,AK+2*i+1)
        for i in range(2): vm.issue(f"buffer_store_dwordx4 {vr(O+4*i,4)}, v{vSK}, {WS}, {sOK} offen offset:{512*i} sc1")
        for i in range(2):
            cvt(O+8+4*i,AV+4*i,AV+4*i+1); cvt(O+8+4*i+1,AV+4*i+2,AV+4*i+3)
            cvt(O+8+4*i+2,AV+8+4*i,AV+9+4*i); cvt(O+8+4*i+3,AV+10+4*i,AV+11+4*i)
        for i in range(2): vm.issue(f"buffer_store_dwordx4 {vr(O+8+4*i,4)}, v{vSV}, {WS}, {sOV} offen offset:{512*i} sc1")
        A(f"s_add_u32 {sOK}, {sOK}, 8192\ns_add_u32 {sOV}, {sOV}, 8192")
    if opt.get('prof'):
        for kk,sv in ((3,0),(4,3),(5,15),(6,31),(7,47),(8,63)):
            L=A.label("L_sk"); A(f"s_cmp_lg_u32 {sS}, {sv}\ns_cbranch_scc1 {L}"); rstamp(A,opt,kk); A(f"{L}:")
    A(f"""s_add_u32 {sS}, {sS}, 1
s_cmp_lt_u32 {sS}, 64
s_waitcnt vmcnt({13 if F else 15})
s_cbranch_scc1 L_{TAG}_loop
s_waitcnt vmcnt(0)
v_mov_b32 v6, 64
s_mov_b64 exec, 3
buffer_store_dword v6, v{vFA}, {WS}, {sFlag} offen sc1
s_waitcnt vmcnt(0)
s_endpgm""")

QF,QKX,QVX,QKM,QVM = 81920, 90112, 98304, 106496, 108544
qKV,qKMF,qZR0,qZR1,qL8,qOA,qQB,qVB = 7,8,9,64,65,66,67,68
MASK=72; qONES=80; qHALF=84
sKX,sVX,sKM,sVM,sO=[f"s{i}" for i in range(40,45)]
def q_setup(A):
    NEG=hex(f2u(-1e9*128**0.5))
    A(f"""
v_and_b32 v11, 4, v10
v_lshlrev_b32 v11, 10, v11
v_and_b32 v12, 3, v10
v_lshl_add_u32 v11, v12, 2, v11
s_lshl_b32 {sT[0]}, {sI}, 7
s_add_u32 {sT[0]}, {sT[0]}, {F_KP}
v_add_u32 v{qKV}, {sT[0]}, v11
v_and_b32 v11, 4, v10
v_lshlrev_b32 v11, 5, v11
v_lshl_add_u32 v11, v12, 2, v11
s_lshl_b32 {sT[0]}, {sI}, 8
s_add_u32 {sT[0]}, {sT[0]}, {F_KM}
v_add_u32 v{qKMF}, {sT[0]}, v11
v_lshlrev_b32 v{qL8}, 3, v10
v_lshrrev_b32 v11, 4, v10
v_and_b32 v12, 1, v11
v_lshrrev_b32 v11, 1, v11
v_bfe_u32 v13, v10, 2, 2
v_and_b32 v14, 1, v10
v_and_b32 v15, 1, v13
v_lshl_add_u32 v15, v15, 1, v14
v_lshrrev_b32 v13, 1, v13
v_lshl_add_u32 v13, v12, 1, v13
v_lshlrev_b32 v13, 3, v13
v_add_u32 v13, {QKM}, v13
""")
    for u,dst in ((0,qZR0),(1,qZR1)):
        A(f"""v_lshl_add_u32 v14, v11, 1, {u}
v_xor_b32 v5, v15, v14
v_lshlrev_b32 v5, 5, v5
v_lshl_add_u32 v5, v14, 7, v5
v_add_u32 v{dst}, v5, v13""")
    A(f"""
v_lshl_add_u32 v5, v11, 1, v12
v_lshrrev_b32 v13, 1, v5
v_lshlrev_b32 v13, 10, v13
v_and_b32 v14, 1, v5
v_lshl_add_u32 v13, v14, 9, v13
v_and_b32 v14, 15, v10
v_lshl_add_u32 v13, v14, 4, v13
s_lshr_b32 {sT[0]}, {sW}, 1
s_lshl_b32 {sT[1]}, {sT[0]}, 12
s_and_b32 {sT[2]}, {sW}, 1
s_lshl_b32 {sT[3]}, {sT[2]}, 8
s_add_u32 {sT[1]}, {sT[1]}, {sT[3]}
v_add_u32 v{qOA}, {sT[1]}, v13
s_lshl_b32 {sT[3]}, {sT[2]}, 12
s_add_u32 {sT[3]}, {sT[3]}, {QF}
v_lshlrev_b32 v13, 4, v10
v_add_u32 v{qQB}, {sT[3]}, v13
s_lshl_b32 {sT[3]}, {sT[0]}, 12
s_add_u32 {sT[3]}, {sT[3]}, {QVX}
v_add_u32 v{qVB}, {sT[3]}, v13
s_lshl_b32 {sT[3]}, {sT[0]}, 11
s_add_u32 {sT[3]}, {sT[3]}, {QVM}
v_add_u32 v{qL8}, {sT[3]}, v{qL8}
s_lshl_b32 {sT[2]}, {sT[2]}, 4
v_add_u32 v14, {sT[2]}, v14
v_lshlrev_b32 v5, 2, v5
v_sub_u32 v14, v14, v5
v_mov_b32 v13, {NEG}
""")
    for t in range(2):
        for r in range(4):
            A(f"v_cmp_gt_i32 vcc, {16*t+r}, v14\nv_cndmask_b32 v{MASK+4*t+r}, 0, v13, vcc")
    for i in range(4): A(f"v_mov_b32 v{qONES+i}, 0x3f803f80")
    for i in range(2): A(f"v_mov_b32 v{qHALF+i}, 0x3f003f00")
    A(f"""s_mov_b32 s60, {hex(f2u(SCALE_LOG2E))}
s_mov_b32 s61, {hex(f2u(SCALE_LOG2E))}
s_lshl_b32 {sT[0]}, {sI}, 19
s_lshl_b32 {sT[1]}, {sW}, 11
s_add_u32 {sT[0]}, {sT[0]}, {sT[1]}
s_add_u32 {sKX}, {sT[0]}, {KXF}
s_add_u32 {sVX}, {sT[0]}, {VXF}
s_lshl_b32 {sT[0]}, {sI}, 17
s_lshl_b32 {sT[1]}, {sW}, 9
s_add_u32 {sKM}, {sT[0]}, {sT[1]}
s_add_u32 {sKM}, {sKM}, {KMF}
s_lshl_b32 {sT[0]}, {sI}, 18
s_lshl_b32 {sT[1]}, {sW}, 10
s_add_u32 {sVM}, {sT[0]}, {sT[1]}
s_add_u32 {sVM}, {sVM}, {VMF}
s_lshl_b32 {sO}, {sI}, 13
s_add_u32 {sO}, {sO}, {OF}
s_lshl_b32 {sT[0]}, {sW}, 10
s_add_u32 s45, {sT[0]}, {QF}
v_add_u32 v69, s45, v3
s_mov_b32 s47, 0
""")
def q_check(A):
    L=A.label("L_qk")
    A(f"s_cmp_ge_u32 s47, s46\ns_cbranch_scc1 {L}")
    poll_ge(A,f"v{qKV}","v6","s46",WS,0x220,sleep=4)
    A("v_readlane_b32 s47, v6, 0")
    for k in range(1,8): A(f"v_readlane_b32 s48, v6, {k}\ns_min_u32 s47, s47, s48")
    A(f"{L}:")
def q_kv(A,vm,k):
    if k==0: A(f"s_lshl_b32 {sT[0]}, {sW}, 11\ns_add_u32 m0, {sT[0]}, {QKX}\ns_nop 0")
    if k==2: A(f"s_add_u32 m0, {sT[0]}, {QVX}\ns_add_u32 {sKX}, {sKX}, 8192")
    vm.issue(f"buffer_load_dwordx4 v1, {WS}, {sKX if k<2 else sVX} offen offset:{1024*(k&1)} lds")
    if k==3: A(f"s_add_u32 {sVX}, {sVX}, 8192")
def q_attention3(A,vm,lg,sS,O,opt,tkm):
    for a in range(2): lg.issue(f"ds_write_b128 v69, {vr(O+4*a,4)} offset:{512*a}")
    L=A.label("L_km")
    vm.wait(tkm)
    A(f"v_cmp_gt_u32 vcc, s46, v71\ns_cbranch_vccz {L}")
    poll_ge(A,f"v{qKMF}","v6","s46",WS,0x221,sleep=opt.get('qs',2))
    A(f"{L}:")
    rstamp_at(A,opt,2,sS,40)
    A(f"""s_lshl_b32 {sT[0]}, {sW}, 9
s_add_u32 m0, {sT[0]}, {QKM}
s_mov_b32 exec_hi, 0
buffer_load_dwordx4 v1, {WS}, {sKM} offen lds
s_mov_b32 exec_hi, -1
s_lshl_b32 {sT[0]}, {sW}, 10
s_add_u32 m0, {sT[0]}, {QVM}
s_add_u32 {sKM}, {sKM}, 2048
buffer_load_dwordx4 v1, {WS}, {sVM} offen lds
s_add_u32 {sVM}, {sVM}, 4096
v_add_u32 v5, {QKX}, v1
s_waitcnt vmcnt(3) lgkmcnt(0)
s_barrier""")
    rstamp_at(A,opt,3,sS,40)
    lg=Cnt(A,"lgkmcnt",15)
    QB,KXr,KMr,VX,VM=88,104,136,152,168
    SX0,SX1,SM,LT,OA=16,20,24,28,176
    tk={}
    for j in range(4):
        lg.issue(f"ds_read_b128 {vr(QB+4*j,4)}, v{qQB} offset:{1024*j}")
        lg.issue(f"ds_read_b128 {vr(KXr+4*j,4)}, v5 offset:{1024*j}")
        tk[j]=lg.issue(f"ds_read_b128 {vr(KXr+16+4*j,4)}, v5 offset:{4096+1024*j}")
    mm=lambda d,a,b,c: A(f"v_mfma_f32_16x16x32_bf16 {vr(d,4)}, {vr(a,4)}, {vr(b,4)}, {c}")
    for j in range(4):
        lg.wait(tk[j])
        mm(SX0,KXr+4*j,QB+4*j,vr(MASK,4) if j==0 else vr(SX0,4))
        tvx=lg.issue(f"ds_read_b128 {vr(VX+4*j,4)}, v{qVB} offset:{1024*j}")
        mm(SX1,KXr+16+4*j,QB+4*j,vr(MASK+4,4) if j==0 else vr(SX1,4))
    m,t,mc=32,33,34
    A(f"""
v_max3_f32 v{m}, v{SX0}, v{SX0+1}, v{SX0+2}
v_max3_f32 v{t}, v{SX1}, v{SX1+1}, v{SX1+2}
v_max3_f32 v{m}, v{m}, v{SX0+3}, v{SX1+3}
s_waitcnt vmcnt(0)
s_barrier""")
    rstamp_at(A,opt,4,sS,40)
    for j in range(4):
        lg.issue(f"ds_read_b64_tr_b16 {vr(KMr+4*j,2)}, v{qZR0} offset:{512*j}")
        tk[j]=lg.issue(f"ds_read_b64_tr_b16 {vr(KMr+4*j+2,2)}, v{qZR1} offset:{512*j}")
    for T in range(4): tv=lg.issue(f"ds_read_b64 {vr(VM+2*T,2)}, v{qL8} offset:{512*T}")
    for j in range(4):
        lg.wait(tk[j])
        mm(SM,KMr+4*j,QB+4*j,"0" if j==0 else vr(SM,4))
    A(f"""
v_max3_f32 v{t}, v{t}, v{SM}, v{SM+1}
v_max3_f32 v{m}, v{m}, v{SM+2}, v{SM+3}
v_max_f32 v{mc}, v{m}, v{t}
v_max_f32 v{m}, v{m}, v{t}
v_permlane32_swap_b32 v{m}, v{mc}
v_max_f32 v{t}, v{m}, v{mc}
v_max_f32 v{m}, v{m}, v{mc}
v_permlane16_swap_b32 v{m}, v{t}
v_max_f32 v{m}, v{m}, v{t}
v_mul_f32 v{mc}, {hex(f2u(-SCALE_LOG2E))}, v{m}
""")
    for r in range(SX0,SX0+12,2): A(f"v_pk_fma_f32 {vr(r,2)}, {vr(r,2)}, s[60:61], {vr(mc,2)} op_sel_hi:[1,0,0]")
    for r in range(SX0,SX0+12): A(f"v_exp_f32 v{r}, v{r}")
    PX,PM=36,40
    for i in range(6): A(f"v_cvt_pk_bf16_f32 v{PX+i}, v{SX0+2*i}, v{SX0+2*i+1}")
    lg.wait(tv)
    mm(LT,qONES,PX,"0")
    for T in range(4): mm(OA+4*T,VX+4*T,PX,"0")
    mm16=lambda d,a,b: A(f"v_mfma_f32_16x16x16_bf16 {vr(d,4)}, {vr(a,2)}, {vr(b,2)}, {vr(d,4)}")
    mm16(LT,qHALF,PM)
    for T in range(4): mm16(OA+4*T,VM+2*T,PM)
    A(f"v_rcp_f32 v42, v{LT}")
    for r in range(OA,OA+16,2): A(f"v_pk_mul_f32 {vr(r,2)}, {vr(r,2)}, v[42:43] op_sel_hi:[1,0]")
    for i in range(8): A(f"v_cvt_pk_bf16_f32 v{OA+i}, v{OA+2*i}, v{OA+2*i+1}")
    for pp in range(2): vm.issue(f"buffer_store_dwordx4 {vr(OA+4*pp,4)}, v{qOA}, {WS}, {sO} offen offset:{2048*pp} sc1")
    A(f"s_add_u32 {sO}, {sO}, {32*8192}")
    rstamp_at(A,opt,5,sS,40)

def q_prefetch(A,vm,sS,early=False):
    L=A.label("L_qk")
    if not early: A(f"s_add_u32 s46, {sS}, 1\ns_mov_b32 s49, 0")
    A(f"s_cmp_ge_u32 s47, s46\ns_cbranch_scc1 {L}")
    poll_ge(A,f"v{qKV}","v6","s46",WS,0x220,sleep=4)
    A("v_readlane_b32 s47, v6, 0")
    for k in range(1,8): A(f"v_readlane_b32 s48, v6, {k}\ns_min_u32 s47, s47, s48")
    A(f"{L}:")
    A(f"s_lshl_b32 {sT[0]}, {sW}, 11\ns_add_u32 {sT[0]}, {sT[0]}, s49\ns_add_u32 m0, {sT[0]}, {QKX}\ns_nop 0")
    for k in range(2): vm.issue(f"buffer_load_dwordx4 v1, {WS}, {sKX} offen offset:{1024*k} lds")
    A(f"s_add_u32 m0, {sT[0]}, {QVX}\ns_add_u32 {sKX}, {sKX}, 8192")
    for k in range(2): vm.issue(f"buffer_load_dwordx4 v1, {WS}, {sVX} offen offset:{1024*k} lds")
    A(f"s_add_u32 {sVX}, {sVX}, 8192")
    if early: A("s_xor_b32 s49, s49, 24576")
def q_attention(A,vm,lg,sS,vST,O,sFlag,opt,nxt=None):
    A(f"s_add_u32 s46, {sS}, 1")
    for a in range(2): lg.issue(f"ds_write_b128 v69, {vr(O+4*a,4)} offset:{512*a}")
    if opt.get('q1',0):
        wg_wait(A,f"v{qKMF}","v6","s46",WS,0x221,sleep=opt.get('qs',2))
    else: poll_ge(A,f"v{qKMF}","v6","s46",WS,0x221,sleep=opt.get('qs',2))
    rstamp_at(A,opt,2,sS,40)
    A(f"""s_lshl_b32 {sT[0]}, {sW}, 9
s_add_u32 m0, {sT[0]}, {QKM}
s_mov_b32 exec_hi, 0
buffer_load_dwordx4 v1, {WS}, {sKM} offen lds
s_mov_b32 exec_hi, -1
s_lshl_b32 {sT[0]}, {sW}, 10
s_add_u32 m0, {sT[0]}, {QVM}
s_add_u32 {sKM}, {sKM}, 2048
buffer_load_dwordx4 v1, {WS}, {sVM} offen lds
s_add_u32 {sVM}, {sVM}, 4096
s_waitcnt vmcnt(0) lgkmcnt(0)
s_barrier""")
    rstamp_at(A,opt,3,sS,40)
    if nxt:
        A(f"s_xor_b32 s48, s49, 24576\nv_add_u32 v70, s48, v{qVB}\ns_add_u32 s48, s48, {QKX}\nv_add_u32 v5, s48, v1")
        nxt()
    else: A(f"v_add_u32 v5, {QKX}, v1\nv_mov_b32 v70, v{qVB}")
    rstamp_at(A,opt,4,sS,40)
    lg=Cnt(A,"lgkmcnt",15)
    QB,KXr,KMr,VX,VM=88,104,136,152,168
    SX0,SX1,SM,LT,OA=16,20,24,28,176
    tk={}
    for j in range(4):
        lg.issue(f"ds_read_b128 {vr(QB+4*j,4)}, v{qQB} offset:{1024*j}")
        lg.issue(f"ds_read_b128 {vr(KXr+4*j,4)}, v5 offset:{1024*j}")
        lg.issue(f"ds_read_b128 {vr(KXr+16+4*j,4)}, v5 offset:{4096+1024*j}")
        lg.issue(f"ds_read_b64_tr_b16 {vr(KMr+4*j,2)}, v{qZR0} offset:{512*j}")
        tk[j]=lg.issue(f"ds_read_b64_tr_b16 {vr(KMr+4*j+2,2)}, v{qZR1} offset:{512*j}")
        if j==1: lg.wait(tk[0])
    mm=lambda d,a,b,c: A(f"v_mfma_f32_16x16x32_bf16 {vr(d,4)}, {vr(a,4)}, {vr(b,4)}, {c}")
    for j in range(4):
        lg.wait(tk[j])
        mm(SX0,KXr+4*j,QB+4*j,vr(MASK,4) if j==0 else vr(SX0,4))
        mm(SX1,KXr+16+4*j,QB+4*j,vr(MASK+4,4) if j==0 else vr(SX1,4))
        mm(SM,KMr+4*j,QB+4*j,"0" if j==0 else vr(SM,4))
    for T in range(4): lg.issue(f"ds_read_b128 {vr(VX+4*T,4)}, v70 offset:{1024*T}")
    for T in range(4): tv=lg.issue(f"ds_read_b64 {vr(VM+2*T,2)}, v{qL8} offset:{512*T}")
    m,t,mc=32,33,34
    A(f"""
v_max3_f32 v{m}, v{SX0}, v{SX0+1}, v{SX0+2}
v_max3_f32 v{t}, v{SX1}, v{SX1+1}, v{SX1+2}
v_max3_f32 v{m}, v{m}, v{SX0+3}, v{SX1+3}
v_max3_f32 v{t}, v{t}, v{SM}, v{SM+1}
v_max3_f32 v{m}, v{m}, v{SM+2}, v{SM+3}
v_max_f32 v{mc}, v{m}, v{t}
v_max_f32 v{m}, v{m}, v{t}
v_permlane32_swap_b32 v{m}, v{mc}
v_max_f32 v{t}, v{m}, v{mc}
v_max_f32 v{m}, v{m}, v{mc}
v_permlane16_swap_b32 v{m}, v{t}
v_max_f32 v{m}, v{m}, v{t}
v_mul_f32 v{mc}, {hex(f2u(-SCALE_LOG2E))}, v{m}
""")
    for r in range(SX0,SX0+12,2): A(f"v_pk_fma_f32 {vr(r,2)}, {vr(r,2)}, s[60:61], {vr(mc,2)} op_sel_hi:[1,0,0]")
    for r in range(SX0,SX0+12): A(f"v_exp_f32 v{r}, v{r}")
    PX,PM=36,40
    for i in range(6): A(f"v_cvt_pk_bf16_f32 v{PX+i}, v{SX0+2*i}, v{SX0+2*i+1}")
    lg.wait(tv)
    mm(LT,qONES,PX,"0")
    for T in range(4): mm(OA+4*T,VX+4*T,PX,"0")
    mm16=lambda d,a,b: A(f"v_mfma_f32_16x16x16_bf16 {vr(d,4)}, {vr(a,2)}, {vr(b,2)}, {vr(d,4)}")
    mm16(LT,qHALF,PM)
    for T in range(4): mm16(OA+4*T,VM+2*T,PM)
    A(f"v_rcp_f32 v42, v{LT}")
    for r in range(OA,OA+16,2): A(f"v_pk_mul_f32 {vr(r,2)}, {vr(r,2)}, v[42:43] op_sel_hi:[1,0]")
    for i in range(8): A(f"v_cvt_pk_bf16_f32 v{OA+i}, v{OA+2*i}, v{OA+2*i+1}")
    for pp in range(2): vm.issue(f"buffer_store_dwordx4 {vr(OA+4*pp,4)}, v{qOA}, {WS}, {sO} offen offset:{2048*pp} sc1")
    A(f"s_add_u32 {sO}, {sO}, {32*8192}")
    rstamp_at(A,opt,5,sS,40)

def role_final(A,opt):
    sCG,sSet="s17","s18"
    NSET=2 if opt.get('qb',1) else 3
    vL16,vTR,vFO,vFH,vRW,vRR,vXO,vRB=1,2,3,4,5,6,7,8
    ACC=16; FB=32; NF=4; HB=128; RED=131072; NSL=32
    sL,sS,sO,sH,sX=[f"s{i}" for i in range(32,37)]
    vm=Cnt(A,"vmcnt",63); lg=Cnt(A,"lgkmcnt",15)
    A(f"""
v_and_b32 v10, 63, v0
v_lshlrev_b32 v{vL16}, 4, v10
s_mul_i32 {sL}, {sW}, 40960
""")
    ustep=tr_base(A,f"v{vTR}","v10",1,sL)
    if opt.get('gateO',0):
        A(f"v_mov_b32 v5, {D_C1}")
        wg_wait(A,"v5","v6",NAUX,DB,0x232,sleep=16)
        A(f"s_lshl_b32 {sT[0]}, {sCG}, 8\ns_add_u32 {sT[0]}, {sT[0]}, {F_KM}\nv_mov_b32 v5, {sT[0]}")
        wg_wait(A,"v5","v6",1,WS,0x233,sleep=32)
    srd(A,S_T,P_WO,5242880); srd(A,20,P_WD,1728*1280)
    A(f"""
v_lshrrev_b32 v11, 2, v10
v_and_b32 v12, 3, v10
v_mul_u32_u24 v14, 1280, v11
v_lshl_add_u32 v14, v12, 4, v14
v_lshrrev_b32 v13, 3, v11
v_lshlrev_b32 v13, 4, v13
v_and_b32 v11, 7, v11
v_add_u32 v13, v13, v11
v_mul_u32_u24 v13, 1280, v13
v_lshl_add_u32 v13, v12, 4, v13
s_lshl_b32 {sT[0]}, {sCG}, 6
s_mul_i32 {sT[1]}, {sW}, {1024*1280}
s_add_u32 {sT[1]}, {sT[1]}, {sT[0]}
s_mul_i32 {sT[2]}, {sW}, {27*16*1280}
s_add_u32 {sT[2]}, {sT[2]}, {sT[0]}
""")
    NST=40
    def wdst(n,u): return ar(4*n+2*u,2) if n<64 else vr(HB+4*(n-64)+2*u,2)
    toks={}
    def wdma(n):
        A(f"s_add_u32 m0, {sL}, {(n%NST)*1024}")
        if n<64:
            hh,i=divmod(n,8)
            A(f"s_add_u32 {sT[3]}, {sT[1]}, {(hh*128+32*(i>>1)+8*(i&1))*1280}")
            toks[n]=vm.issue(f"buffer_load_dwordx4 v13, {TS}, {sT[3]} offen lds")
        else:
            A(f"s_add_u32 {sT[3]}, {sT[2]}, {(n-64)*16*1280}")
            toks[n]=vm.issue(f"buffer_load_dwordx4 v14, s[20:23], {sT[3]} offen lds")
    for n in range(NST): wdma(n)
    pend=None
    for n in range(91):
        vm.wait(toks[n])
        for u in range(2): tk=lg.issue(f"ds_read_b64_tr_b16 {wdst(n,u)}, v{vTR} offset:{(n%NST)*1024+u*ustep}")
        if pend is not None and pend[0]+NST<91:
            lg.wait(pend[1]); wdma(pend[0]+NST)
        pend=(n,tk)
    rstamp(A,opt,1)
    srd(A,S_T,P_X,2048*1280); srd(A,20,P_OUT,2048*1280)
    A(f"""
s_waitcnt lgkmcnt(0)
s_barrier
v_and_b32 v11, 31, v10
v_lshrrev_b32 v12, 2, v11
v_and_b32 v11, 3, v11
v_lshlrev_b32 v11, 2, v11
v_lshl_add_u32 v11, v12, 7, v11
s_lshl_b32 {sT[0]}, {sW}, 10
s_add_u32 {sT[0]}, {sT[0]}, {F_OP}
v_add_u32 v{vFO}, {sT[0]}, v11
v_min_u32 v11, 26, v10
s_mul_i32 {sT[0]}, {sW}, 27
v_add_u32 v11, {sT[0]}, v11
v_lshrrev_b32 v12, 2, v11
v_and_b32 v11, 3, v11
v_lshlrev_b32 v11, 2, v11
v_lshl_add_u32 v11, v12, 7, v11
v_add_u32 v{vFH}, {F_HP}, v11
v_and_b32 v11, 31, v10
v_mul_u32_u24 v11, 144, v11
v_lshrrev_b32 v12, 5, v10
v_lshl_add_u32 v11, v12, 4, v11
s_mul_i32 {sT[0]}, {sW}, 4608
s_add_u32 {sT[0]}, {sT[0]}, {RED}
v_add_u32 v{vRW}, {sT[0]}, v11
v_lshrrev_b32 v11, 3, v0
v_and_b32 v12, 7, v0
v_mul_u32_u24 v13, 144, v11
v_lshl_add_u32 v13, v12, 4, v13
v_add_u32 v{vRR}, {RED}, v13
v_mul_u32_u24 v13, 1280, v11
v_lshl_add_u32 v13, v12, 3, v13
s_lshl_b32 {sT[0]}, {sCG}, 6
v_add_u32 v{vXO}, {sT[0]}, v13
s_lshl_b32 {sL}, {sW}, 15
v_add_u32 v{vRB}, {sL}, v{vL16}
s_mov_b32 {sS}, {sSet}
s_mul_i32 {sH}, {sS}, 110592
s_mul_i32 {sT[0]}, {sW}, {27*1024}
s_add_u32 {sH}, {sH}, {sT[0]}
s_add_u32 {sH}, {sH}, {HF}
s_add_u32 s46, {sS}, 1
""")
    vm=Cnt(A,"vmcnt",63); lg=Cnt(A,"lgkmcnt",15)
    seq=[("H",k) for k in range(27)]+[("O",k) for k in range(64)]
    dt={}
    SL=lambda n: (n+5)%NSL if n<27 else (n-27)%NSL
    def fdma(n):
        kind,k=seq[n]
        A(f"s_add_u32 m0, {sL}, {SL(n)*1024}\ns_add_u32 {sT[0]}, {sH if kind=='H' else sO}, {k*1024}")
        dt[n]=vm.issue(f"buffer_load_dwordx4 v{vL16}, {WS}, {sT[0]} offen lds")
    ft={}
    def fr(n,wait=True):
        if wait: vm.wait(dt[n])
        ft[n]=lg.issue(f"ds_read_b128 {vr(FB+4*(n%NF),4)}, v{vRB} offset:{SL(n)*1024}")
    def mf(n):
        kind,k=seq[n]
        lg.wait(ft[n])
        w=vr(HB+4*k,4) if kind=="H" else ar(4*k,4)
        A(f"v_mfma_f32_32x32x16_bf16 {vr(ACC,16)}, {w}, {vr(FB+4*(n%NF),4)}, {'0' if n==0 else vr(ACC,16)}")
    def h_ready(need,code):
        L=A.label("L_fh")
        A(f"s_cmp_ge_u32 s47, {need}\ns_cbranch_scc1 {L}")
        poll_ge(A,f"v{vFH}","v9",need,WS,code,sleep=8)
        A("v_readlane_b32 s47, v9, 0")
        for k in range(1,27): A(f"v_readlane_b32 s48, v9, {k}\ns_min_u32 s47, s47, s48")
        A(f"{L}:")
    def next_loads():
        A(f"""s_mul_i32 {sXn}, {sS}, {32*1280}
buffer_load_dword v9, v{vFO}, {WS}, 0 offen sc1
buffer_load_dwordx2 v[14:15], v{vXO}, {TS}, {sXn} offen""")
    sXn="s37"
    A("s_mov_b32 s47, 0")
    h_ready("s46",0x230)
    next_loads()
    for n in range(27): fdma(n)
    A(f"""s_waitcnt vmcnt(0)
L_fin_loop:
s_mov_b32 {sX}, {sXn}
s_lshl_b32 {sO}, {sS}, 18
s_lshl_b32 {sT[0]}, {sW}, 16
s_add_u32 {sO}, {sO}, {sT[0]}
s_add_u32 {sO}, {sO}, {OF}
s_add_u32 {sH}, {sH}, {NSET*110592}
s_add_u32 s49, {sS}, {NSET+1}
s_min_u32 s49, s49, 64
s_and_b32 s45, {sS}, -2
s_waitcnt vmcnt(28)
v_mov_b32 v12, v14
v_mov_b32 v13, v15
v_cmp_gt_u32 vcc, s46, v9
""")
    rstamp_at(A,opt,0,"s45",40)
    lg=Cnt(A,"lgkmcnt",15)
    KS=[0]; _np=min(opt.get('np3',14),27); KST=_np+2*((27-_np)//3)
    def hwait(k,extra): A(f"s_waitcnt vmcnt({min(63,26-k+(1 if k<KST else 0)+extra)})")
    A("s_cbranch_vccnz L_fin_late")
    vm=Cnt(A,"vmcnt",63)
    nx=27
    for n in range(27+NF-1):
        if n<27: hwait(n,vm.n); fr(n,False)
        if n>=NF-1: mf(n-(NF-1))
        done=n-(NF-1)
        for _ in range(2):
            if nx<27+NSL and nx-27<=5+done: fdma(nx); nx+=1
    while nx<27+NSL: fdma(nx); nx+=1
    A("L_fin_go:")
    rstamp_at(A,opt,1,"s45",40)
    assert vm.n==NSL
    NCUT=64+NF-1
    for n in range(27,NCUT):
        if n==59: rstamp_at(A,opt,5,"s45",40)
        if n<91: fr(n)
        if n>=27+NF-1:
            m_=n-(NF-1)
            mf(m_)
            if m_+NSL<91: fdma(m_+NSL)
    NP3=opt.get('np3',14)
    tail_state=(lg.n,dict(ft)); vm_tail=vm.n; dt_tail=dict(dt)
    def tail(more):
        lg.n,f2=tail_state; ft.clear(); ft.update(f2)
        vt=Cnt(A,"vmcnt",63); vt.n=vm_tail
        if more:
            h_ready("s49",0x234)
            A(f"s_add_u32 {sS}, {sS}, {NSET}\ns_add_u32 s46, {sS}, 1")
            next_loads()
        k=0
        for n in range(NCUT,91+NF-1):
            if n<91:
                A(f"s_waitcnt vmcnt({min(63,vm_tail-dt_tail[n]+((2+k) if more else 0))})"); fr(n,False)
            m_=n-(NF-1)
            mf(m_)
            if more and k<NP3 and (m_-64)%2==(0 if NP3<=14 else (m_-64)%2): fdma(k); k+=1
        rstamp_at(A,opt,6,"s45",40)
        epilogue(more,k)
    def late():
        A("L_fin_late:")
        ft.clear()
        for n in range(27+NF-1):
            if n<27: hwait(n,0); fr(n,False)
            if n>=NF-1: mf(n-(NF-1))
        poll_ge(A,f"v{vFO}","v9","s46",WS,0x231,sleep=2)
        if opt.get('prof'):
            L=A.label("L_sk"); A(f"s_cmp_lt_u32 {sS}, {64-NSET}\ns_cbranch_scc1 {L}"); rstamp(A,opt,11); A(f"{L}:")
        for n in range(27,27+NSL): fdma(n)
        A("s_branch L_fin_go")
    def epilogue(more,k0):
        rest=list(range(k0,27)) if more else []
        a3=len(rest)//3
        A("s_barrier")
        for a in range(4): A(f"ds_write_b128 v{vRW}, {vr(ACC+4*a,4)} offset:{32*a}")
        for n in rest[:a3]: fdma(n)
        A("s_waitcnt lgkmcnt(0)\ns_barrier")
        for w in range(4): A(f"ds_read_b128 {vr(FB+4*w,4)}, v{vRR} offset:{4608*w}")
        for n in rest[a3:2*a3]: fdma(n)
        KS[0]=k0+2*a3
        A(f"""
v_lshlrev_b32 v48, 16, v12
v_and_b32 v49, 0xffff0000, v12
v_lshlrev_b32 v50, 16, v13
v_and_b32 v51, 0xffff0000, v13
s_waitcnt lgkmcnt(2)
v_pk_add_f32 v[32:33], v[32:33], v[36:37]
v_pk_add_f32 v[34:35], v[34:35], v[38:39]
s_waitcnt lgkmcnt(0)
v_pk_add_f32 v[40:41], v[40:41], v[44:45]
v_pk_add_f32 v[42:43], v[42:43], v[46:47]
v_pk_add_f32 v[32:33], v[32:33], v[40:41]
v_pk_add_f32 v[34:35], v[34:35], v[42:43]
v_pk_add_f32 v[32:33], v[32:33], v[48:49]
v_pk_add_f32 v[34:35], v[34:35], v[50:51]
v_cvt_pk_bf16_f32 v32, v32, v33
v_cvt_pk_bf16_f32 v33, v34, v35
buffer_store_dwordx2 v[32:33], v{vXO}, s[20:23], {sX} offen""")
        for n in rest[2*a3:]: fdma(n)
    A(f"s_cmp_ge_u32 {sS}, {64-NSET}\ns_cbranch_scc1 L_fin_last")
    if opt.get('prof'):
        for kk,lo,hi in ((3,0,3),(4,3,6),(5,15,18),(6,30,33),(7,45,48)):
            L=A.label("L_sk"); A(f"s_sub_u32 s48, {sS}, {lo}\ns_cmp_ge_u32 s48, {NSET}\ns_cbranch_scc1 {L}"); rstamp(A,opt,kk); A(f"{L}:")
    tail(True)
    assert KS[0]==KST
    rstamp_at(A,opt,8,"s45",40)
    A("s_branch L_fin_loop\nL_fin_last:")
    tail(False)
    rstamp(A,opt,8)
    rflush(A,opt,9)
    A(f"""s_waitcnt vmcnt(0)
s_endpgm""")
    late()
```

```python
from common import *

MB, ZB, VB, KVB, KVX, WOB = 0, 10240, 14336, 40960, 0x1E000, 20480
vIDX,vL16,vL8,vMA16a,vMA8a,vMA16b,vMA8b,vZW,vZR0,vZR1,vVW,vP0,vP2,vFLG,vKV,vWO,vMW16,vMW8 = range(18)
SENT=108; S_MC=84; HALF=18; ACCQ=20; ACCK=24; ACCV=28; MF=[32,36,40]; ONES=44; KX=48; ZQ=80; ZK=96
sH,sC,sB="s17","s18","s19"
sS,sTask,sPGa,sPGb,sMa,sMb,sMc,sPubO,sMLO,sPstO,sRdO,sKX,sVX,sKM,sVM,sKMFL,sKVB = [f"s{i}" for i in range(32,49)]
sPGc="s49"; sBO="s56"; sMCl="s57"; sMC2="s58"; S_KM=8
sT=[f"s{i}" for i in range(50,60)]
sSC=60; sSpin="s62"
WORD=[(0,0),(1,0),(2,0),(0,1),(1,1),(3,0),(2,1),(3,1),(4,0),(4,1)]
OPS=[(m,t) for t in range(2,20) for m in "QK"]+[("V",t) for t in range(10)]+[("O",u) for u in range(6,10)]+[(m,t) for t in range(2) for m in "QK"]+[("O",u) for u in range(6)]
OPI={o:i for i,o in enumerate(OPS)}
def wreg(oi):
    return ar(8*oi,8) if oi<32 else vr(112+8*(oi-32),8)
def wreg_pair(oi,d):
    return ar(8*oi+d,2) if oi<32 else vr(112+8*(oi-32)+d,2)
def m_off(tt,u):
    w2,p=divmod(tt,5)
    if p<4: return 16, w2*2560+(p>>1)*1024+(p&1)*8+u*512
    return 8, w2*2560+2048+u*256

def lane_setup(A,SH=14,WOB=WOB):
    t=[108,109,110,111,100,101,102,103,104,105]
    l,n,g,x,sg,a,b,c,d,e=[f"v{i}" for i in t]
    A(f"""
v_and_b32 {l}, 63, v0
v_lshlrev_b32 v{vL16}, 4, {l}
v_lshlrev_b32 v{vL8}, 3, {l}
v_and_b32 {n}, 15, {l}
v_lshrrev_b32 {g}, 4, {l}
v_and_b32 {x}, 1, {g}
v_lshrrev_b32 {sg}, 1, {g}
v_mov_b32 {a}, 0x88888888
v_mov_b32 {b}, 0xdddddddd
v_cmp_gt_u32 vcc, 8, {n}
v_cndmask_b32 v{vIDX}, {b}, {a}, vcc
v_lshrrev_b32 {a}, 3, {n}
v_lshlrev_b32 {a}, 4, {a}
v_lshl_add_u32 {a}, {sg}, 5, {a}
v_lshl_add_u32 {a}, {x}, 3, {a}
v_and_b32 {b}, 7, {n}
v_add_u32 {a}, {a}, {b}
v_lshrrev_b32 {c}, 3, {a}
v_lshlrev_b32 {c}, {SH}, {c}
v_lshl_add_u32 v{vP0}, {b}, 4, {c}
v_lshrrev_b32 {c}, 4, {a}
v_lshlrev_b32 {c}, {SH}, {c}
v_and_b32 {d}, 15, {a}
v_lshl_add_u32 v{vP2}, {d}, 3, {c}
v_mov_b32 v106, {a}
v_lshrrev_b32 {a}, 2, {n}
v_lshl_add_u32 {b}, {sg}, 1, {x}
v_xor_b32 {b}, {b}, {a}
v_lshlrev_b32 {b}, 5, {b}
v_lshl_add_u32 {b}, {a}, 7, {b}
v_and_b32 {c}, 3, {n}
v_lshl_add_u32 {b}, {c}, 3, {b}
s_lshl_b32 {sT[0]}, {sW}, 10
s_add_u32 {sT[0]}, {sT[0]}, {ZB}
v_add_u32 v{vZW}, {sT[0]}, {b}
v_lshrrev_b32 {a}, 3, {n}
v_lshlrev_b32 {a}, 9, {a}
v_lshl_add_u32 {a}, {x}, 7, {a}
v_and_b32 {b}, 7, {n}
v_lshl_add_u32 {b}, {b}, 1, {sg}
v_lshl_add_u32 {a}, {b}, 3, {a}
s_lshr_b32 {sT[0]}, {sW}, 1
s_lshl_b32 {sT[0]}, {sT[0]}, 10
s_xor_b32 {sT[1]}, {sW}, {sC}
s_and_b32 {sT[1]}, {sT[1]}, 1
s_lshl_b32 {sT[2]}, {sT[1]}, 8
s_add_u32 {sT[0]}, {sT[0]}, {sT[2]}
s_add_u32 {sT[0]}, {sT[0]}, {VB}
v_add_u32 v{vVW}, {sT[0]}, {a}
v_lshrrev_b32 {a}, 2, {l}
v_and_b32 {a}, 3, {a}
v_and_b32 {b}, 1, {l}
; M: n' = 4g+r ; idx = (n'>>3)*16 + x*8 + (n'&7)
v_lshl_add_u32 {c}, {g}, 2, {a}
v_lshrrev_b32 {d}, 3, {c}
v_lshlrev_b32 {d}, 4, {d}
v_lshl_add_u32 {d}, {b}, 3, {d}
v_and_b32 {c}, 7, {c}
v_add_u32 {d}, {d}, {c}
s_mul_i32 {sT[2]}, {sT[1]}, 5120
s_sub_u32 {sT[3]}, {5120+MB}, {sT[2]}
s_add_u32 {sT[2]}, {sT[2]}, {MB}
v_lshl_add_u32 v{vMA16a}, {d}, 4, {sT[3]}
v_lshl_add_u32 v{vMA8a}, {d}, 3, {sT[3]}
v_lshl_add_u32 v{vMA16b}, {d}, 4, {sT[2]}
v_lshl_add_u32 v{vMA8b}, {d}, 3, {sT[2]}
v_and_b32 {c}, 1, {a}
v_lshl_add_u32 {c}, {c}, 1, {b}
v_lshrrev_b32 {d}, 1, {a}
v_lshl_add_u32 {d}, {x}, 1, {d}
v_lshlrev_b32 {d}, 3, {d}
v_add_u32 {d}, {ZB}, {d}
""")
    for u,dst in ((0,vZR0),(1,vZR1)):
        A(f"""
v_lshl_add_u32 {e}, {sg}, 1, {u}
v_xor_b32 {a}, {c}, {e}
v_lshlrev_b32 {a}, 5, {a}
v_lshl_add_u32 {a}, {e}, 7, {a}
v_add_u32 v{dst}, {a}, {d}
""")
    A(f"""
v_and_b32 {a}, 4, {l}
v_lshlrev_b32 {a}, 10, {a}
v_and_b32 {b}, 3, {l}
v_lshl_add_u32 {a}, {b}, 2, {a}
s_lshl_b32 {sT[0]}, {sH}, 7
s_add_u32 {sT[0]}, {sT[0]}, {F_KP}
v_add_u32 v{vFLG}, {sT[0]}, {a}
v_add_u32 v{vKV}, {KVB}, v{vL16}
s_mul_i32 {sT[0]}, {sW}, 40960
s_add_u32 {sT[0]}, {sT[0]}, {WOB}
v_add_u32 v{vWO}, {sT[0]}, v{vL16}
s_mul_i32 {sT[0]}, {sW}, 2560
s_add_u32 {sT[0]}, {sT[0]}, {MB}
v_add_u32 v{vMW16}, {sT[0]}, v{vL16}
s_add_u32 {sT[1]}, {sT[0]}, 2048
v_add_u32 v{vMW8}, {sT[1]}, v{vL8}
v_lshl_add_u32 v107, v106, 3, {sT[1]}
v_lshl_add_u32 v106, v106, 4, {sT[0]}
""")

OPT={}
def weights_prologue(A,WOFF=0):
    NSLOT=20
    vm=Cnt(A,"vmcnt",63); lg=Cnt(A,"lgkmcnt",15)
    l,a,b="v108","v109","v110"
    srd(A,S_T,P_MEM0,10240)
    A(f"""
v_and_b32 {a}, 15, {l}
v_lshlrev_b32 {a}, 2, {a}
v_lshrrev_b32 {b}, 4, {l}
v_and_b32 {b}, 1, {b}
v_mul_u32_u24 {b}, 5120, {b}
v_add_u32 {a}, {a}, {b}
s_mul_i32 {sT[0]}, {sW}, 320
""")
    for p in range(5):
        A(f"s_add_u32 {sT[1]}, {sT[0]}, {64*p}")
        for r in range(4):
            tk0=vm.issue(f"buffer_load_dword v{18+4*p+r}, {a}, s[{S_T}:{S_T+3}], {sT[1]} offen offset:{1280*r}")
    A(f"s_cmp_lt_u32 {sW}, 2\ns_cselect_b32 s24, s{P_WQ}, s{P_WK}\ns_cselect_b32 s25, s{P_WQ+1}, s{P_WK+1}")
    srd(A,20,24,5242880); srd(A,28,P_WV,5242880); srd(A,52,P_WO,5242880)
    sQK,sV,sO,sL,sX="s56","s57","s58","s59","s50"
    A(f"""
v_lshrrev_b32 {a}, 4, {l}
v_lshlrev_b32 {a}, 1, {a}
v_bfe_u32 {b}, {l}, 3, 1
v_lshl_add_u32 {a}, {b}, 3, {a}
v_bfe_u32 {b}, {l}, 2, 1
v_add_u32 {a}, {a}, {b}
v_lshlrev_b32 {a}, 13, {a}
v_and_b32 {b}, 3, {l}
v_lshl_add_u32 v104, {b}, 4, {a}
v_lshrrev_b32 {a}, 4, {l}
v_bfe_u32 v100, {l}, 3, 1
v_lshl_add_u32 {a}, v100, 2, {a}
v_bfe_u32 v100, {l}, 2, 1
v_lshl_add_u32 {a}, v100, 4, {a}
v_mul_u32_u24 {a}, 1280, {a}
v_lshl_add_u32 v105, {b}, 4, {a}
s_mul_i32 {sL}, {sW}, 40960
v_lshlrev_b32 {a}, 2, {l}
v_add_u32 v103, {sL}, {a}
v_lshrrev_b32 {a}, 5, {l}
v_lshlrev_b32 {a}, 1, {a}
v_bfe_u32 v100, {l}, 4, 1
v_lshl_add_u32 {a}, v100, 3, {a}
v_bfe_u32 v100, {l}, 3, 1
v_add_u32 {a}, {a}, v100
v_lshlrev_b32 {a}, 13, {a}
v_lshlrev_b32 v100, 2, v100
v_and_b32 {b}, 7, {l}
v_xor_b32 {b}, {b}, v100
v_lshl_add_u32 v102, {b}, 4, {a}
v_lshrrev_b32 {a}, 4, {l}
v_and_b32 {b}, 1, {a}
v_lshlrev_b32 {a}, 7, {a}
v_lshl_add_u32 {a}, {b}, 6, {a}
v_and_b32 {b}, 15, {l}
v_lshl_add_u32 {a}, {b}, 2, {a}
v_add_u32 v64, {sL}, {a}
v_xor_b32 v65, 64, v64
s_lshl_b32 {sQK}, {sH}, 8
s_and_b32 {sX}, {sW}, 1
s_lshl_b32 {sX}, {sX}, 7
s_add_u32 {sQK}, {sQK}, {sX}          ; h*256 + (w&1)*128
s_lshl_b32 {sV}, {sH}, 8
s_lshl_b32 {sX}, {sC}, 7
s_add_u32 {sV}, {sV}, {sX}
s_lshr_b32 {sX}, {sW}, 1
s_lshl_b32 {sX}, {sX}, 6
s_add_u32 {sV}, {sV}, {sX}            ; h*256 + c*128 + (w>>1)*64
s_xor_b32 {sX}, {sW}, {sC}
s_and_b32 {sX}, {sX}, 1
s_mul_i32 s51, {sX}, {320*8192}
s_add_u32 {sV}, {sV}, s51
s_add_u32 s49, {sQK}, s51
s_sub_u32 s51, {320*8192}, s51
s_add_u32 {sQK}, {sQK}, s51
s_lshl_b32 {sO}, {sH}, 7
s_lshl_b32 {sX}, {sC}, 6
s_add_u32 {sO}, {sO}, {sX}
s_mul_i32 {sO}, {sO}, 1280
s_mul_i32 {sX}, {sW}, 320
s_add_u32 {sO}, {sO}, {sX}            ; (h*128+64c)*1280 + 320w
""")
    ops=[]
    for m,t in OPS:
        if m in "QK": ops.append((20, sQK if t<10 else "s49",(t%10)*32*8192,None,"v102"))
        elif m=="V": ops.append((28,sV,t*32*8192,16*8192,"v104"))
        else:
            p,P=WORD[t]; ops.append((52,sO,32*P*1280+64*p,8*1280,"v105"))
    toks={}
    def dma(i):
        d,base,off,hstep,vv=ops[i]
        for hh in range(2):
            A(f"s_add_u32 m0, {sL}, {(i%NSLOT)*2048+hh*1024}")
            if hstep is None:
                k=2*(i&1)+hh
                A(f"s_add_u32 {sX}, {base}, {off+(16*(k>>1)+4*(k&1))*8192}")
            else: A(f"s_add_u32 {sX}, {base}, {off+hh*hstep}")
            toks[i]=vm.issue(f"buffer_load_dwordx4 {vv}, s[{d}:{d+3}], {sX} offen lds")
    pstamp(A,OPT,"s63")
    for i in range(NSLOT): dma(i)
    vm.wait(tk0)
    A(f"""
v_mov_b32 v100, 0x05040100
v_mov_b32 v101, 0x07060302
v_cmp_gt_u32 vcc, 32, {l}
v_cndmask_b32 v111, v101, v100, vcc
""")
    for p in range(5):
        A(f"v_perm_b32 v{38+2*p}, v{19+4*p}, v{18+4*p}, v111")
        A(f"v_perm_b32 v{39+2*p}, v{21+4*p}, v{20+4*p}, v111")
    TMP=[48,56]
    units=[]; i=0
    while i<60:
        n=2 if OPS[i][0] in "QK" else 1
        units.append(list(range(i,i+n))); i+=n
    pend=None
    def finish(u,tj):
        lg.wait(tj)
        for j in u:
            if j+NSLOT<60: dma(j+NSLOT)
        for j in u:
            if j>=50:
                for hf in range(2): lg.issue(f"ds_write_b128 v{vWO}, {vr(TMP[j&1]+4*hf,4)} offset:{WOFF+(j-50)*2048+hf*1024}")
    for u in units:
        if u[0]>=50 and pend is not None: finish(*pend); pend=None
        vm.wait(toks[u[-1]])
        for j in u:
            for d in range(0,8,2):
                dst = wreg_pair(j,d) if j<50 else vr(TMP[j&1]+d,2)
                if len(u)==2:
                    o=(u[0]%NSLOT)*8+2*d
                    tk=lg.issue(f"ds_read2st64_b32 {dst}, v{64+(j&1)} offset0:{o} offset1:{o+2}")
                else:
                    tk=lg.issue(f"ds_read2st64_b32 {dst}, v103 offset0:{(j%NSLOT)*8+d} offset1:{(j%NSLOT)*8+d+1}")
        if pend is not None: finish(*pend)
        pend=(u,tk)
    finish(*pend)
    lg.waitall()
    A("s_barrier")
    for p in range(4): A(f"ds_write_b64 v106, {vr(38+2*p,2)} offset:{(p>>1)*1024+(p&1)*8}")
    A(f"ds_write_b64 v107, {vr(46,2)}")

def kv_dma(A,vm,nw):
    WS=f"s[{S_WS}:{S_WS+3}]"
    if nw==4:
        A(f"s_lshl_b32 {sT[0]}, {sW}, 11\ns_add_u32 m0, {sKVB}, {sT[0]}\ns_add_u32 {sT[1]}, {sKX}, {sT[0]}")
        vm.issue(f"buffer_load_dwordx4 v{vL16}, {WS}, {sT[1]} offen lds")
        vm.issue(f"buffer_load_dwordx4 v{vL16}, {WS}, {sT[1]} offen offset:1024 lds")
        A(f"s_lshr_b32 {sT[0]}, {sT[0]}, 1\ns_add_u32 {sT[1]}, {sVX}, {sT[0]}\ns_add_u32 {sT[0]}, {sT[0]}, 8192\ns_add_u32 m0, {sKVB}, {sT[0]}")
        t=vm.issue(f"buffer_load_dwordx4 v{vL16}, {WS}, {sT[1]} offen lds")
    else:
        A(f"s_and_b32 {sT[0]}, {sW}, 1\ns_lshl_b32 {sT[0]}, {sT[0]}, 12\ns_add_u32 m0, {sKVB}, {sT[0]}\ns_add_u32 {sT[1]}, {sKX}, {sT[0]}")
        for k in range(4): vm.issue(f"buffer_load_dwordx4 v{vL16}, {WS}, {sT[1]} offen offset:{1024*k} lds")
        A(f"s_lshr_b32 {sT[0]}, {sT[0]}, 1\ns_add_u32 {sT[1]}, {sVX}, {sT[0]}\ns_add_u32 {sT[0]}, {sT[0]}, 8192\ns_add_u32 m0, {sKVB}, {sT[0]}")
        for k in range(2): t=vm.issue(f"buffer_load_dwordx4 v{vL16}, {WS}, {sT[1]} offen offset:{1024*k} lds")
    return t
def kv_advance(A,three=False):
    A(f"s_add_u32 {sKX}, {sKX}, 8192\ns_add_u32 {sVX}, {sVX}, 8192")
    if three: A(f"s_mov_b32 {sKVR}, {sKVB}\ns_add_u32 {sKVB}, {sKVB}, 40960\ns_cmp_eq_u32 {sKVB}, 163840\ns_cselect_b32 {sKVB}, {KVB}, {sKVB}")
    else: A(f"s_xor_b32 {sKVB}, {sKVB}, {KVX}")

def wait_kv(A,needreg,vflag,code):
    L=A.label("L_kvw")
    A(f"s_mov_b32 {sSpin}, 0\n{L}:")
    A(f"buffer_load_dword v{vflag}, v{vFLG}, s[{S_WS}:{S_WS+3}], 0 offen sc1\ns_waitcnt vmcnt(0)")
    ok=A.label("L_kvok")
    A(f"v_cmp_gt_u32 vcc, {needreg}, v{vflag}\ns_cbranch_vccz {ok}")
    spin_tail(A,sSpin,L,code,sleep=2)
    A(f"{ok}:")

def pstamp(A,opt,reg):
    if opt.get('prof')==3: A(f"s_memrealtime s[98:99]\ns_waitcnt lgkmcnt(0)\ns_mov_b32 {reg}, s98")
def role_chain(A, opt):
    WS=f"s[{S_WS}:{S_WS+3}]"
    OPT.update(opt)
    lane_setup(A)
    weights_prologue(A)
    pstamp(A,opt,"s3")
    A(f"""
v_mov_b32 v{HALF}, 0x3f003f00
v_mov_b32 v{HALF+1}, 0x3f003f00
v_mov_b32 v{ONES}, 0x3f803f80
v_mov_b32 v{ONES+1}, 0x3f803f80
v_mov_b32 v{ONES+2}, 0x3f803f80
v_mov_b32 v{ONES+3}, 0x3f803f80
s_mov_b32 s{sSC}, {hex(f2u(SCALE_LOG2E))}
s_mov_b32 s{sSC+1}, {hex(f2u(SCALE_LOG2E))}
v_and_b32 v48, 1, v108
v_mul_u32_u24 v49, {D_POL}, v48
v_mov_b32 v50, {NAUX}
v_mov_b32 v51, 0x80000000
v_cmp_eq_u32 vcc, 1, v48
v_cndmask_b32 v50, v50, v51, vcc
s_mov_b32 {sSpin}, 0
s_cmp_lg_u32 {sW}, 0
s_cbranch_scc1 L_cst_bar
L_cst:
buffer_load_dword v51, v49, s[{S_DB}:{S_DB+3}], 0 offen sc1
s_waitcnt vmcnt(0)
v_cmp_gt_u32 vcc, v50, v51
s_cbranch_vccz L_cst_ok
""")
    spin_tail(A,sSpin,"L_cst",0x101,sleep=8)
    A(f"""
L_cst_ok:
L_cst_bar:
s_barrier
buffer_load_dword v51, v49, s[{S_DB}:{S_DB+3}], 0 offen sc1
s_waitcnt vmcnt(0)""")
    A(f"""
v_readlane_b32 {sT[0]}, v51, 1
s_and_b32 {sT[1]}, {sT[0]}, 1
s_lshl_b32 {sPGa}, {sT[1]}, 13
s_lshr_b32 {sT[1]}, {sT[0]}, 1
s_and_b32 {sT[1]}, {sT[1]}, 1
s_lshl_b32 {sT[1]}, {sT[1]}, 13
s_add_u32 {sPGb}, {sT[1]}, {PAGE}
s_lshr_b32 {sT[1]}, {sT[0]}, 2
s_and_b32 {sT[1]}, {sT[1]}, 1
s_lshl_b32 {sT[1]}, {sT[1]}, 13
s_add_u32 {sPGc}, {sT[1]}, {2*PAGE}
s_add_u32 {sMa}, {sPGa}, {80*16384}
s_add_u32 {sMb}, {sPGa}, {82*16384}
s_add_u32 {sMc}, {sPGa}, {84*16384}
s_lshr_b32 {sT[0]}, {sB}, 4
s_mul_i32 {sT[0]}, {sT[0]}, 20
s_and_b32 {sT[1]}, {sB}, 15
s_add_u32 {sT[0]}, {sT[0]}, {sT[1]}
s_add_u32 {sT[0]}, {sT[0]}, 4
s_lshr_b32 {sT[1]}, {sB}, 2
s_mul_i32 {sT[1]}, {sT[1]}, 20
s_and_b32 {sT[2]}, {sB}, 3
s_add_u32 {sT[1]}, {sT[1]}, {sT[2]}
s_cmp_lt_u32 {sB}, 16
s_cselect_b32 {sT[1]}, {sT[1]}, -1
s_bitcmp1_b32 {sW}, 0
s_cselect_b32 {sTask}, {sT[1]}, {sT[0]}
s_max_i32 {sT[0]}, {sTask}, 0
s_lshl_b32 {sRdO}, {sT[0]}, 14
s_mul_i32 {sT[1]}, {sT[0]}, 3277
s_lshr_b32 {sT[1]}, {sT[1]}, 16          ; task / 20
s_mul_i32 {sT[2]}, {sT[1]}, 20
s_sub_u32 {sT[2]}, {sT[0]}, {sT[2]}
s_lshl_b32 {sPubO}, {sT[2]}, 7
s_lshr_b32 {sT[2]}, {sT[1]}, 1
s_lshl_b32 {sT[2]}, {sT[2]}, 14
s_add_u32 {sPubO}, {sPubO}, {sT[2]}
s_and_b32 {sT[2]}, {sT[1]}, 1
s_lshl_b32 {sT[2]}, {sT[2]}, 12
s_add_u32 {sPubO}, {sPubO}, {sT[2]}
s_lshr_b32 {sT[2]}, {sW}, 1
s_lshl_b32 {sMLO}, {sT[2]}, 14
s_and_b32 {sT[2]}, {sW}, 1
s_lshl_b32 {sT[2]}, {sT[2]}, 12
s_add_u32 {sMLO}, {sMLO}, {sT[2]}
s_mul_i32 {sPstO}, {sW}, {20*16384}
s_lshl_b32 {sT[2]}, {sB}, 7
s_add_u32 {sPstO}, {sPstO}, {sT[2]}
s_lshl_b32 {sT[0]}, {sH}, 19
s_add_u32 {sKX}, {sT[0]}, {KXF}
s_lshl_b32 {sT[1]}, {sC}, 12
s_add_u32 {sVX}, {sT[0]}, {sT[1]}
s_add_u32 {sVX}, {sVX}, {VXF}
s_lshl_b32 {sT[0]}, {sH}, 17
s_add_u32 {sKM}, {sT[0]}, {KMF-ZB-2048}
s_lshl_b32 {sT[0]}, {sH}, 18
s_lshl_b32 {sT[1]}, {sC}, 11
s_add_u32 {sVM}, {sT[0]}, {sT[1]}
s_add_u32 {sVM}, {sVM}, {VMF-VB}
s_lshl_b32 {sT[0]}, {sH}, 1
s_add_u32 {sT[0]}, {sT[0]}, {sC}
s_lshl_b32 {sT[0]}, {sT[0]}, 7
s_lshl_b32 {sT[1]}, {sW}, 2
s_add_u32 {sKMFL}, {sT[0]}, {sT[1]}
s_add_u32 {sKMFL}, {sKMFL}, {F_KM}
s_mov_b32 {sKVB}, {KVB}
s_mov_b32 {sS}, 0
s_and_b32 {sT[0]}, {sW}, 1
s_mul_i32 {sBO}, {sT[0]}, {40*16384}
s_lshl_b32 {sT[1]}, {sB}, 7
s_add_u32 {sBO}, {sBO}, {sT[1]}
s_mov_b32 s{S_KM}, s{S_WS}
s_mov_b32 s{S_KM+1}, s{S_WS+1}
s_cmp_eq_u32 {sC}, 0
s_cselect_b32 s{S_KM+2}, {hex(WS_SIZE)}, 0
s_cmp_ge_u32 {sW}, 2
s_cselect_b32 s{S_KM+2}, s{S_KM+2}, 0
s_mov_b32 s{S_KM+3}, 0x20000
""")
    vm=Cnt(A,"vmcnt",63)
    wait_kv(A,"1",98,0x102)
    pstamp(A,opt,"s59")
    kv_dma(A,vm,4); kv_advance(A)
    A(f"v_cmp_gt_u32 {sKVB2}, 2, v98")
    qk_preload(A,Cnt(A,"lgkmcnt",15))
    sent_setup(A,opt)
    A(f"s_add_u32 {sT[0]}, {sPGb}, {sPstO}\nbuffer_store_dword v{SENT}, v{SENT+1}, {WS}, {sT[0]} offen sc1")
    A(f"""s_mov_b32 s{S_MC}, s{S_WS}
s_mov_b32 s{S_MC+1}, s{S_WS+1}
s_cmp_lt_u32 {sW}, 2
s_cselect_b32 s{S_MC+2}, 0, {hex(WS_SIZE)}
s_cmp_lt_i32 {sTask}, 0
s_cselect_b32 s{S_MC+2}, 0, s{S_MC+2}
s_mov_b32 s{S_MC+3}, 0x20000""")
    for i in range(0,12,2): A(f"v_mov_b64 {vr(ACCQ+i,2)}, 0")
    A("s_waitcnt vmcnt(0) lgkmcnt(0)")
    if opt.get('prof'):
        A("s_memrealtime s[92:93]\ns_memtime s[28:29]\ns_waitcnt lgkmcnt(0)\ns_mov_b32 s30, s28\ns_mov_b32 s97, s28")
        for i in range(8): A(f"s_mov_b32 s{20+i}, 0")
        A("s_mov_b32 s94, 0\ns_mov_b32 s95, 0")
        if opt.get('prof')==2:
            for r in FACC: A(f"s_mov_b32 {r}, 0")
    step(A,opt)

def stamp(A,opt,i):
    if opt.get('prof')!=1: return
    A(f"""s_memtime s[28:29]
s_waitcnt lgkmcnt(0)
s_sub_u32 s31, s28, s30
s_add_u32 s{20+i}, s{20+i}, s31
s_mov_b32 s30, s28""")

def ts(A,opt,i):
    if opt.get('prof')==4: A(f"s_memrealtime s[{64+2*i}:{65+2*i}]")
def ts_flush(A,opt):
    if opt.get('prof')!=4: return
    A(f"""s_waitcnt lgkmcnt(0)
s_lshl_b32 s31, {sB}, 2
s_add_u32 s31, s31, {sW}
s_lshl_b32 s31, s31, 6
s_add_u32 s31, s31, {sS}
s_lshl_b32 s31, s31, 5
s_add_u32 s31, s31, {PROF+0x10000}
s_and_b32 s30, s94, 0xffff
s_lshl_b32 s29, s95, 16
s_or_b32 s30, s30, s29
v_mov_b32 v100, s64
v_mov_b32 v101, s66
v_mov_b32 v102, s68
v_mov_b32 v103, s70
v_mov_b32 v104, s72
v_mov_b32 v105, s74
v_mov_b32 v106, s76
v_mov_b32 v107, s30
s_mov_b64 exec, 1
buffer_store_dwordx4 v[100:103], v{vL16}, s[{S_WS}:{S_WS+3}], s31 offen
buffer_store_dwordx4 v[104:107], v{vL16}, s[{S_WS}:{S_WS+3}], s31 offen offset:16
s_mov_b64 exec, -1""")
FINE=[]
FACC=["s3","s20","s21","s22","s23","s24","s25","s26","s27","s59","s63","s98","s99"]
sKVB2="s[100:101]"; sKVR="s88"
CUTS=["start","qk","zbar","vpass","scores","max","expx","pv","a1","stores"]
def fs(A,opt,name):
    if opt.get('cut',-1)>=0 and CUTS[opt['cut']]==name:
        if CUTS.index(name)<CUTS.index("stores"): A(f"s_add_u32 {sS}, {sS}, 1")
        A(f"s_waitcnt vmcnt(20)\ns_cmp_ge_u32 {sS}, 63\ns_cbranch_scc1 L_chain_exit\ns_branch L_step")
    if opt.get('prof')!=2: return
    i=len(FINE); FINE.append(name)
    A(f"s_memtime s[{64+2*i}:{65+2*i}]")
    assert 65+2*i<84
def fs_collect(A,opt):
    if opt.get('prof')!=2: return
    A("s_waitcnt lgkmcnt(0)")
    for i in range(1,len(FINE)):
        A(f"s_sub_u32 s31, s{64+2*i}, s{62+2*i}\ns_add_u32 {FACC[i]}, {FACC[i]}, s31")
def sent_setup(A,opt):
    if True:
        A(f"""v_mov_b32 v{SENT}, -1
v_lshrrev_b32 v{SENT+1}, 5, v{vL16}
v_lshlrev_b32 v{SENT+1}, 14, v{SENT+1}
v_and_b32 v{SENT+2}, 16, v{vL16}
v_lshlrev_b32 v{SENT+2}, 2, v{SENT+2}
v_add_u32 v{SENT+1}, v{SENT+1}, v{SENT+2}
v_mov_b32 v{SENT+3}, 0x7ffffff0
v_cmp_gt_u32 vcc, {40*16}, v{vL16}
v_cndmask_b32 v{SENT+1}, v{SENT+3}, v{SENT+1}, vcc
v_cmp_gt_u32 vcc, 32, v{vL16}
v_cndmask_b32 v{SENT+2}, v{SENT+3}, v{SENT+2}, vcc""")
    else:
        A(f"v_mov_b64 {vr(SENT,2)}, -1\nv_mov_b64 {vr(SENT+2,2)}, -1")

def lds_op(A,lg,o,dst,hf):
    return lg.issue(f"ds_read_b128 {vr(dst+4*hf,4)}, v{vWO} offset:{(OPI[o]-50)*2048+hf*1024}")
def qk_preload(A,lg):
    for i,o in enumerate([("Q",0),("K",0),("Q",1),("K",1)]):
        for hf in range(2): lds_op(A,lg,o,KX+8*i,hf)

def step(A,opt):
    WS=f"s[{S_WS}:{S_WS+3}]"
    lg=Cnt(A,"lgkmcnt",15); vm=Cnt(A,"vmcnt",63)
    NOHK=opt.get('nohk',0)
    keep=[ZQ,ZK,ZQ+4,ZK+4,ZQ+8,ZK+8,ZQ+12,ZK+12]
    D=4
    def freg(tau): return keep[tau%5] if tau<10 else keep[tau-10] if tau<18 else MF[2] if tau==18 else MF[0]
    ftok={}
    def fread(tau,u):
        st,off=m_off(tau%10,u)
        base={(16,0):vMA16a,(8,0):vMA8a,(16,1):vMA16b,(8,1):vMA8b}[(st,tau//10)]
        ftok[tau]=lg.issue(f"ds_read_b64_tr_b16 {vr(freg(tau)+2*u,2)}, v{base} offset:{off}")
    def smf(acc,a,b): A(f"v_smfmac_f32_16x16x64_bf16 {vr(acc,4)}, {vr(a,4)}, {b}, v{vIDX}")
    def wop(m,t):
        if m in "QK" and t<2: return vr(KX+16*t+(8 if m=="K" else 0),8)
        return wreg(OPI[(m,t)])
    def cvt(d,a,b): A(f"v_cvt_pk_bf16_f32 v{d}, v{a}, v{b}")
    A(".p2align 6\nL_step:\ns_waitcnt lgkmcnt(0)\ns_barrier")
    fs(A,opt,"start"); ts(A,opt,0)
    if opt.get('prof')==4: A("s_memtime s[76:77]")
    def dma3(k):
        if k==0: A(f"s_lshl_b32 {sT[6]}, {sW}, 11\ns_add_u32 m0, {sKVB}, {sT[6]}\ns_add_u32 {sT[7]}, {sKX}, {sT[6]}"); vm.issue(f"buffer_load_dwordx4 v{vL16}, {WS}, {sT[7]} offen lds")
        if k==1: vm.issue(f"buffer_load_dwordx4 v{vL16}, {WS}, {sT[7]} offen offset:1024 lds"); A(f"s_lshr_b32 {sT[6]}, {sT[6]}, 1\ns_add_u32 {sT[7]}, {sVX}, {sT[6]}\ns_add_u32 {sT[6]}, {sT[6]}, 8192\ns_add_u32 m0, {sKVB}, {sT[6]}")
        if k==2: vm.issue(f"buffer_load_dwordx4 v{vL16}, {WS}, {sT[7]} offen lds"); kv_advance(A)
    T1=opt.get('t1',1)
    hk={}
    def h_flag():
        hk['t']=vm.issue(f"buffer_load_dword v{MF[0]}, v{vFLG}, {WS}, 0 offen sc1"); A(f"s_add_u32 {sT[4]}, {sS}, 3\ns_min_u32 {sT[4]}, {sT[4]}, 64")
    def h_p():
        A(f"s_add_u32 {sT[0]}, {sPGc}, {sPstO}")
        vm.issue(f"buffer_store_dword v{SENT}, v{SENT+1}, {WS}, {sT[0]} offen sc1")
    def h_m():
        A(f"s_add_u32 {sT[1]}, {sMb}, {sPubO}")
        vm.issue(f"buffer_store_dword v{SENT}, v{SENT+2}, s[{S_MC}:{S_MC+3}], {sT[1]} offen sc1")
    def h_km():
        A(f"v_mov_b32 v{SENT+3}, {sS}\ns_mov_b64 exec, 1")
        vm.issue(f"buffer_store_dword v{SENT+3}, v{vL16}, {WS}, {sKMFL} offen sc1")
        A("s_mov_b64 exec, -1")
    for tau in range(D):
        fread(tau,0); fread(tau,1)
        if not NOHK and tau==1: A(f"s_cmp_lg_u64 {sKVB2}, 0\ns_cbranch_scc1 L_kv_slow\nL_kv_ready:")
        if not NOHK and tau==2: h_flag()
        if not NOHK and tau==3: dma3(0)
    kxi=0
    for tau in range(20):
        lg.wait(ftok[tau])
        smf(ACCQ,freg(tau),wop("Q",tau))
        if tau+D<20: fread(tau+D,0)
        smf(ACCK,freg(tau),wop("K",tau))
        if tau+D<20: fread(tau+D,1)
        if not NOHK:
            if tau in (3,5,7): [h_km,None,h_p,None,h_m][tau-3]()
            if tau==14: tfl=hk['t']; vm.wait(tfl); A(f"v_cmp_gt_u32 {sKVB2}, {sT[4]}, v{MF[0]}")
            DP=opt.get('dp',0)
            if tau<2: dma3(tau+1)
        if tau>=5 and tau%2==1 and kxi<8:
            lg.issue(f"ds_read_b128 {vr(KX+4*kxi,4)}, v{vKV} offset:{kxi*1024}"); kxi+=1
    assert kxi==8 and len(ftok)==20
    fs(A,opt,"qk")
    vf=keep+[freg(18),freg(19)]
    sv=lambda i: smf(ACCV,vf[i],wop("V",i))
    sv(0); sv(1)
    cvt(ACCQ,ACCQ,ACCQ+1); cvt(ACCQ+1,ACCQ+2,ACCQ+3)
    lg.issue(f"ds_write_b64 v{vZW}, {vr(ACCQ,2)}")
    cvt(ACCK,ACCK,ACCK+1); cvt(ACCK+1,ACCK+2,ACCK+3)
    tz=lg.issue(f"ds_write_b64 v{vZW}, {vr(ACCK,2)} offset:512")
    T4=opt.get('t4',4)
    for i in range(2,2+T4): sv(i)
    lg.wait(tz)
    A("s_barrier")
    fs(A,opt,"zbar")
    ztok={}
    def zr(j,k):
        dst,base,off=[(ZQ+4*j,vZR0,0),(ZQ+4*j+2,vZR1,0),(ZK+4*j,vZR0,2048),(ZK+4*j+2,vZR1,2048)][k]
        ztok[j]=lg.issue(f"ds_read_b64_tr_b16 {vr(dst,2)}, v{base} offset:{off+512*j}")
    T3=opt.get('t3',1)
    for k in range(4): zr(0,k)
    for i in range(2+T4,6): sv(i)
    if T3==0:
        sv(6); zr(1,0); zr(1,1); sv(7); zr(1,2); zr(1,3)
        sv(8); zr(2,0); zr(2,1); sv(9); zr(2,2); zr(2,3)
    elif T3==1:
        sv(6); zr(1,0); sv(7); zr(1,1); sv(8); zr(1,2); sv(9); zr(1,3)
    elif T3==2:
        for k in range(4): zr(1,k)
        for k in range(4): zr(2,k)
        sv(6); sv(7); sv(8); sv(9)
    T2=opt.get('t2',1)
    stA=lambda: vm.issue(f"buffer_store_dwordx2 {vr(ACCQ,2)}, v{vZW}, s[{S_KM}:{S_KM+3}], {sKM} offen sc1")
    stB=lambda: vm.issue(f"buffer_store_dwordx2 {vr(ACCK,2)}, v{vZW}, s[{S_KM}:{S_KM+3}], {sKM} offen offset:512 sc1")
    stV=lambda: vm.issue(f"buffer_store_dwordx2 {vr(ACCV,2)}, v{vVW}, {WS}, {sVM} offen sc1")
    if opt.get('nokm'): stA=stB=stV=lambda: None
    chk=lambda: A(f"s_cmp_eq_u32 {sS}, 63\ns_cbranch_scc1 L_chain_exit")
    if T2==0: stA(); stB()
    fs(A,opt,"vpass")
    SX0,SX1,SM=(ACCQ,ACCK,MF[1]) if T2==0 else (MF[2],MF[0],MF[1])
    def mm(d,a,b,first): A(f"v_mfma_f32_16x16x32_bf16 {vr(d,4)}, {vr(a,4)}, {vr(b,4)}, {'0' if first else vr(d,4)}")
    VX,VM,OACC=KX,KX+16,ZK
    WB=[72,80,88,48,56,64]
    wtok={}
    def wread(u,hf): wtok[u]=lds_op(A,lg,("O",u),WB[u],hf)
    def vxread(T): return lg.issue(f"ds_read_b128 {vr(VX+4*T,4)}, v{vKV} offset:{8192+T*1024}")
    vmread=lambda T: lg.issue(f"ds_read_b64 {vr(VM+2*T,2)}, v{vL8} offset:{VB+T*512}")
    x0=lambda j: mm(SX0,KX+4*j,ZQ+4*j,j==0)
    xm=lambda j: mm(SM,ZK+4*j,ZQ+4*j,j==0)
    x1=lambda j: mm(SX1,KX+16+4*j,ZQ+4*j,j==0)
    lg.wait(ztok[0])
    if T3==1:
        x0(0); zr(2,0); zr(2,1); xm(0); zr(2,2); zr(2,3); x1(0); zr(3,0); zr(3,1)
        lg.wait(ztok[1])
    else:
        x0(0); zr(3,0); zr(3,1); xm(0); zr(3,2); zr(3,3); x1(0)
        lg.wait(ztok[1])
    if T3==1: x0(1); zr(3,2); zr(3,3); cvt(ACCV,ACCV,ACCV+1); xm(1); cvt(ACCV+1,ACCV+2,ACCV+3); x1(1)
    else: x0(1); cvt(ACCV,ACCV,ACCV+1); xm(1); cvt(ACCV+1,ACCV+2,ACCV+3); x1(1)
    tv=lg.issue(f"ds_write_b64 v{vVW}, {vr(ACCV,2)}")
    lg.wait(ztok[2])
    x0(2)
    if T2==0: stV()
    xm(2)
    if T2==0: chk()
    x1(2); vxread(0); vxread(1)
    lg.wait(ztok[3])
    x0(3)
    lg.wait(tv); A("s_barrier")
    xm(3); vxread(2); tvx=vxread(3)
    x1(3)
    for T in range(4): tvm=vmread(T)
    fs(A,opt,"scores")
    m,t,mc=(32,33,34) if T2==0 else (22,23,26)
    A(f"""
v_max3_f32 v{m}, v{SX0}, v{SX0+1}, v{SX0+2}
v_max3_f32 v{t}, v{SM}, v{SM+1}, v{SM+2}
v_max3_f32 v{m}, v{m}, v{SX0+3}, v{SM+3}
v_max3_f32 v{t}, v{t}, v{SX1}, v{SX1+1}
v_max3_f32 v{m}, v{m}, v{SX1+2}, v{SX1+3}
v_max_f32 v{mc}, v{m}, v{t}
v_max_f32 v{m}, v{m}, v{t}
""")
    wread(0,0); wread(0,1)
    A(f"v_permlane32_swap_b32 v{m}, v{mc}\nv_max_f32 v{t}, v{m}, v{mc}\nv_max_f32 v{m}, v{m}, v{mc}")
    wread(1,0); wread(1,1)
    A(f"v_permlane16_swap_b32 v{m}, v{t}\nv_max_f32 v{m}, v{m}, v{t}\nv_mul_f32 v{mc}, {hex(f2u(-SCALE_LOG2E))}, v{m}")
    fs(A,opt,"max")
    def pkf(r): A(f"v_pk_fma_f32 {vr(r,2)}, {vr(r,2)}, s[{sSC}:{sSC+1}], {vr(mc,2)} op_sel_hi:[1,0,0]")
    ex=lambda r: A(f"v_exp_f32 v{r}, v{r}")
    if T2==0:
        pkf(SX0); pkf(SX0+2); ex(SX0); pkf(SX1); ex(SX0+1); pkf(SX1+2); ex(SX0+2); wread(2,0); ex(SX0+3); wread(2,1)
        PX,PM,RI=SX0,40,42
        ex(SX1); cvt(PX,SX0,SX0+1); ex(SX1+1); cvt(PX+1,SX0+2,SX0+3); ex(SX1+2); pkf(SM); ex(SX1+3); pkf(SM+2)
        cvt(PX+2,SX1,SX1+1); cvt(PX+3,SX1+2,SX1+3)
    else:
        PX,PM,RI=20,42,40
        pkf(SX0); pkf(SX0+2); pkf(SX1); pkf(SX1+2)
        ex(SX0); stA(); ex(SX0+1); wread(2,0); ex(SX0+2); stB(); ex(SX0+3); wread(2,1)
        ex(SX1); stV(); ex(SX1+1); chk(); ex(SX1+2); ex(SX1+3)
        cvt(PX,SX0,SX0+1); cvt(PX+1,SX0+2,SX0+3); pkf(SM); cvt(PX+2,SX1,SX1+1); pkf(SM+2); cvt(PX+3,SX1+2,SX1+3)
    fs(A,opt,"expx")
    LT=ACCV
    lg.wait(tvx)
    ex(SM); mm(LT,ONES,PX,True)
    ex(SM+1); mm(OACC,VX,PX,True)
    ex(SM+2); mm(OACC+4,VX+4,PX,True)
    ex(SM+3); mm(OACC+8,VX+8,PX,True)
    cvt(PM,SM,SM+1); cvt(PM+1,SM+2,SM+3)
    mm(OACC+12,VX+12,PX,True)
    def mm16(d,a,b): A(f"v_mfma_f32_16x16x16_bf16 {vr(d,4)}, {vr(a,2)}, {vr(b,2)}, {vr(d,4)}")
    z=lambda r: A(f"v_mov_b64 {vr(r,2)}, 0")
    wread(3,0); wread(3,1)
    mm16(LT,HALF,PM); wread(4,0); z(20)
    mm16(OACC,VM,PM); wread(4,1); z(22)
    mm16(OACC+4,VM+2,PM); z(24); z(26)
    mm16(OACC+8,VM+4,PM); A(f"v_xor_b32 v{vKV}, {KVX}, v{vKV}")
    mm16(OACC+12,VM+6,PM)
    wread(5,0); wread(5,1)
    A(f"v_rcp_f32 v{RI}, v{LT}")
    z(28); z(30)
    fs(A,opt,"pv")
    def pkm(r): A(f"v_pk_mul_f32 {vr(r,2)}, {vr(r,2)}, {vr(RI,2)} op_sel_hi:[1,0]")
    for r in range(0,8,2): pkm(OACC+r)
    for i in range(4): cvt(OACC+i,OACC+2*i,OACC+2*i+1)
    WACC=20
    def wo(u):
        p,P=WORD[u]
        if u<6: lg.wait(wtok[u])
        smf(WACC+4*p,OACC+4*P,vr(WB[u],8) if u<6 else wop("O",u))
    pkm(OACC+8); pkm(OACC+10)
    wo(0)
    pkm(OACC+12); pkm(OACC+14)
    wo(1)
    cvt(OACC+4,OACC+8,OACC+9); cvt(OACC+5,OACC+10,OACC+11)
    wo(2)
    cvt(OACC+6,OACC+12,OACC+13); cvt(OACC+7,OACC+14,OACC+15)
    z(32); z(34)
    fs(A,opt,"a1")
    wo(3)
    A(f"s_add_u32 {sT[0]}, {sPGa}, {sPstO}\ns_add_u32 {sT[1]}, {sT[0]}, {8*16384}")
    z(36)
    wo(4)
    A(f"s_add_u32 {sT[2]}, {sT[0]}, {16*16384}\ns_mov_b32 {sT[5]}, 0xfffffffe")
    z(38)
    wo(5)
    A(f"s_add_u32 {sKM}, {sKM}, 2048\ns_add_u32 {sVM}, {sVM}, 4096\ns_add_u32 {sS}, {sS}, 1")
    wo(6)
    A(f"s_add_u32 {sT[3]}, {sPGa}, {sRdO}\ns_add_u32 {sT[4]}, {sT[3]}, 4096")
    mn=lambda r: A(f"v_min_u32 v{r}, {sT[5]}, v{r}")
    cvt(20,20,21); cvt(21,22,23)
    wo(7)
    cvt(22,24,25); cvt(23,26,27)
    wo(8)
    mn(20)
    vm.issue(f"buffer_store_dwordx4 {vr(20,4)}, v{vP0}, {WS}, {sT[0]} offen sc1")
    wo(9)
    cvt(28,28,29); cvt(29,30,31); mn(28); cvt(30,32,33); cvt(31,34,35)
    vm.issue(f"buffer_store_dwordx4 {vr(28,4)}, v{vP0}, {WS}, {sT[1]} offen sc1")
    cvt(36,36,37); cvt(37,38,39); mn(36)
    vm.issue(f"buffer_store_dwordx2 {vr(36,2)}, v{vP2}, {WS}, {sT[2]} offen sc1")
    fs(A,opt,"stores"); ts(A,opt,1)
    stamp(A,opt,0); fs_collect(A,opt)
    RL,RACC,SEL=48,24,80
    A(f"""
s_cmp_ge_u32 {sW}, 2
s_cbranch_scc1 L_plain
s_cmp_lt_i32 {sTask}, 0
s_cbranch_scc1 L_plain
s_add_u32 {sT[2]}, {sMa}, {sPubO}
s_mov_b32 {sSpin}, 0
s_waitcnt vmcnt({max(opt.get('W1',0),opt.get('W1b',2))})
s_cmp_eq_u32 {sW}, 1
s_cbranch_scc1 L_sel
s_waitcnt vmcnt({opt.get('W1',0)})
L_sel:
v_lshrrev_b32 v86, 4, v{vL16}
v_and_b32 v84, 1, v86
v_lshlrev_b32 v84, 4, v84
v_mov_b32 v85, 0x3f80
v_lshlrev_b32 v85, v84, v85
v_bfe_u32 v84, v86, 1, 2
""")
    for j in range(4):
        A(f"v_cmp_eq_u32 vcc, {j}, v84\nv_cndmask_b32 v{SEL+j}, 0, v85, vcc")
    A(f"""
v_and_b32 v84, 0x70, v{vL16}
v_bfe_u32 v86, v86, 4, 1
v_lshl_add_u32 v86, v86, 3, v84
""")
    if opt.get('d1',0): A(f"s_sleep {opt['d1']}")
    ts(A,opt,2)
    A("L_poll1:")
    for j in range(8): A(f"buffer_load_dwordx4 {vr(RL+4*j,4)}, v{vL16}, {WS}, {sT[3+(j>>2)]} offen offset:{(j&3)*1024} sc1")
    for j in range(8):
        A(f"s_waitcnt vmcnt({7-j})")
        if j==7: A(f"v_max3_u32 v84, v84, v{RL+24}, v{RL+28}")
        mm(RACC,SEL,RL+4*j,j==0)
        if j==1: A(f"v_max_u32 v84, v{RL}, v{RL+4}")
        elif j in (3,5): A(f"v_max3_u32 v84, v84, v{RL+4*j-4}, v{RL+4*j}")
    A("v_cmp_eq_u32 vcc, -1, v84")
    for i in range(4): A(f"v_add_f32_dpp v{28+i}, v{RACC+i}, v{RACC+i} row_ror:8 row_mask:0xf bank_mask:0xf")
    A(f"""
v_cvt_pk_bf16_f32 v28, v28, v29
v_cvt_pk_bf16_f32 v29, v30, v31
v_min_u32 v28, {sT[5]}, v28
s_cbranch_vccnz L_retry1
s_mov_b64 exec, 0x00ff00ff
buffer_store_dwordx2 v[28:29], v86, {WS}, {sT[2]} offen sc1
s_mov_b64 exec, 1""")
    ts(A,opt,3)
    A("s_barrier")
    if opt.get('prof'): A(f"s_add_u32 s94, s94, {sSpin}")
    stamp(A,opt,1)
    A("s_mov_b64 exec, -1")
    def prep(parts):
        if parts&1: qk_preload(A,Cnt(A,"lgkmcnt",15))
        if parts&2: sent_setup(A,opt)
        if parts&4:
            for i in range(0,12,2): z(ACCQ+i)
    prep(7)
    if opt.get('W2',0): A("s_waitcnt vmcnt(0)")
    if opt.get('d2r',4): A(f"s_sleep {opt.get('d2r',4)}")
    A("L_gather:")
    stamp(A,opt,2); ts(A,opt,4)
    NC=1
    CP=[(80,84,88),(32,36,40),(104,92,42)]
    def cload(k,so):
        a,b,c=CP[k]
        A(f"""buffer_load_dwordx4 {vr(a,4)}, v{vL16}, {WS}, {so} offen sc1
buffer_load_dwordx4 {vr(b,4)}, v{vL16}, {WS}, {so} offen offset:1024 sc1
buffer_load_dwordx2 {vr(c,2)}, v{vL8}, {WS}, {so} offen offset:2048 sc1""")
    def ctake(k,left,fail,first=False):
        a,b,c=CP[k]
        A(f"""s_waitcnt vmcnt({left+2})
ds_write_b128 v{vMW16}, {vr(a,4)}
s_waitcnt vmcnt({left+1})
ds_write_b128 v{vMW16}, {vr(b,4)} offset:1024
s_waitcnt vmcnt({left})
ds_write_b64 v{vMW8}, {vr(c,2)}
v_max3_u32 v90, v{a}, v{b}, v{c}
v_cmp_eq_u32 vcc, -1, v90""")
    A(f"""
s_add_u32 {sT[0]}, {sMa}, {sMLO}
s_add_u32 {sT[2]}, {sT[0]}, 32768
s_add_u32 {sT[3]}, {sT[0]}, 65536""")
    cload(0,sT[0])
    if NC>1:
        for _ in range(opt.get('dc',0)): A("s_nop 15")
        cload(1,sT[2])
    if NC>2:
        for _ in range(opt.get('dc',0)): A("s_nop 15")
        cload(2,sT[3])
    A(f"""s_mov_b32 {sSpin}, 0
s_mov_b32 {sT[1]}, {sPGa}""")
    ctake(0,3*(NC-1),None,True)
    A("s_cbranch_vccnz L_copy1\nL_got2:")
    if opt.get('prof'): A(f"s_add_u32 s95, s95, {sSpin}")
    stamp(A,opt,3); ts(A,opt,5); ts_flush(A,opt)
    A(f"""s_mov_b32 {sPGa}, {sPGb}
s_mov_b32 {sPGb}, {sPGc}
s_mov_b32 {sPGc}, {sT[1]}
s_mov_b32 {sT[1]}, {sMa}
s_mov_b32 {sMa}, {sMb}
s_mov_b32 {sMb}, {sMc}
s_mov_b32 {sMc}, {sT[1]}
s_branch L_step
L_plain:""")
    ts(A,opt,2); ts(A,opt,3)
    prep(opt.get('pre',0))
    A("s_barrier")
    prep(7-opt.get('pre',0))
    if opt.get('d2n',4): A(f"s_sleep {opt.get('d2n',4)}")
    A(f"""s_branch L_gather
L_kv_slow:
s_add_u32 {sT[4]}, {sS}, 2
s_min_u32 {sT[4]}, {sT[4]}, 64""")
    wait_kv(A,sT[4],MF[0],0x103)
    A(("s_endpgm" if NOHK else "s_branch L_kv_ready")+"\nL_retry1:\ns_waitcnt vmcnt(0)")
    spin_tail(A,sSpin,"L_poll1",0x104)
    A("L_copy1:")
    if opt.get('prof'): A(f"s_add_u32 {sSpin}, {sSpin}, 1")
    for k in range(1,NC):
        A(f"s_add_u32 {sSpin}, {sSpin}, 1")
        ctake(k,3*(NC-1-k),None)
        A("s_cbranch_vccz L_got2")
    A("L_poll2:")
    cload(0,sT[0]); ctake(0,0,None)
    A("s_cbranch_vccz L_got2")
    spin_tail(A,sSpin,"L_poll2",0x105)
    A(f"""L_chain_exit:
s_waitcnt vmcnt(0)
v_mov_b32 v{KX+4}, 64
s_mov_b64 exec, 1
buffer_store_dword v{KX+4}, v{vL16}, {WS}, {sKMFL} offen sc1
s_waitcnt vmcnt(0)""")
    if opt.get('prof'):
        A(f"""s_memtime s[90:91]
s_memrealtime s[28:29]
s_waitcnt lgkmcnt(0)
s_sub_u32 s24, s90, s97
s_sub_u32 s30, s92, s96
s_sub_u32 s29, s28, s92
s_lshl_b32 s31, {sB}, 2
s_add_u32 s31, s31, {sW}
s_lshl_b32 s31, s31, 7
s_add_u32 s31, s31, {PROF}""")
        for i,r in enumerate(["s20","s21","s22","s23","s24","s30","s29","s94","s95","s96"]+(FACC[1:] if opt.get('prof')==2 else ["s3","s63","s59"])):
            A(f"v_mov_b32 v20, {r}\nbuffer_store_dword v20, v{vL16}, {WS}, s31 offen offset:{4*i}")
        A("s_waitcnt vmcnt(0)")
    A("s_endpgm")
```

```python
import sys
from common import *
import chain, chain2, chain3, bulk

def build(opt):
    A=Asm()
    K=NAME+"_kernel"
    A(f"; @launch grid=(256,1,1) block=(256,1,1) lds=163840")
    A('.amdgcn_target "amdgcn-amd-amdhsa--gfx950"')
    kernel_begin(A,K)
    A(f"""
s_cmp_ge_u32 s2, 256
s_cbranch_scc1 L_exit
s_load_dwordx16 s[64:79], s[0:1], 0
s_load_dwordx8 s[80:87], s[0:1], 64
s_load_dwordx4 s[88:91], s[0:1], 96
v_lshrrev_b32 v1, 6, v0
s_nop 0
v_readfirstlane_b32 {sW}, v1
s_waitcnt lgkmcnt(0)
s_add_u32 s{S_WS}, s{P_WSP}, {PAGE-1}
s_addc_u32 s{S_WS+1}, s{P_WSP+1}, 0
s_and_b32 s{S_WS}, s{S_WS}, {hex(0x100000000-PAGE)}
s_and_b32 s{S_WS+1}, s{S_WS+1}, 0xffff
s_mov_b32 s{S_WS+2}, {hex(WS_SIZE)}
s_mov_b32 s{S_WS+3}, 0x20000
""")
    if opt.get('cpf',0):
        A(f"""
s_getpc_b64 s[26:27]
L_pc:
s_lshr_b32 s28, s2, 3
s_lshl_b32 s28, s28, 11
v_lshlrev_b32 v144, 7, v0
v_add_u32 v144, s28, v144
s_mov_b32 s29, L_code_end-L_pc-4
v_min_u32 v144, s29, v144
v_and_b32 v144, -4, v144
v_cmp_gt_u32 vcc, 16, v0
s_and_saveexec_b64 s[28:29], vcc
s_cbranch_execz L_no_cpf
global_load_dword v145, v144, s[26:27]
L_no_cpf:
s_mov_b64 exec, s[28:29]
""")
    srd(A,S_DB,P_DBG,256)
    if opt.get('prof'): A("s_memrealtime s[96:97]\ns_waitcnt lgkmcnt(0)")
    bulk.rstamp(A,opt,0)
    A(f"""
s_and_b32 s20, s2, 7
s_lshr_b32 s21, s2, 3
s_cmp_ge_u32 s20, 4
s_cbranch_scc1 L_side_b
s_cmp_ge_u32 s21, 16
s_cbranch_scc1 L_side_a_rest
s_lshr_b32 s22, s21, 1
s_lshl_b32 {chain.sH}, s20, 3
s_add_u32 {chain.sH}, {chain.sH}, s22
s_and_b32 {chain.sC}, s21, 1
s_lshl_b32 {chain.sB}, s20, 4
s_add_u32 {chain.sB}, {chain.sB}, s21
""")
    if opt.get('roles',255)&1: (chain2 if opt.get('h4',0) else chain3 if opt.get('c3',1) else chain).role_chain(A,opt)
    else: A('s_endpgm')
    roles=opt.get('roles',255)
    QB=opt.get('qb',1)
    if QB:
        A(f"""
L_side_a_rest:
s_mul_i32 s19, s20, 6
s_add_u32 s19, s19, s21
s_add_u32 s19, s19, 24
s_mov_b32 s18, 3
s_cmp_lt_u32 s21, 22
s_cbranch_scc1 L_aux
s_cmp_lg_u32 s2, 251
s_cbranch_scc1 L_exit
""")
        if roles&64: bulk.probe_side(A,opt)
        A(f"""s_endpgm
L_side_b:
s_sub_u32 s20, s20, 4
s_cmp_lt_u32 s21, 10
s_cbranch_scc1 L_role_fin
s_lshl_b32 s17, s20, 3
s_add_u32 s17, s17, s21
s_sub_u32 s17, s17, 10
s_cmp_lt_u32 s21, 18
s_cbranch_scc1 L_role_V
s_sub_u32 s17, s17, 8
s_cmp_lt_u32 s21, 26
s_cbranch_scc1 L_role_Q
s_sub_u32 s22, s21, 26
s_lshl_b32 s17, s20, 2
s_sub_u32 s23, s20, 2
s_max_i32 s23, s23, 0
s_sub_u32 s17, s17, s23
s_cmp_lt_u32 s20, 2
s_cselect_b32 s24, 4, 3
s_add_u32 s17, s17, s22
s_cmp_lt_u32 s22, s24
s_cbranch_scc1 L_role_F
s_lshl_b32 s17, s20, 1
s_add_u32 s17, s17, s23            ; 0,2,4,7
s_add_u32 s17, s17, s22
s_sub_u32 s17, s17, s24
s_add_u32 s17, s17, 14
L_role_P:
v_and_b32 v10, 63, v0
v_lshlrev_b32 v1, 4, v10
""")
        if not opt.get('qpf',1): bulk.prefetch(A,"s17",96,1) if opt.get('fpf',0) else bulk.prefetch(A,"s17",40,1,14)
        A("s_endpgm\nL_role_Q:")
        if roles&2: bulk.role_proj(A,"Q",opt)
        else: A("s_endpgm")
        A(f"""L_role_fin:
s_and_b32 s17, s20, 1
s_mul_i32 s17, s17, 10
s_add_u32 s17, s17, s21
s_lshr_b32 s18, s20, 1
s_mul_i32 s19, s20, 10
s_add_u32 s19, s19, s21
L_aux:
""")
        if roles&128: bulk.aux_work(A,"s19",opt)
        A("s_cmp_eq_u32 s18, 3\ns_cbranch_scc1 L_exit")
        if roles&32: bulk.role_final(A,opt)
        else: A("s_endpgm")
    else:
        A(f"""
    L_side_a_rest:
    s_lshl_b32 s17, s20, 3
    s_and_b32 s22, s21, 7
    s_add_u32 s17, s17, s22
    s_cmp_lt_u32 s21, 24
    s_cbranch_scc1 L_role_Q
    s_cmp_lg_u32 s17, 31
    s_cbranch_scc1 {"L_exit" if opt.get('kv',1) else "L_role_K"}
    """)
        if roles&64: bulk.probe_side(A,opt)
        A("s_endpgm\nL_role_Q:")
        if roles&2: bulk.role_proj(A,"Q",opt)
        else: A("s_endpgm")
        A("L_role_K:")
        if roles&4 and not opt.get('kv',1): bulk.role_proj(A,"K",opt)
        else: A("s_endpgm")
        A(f"""
    L_side_b:
    s_sub_u32 s20, s20, 4
    s_cmp_eq_u32 s20, 3
    s_cbranch_scc1 L_die7
    s_cmp_lt_u32 s21, 20
    s_cbranch_scc1 L_role_fin
    s_lshl_b32 s17, s20, 3
    s_add_u32 s17, s17, s21
    s_sub_u32 s17, s17, 20
    s_cmp_lt_u32 s21, 28
    s_cbranch_scc1 L_role_V
    s_lshl_b32 s17, s20, 2
    s_add_u32 s17, s17, s21
    s_sub_u32 s17, s17, 28
    s_branch L_role_F
    L_die7:
    s_add_u32 s17, s21, 24
    s_cmp_lt_u32 s21, 8
    s_cbranch_scc1 L_role_V
    s_add_u32 s17, s21, 4
    s_cmp_lt_u32 s21, 23
    s_cbranch_scc1 L_role_F
    s_mov_b32 s17, 31
    s_cmp_eq_u32 s21, 23
    s_cbranch_scc1 {"L_exit" if opt.get('kv',1) else "L_role_K"}
    s_cmp_ge_u32 s21, 28
    s_cbranch_scc1 L_exit
    s_add_u32 s19, s21, 36
    s_mov_b32 s18, 3
    s_branch L_aux
    L_role_fin:
    s_mov_b32 s17, s21
    s_mov_b32 s18, s20
    s_mul_i32 s19, s20, 20
    s_add_u32 s19, s19, s21
    L_aux:
    """)
        if roles&128: bulk.aux_work(A,"s19",opt)
        A("s_cmp_eq_u32 s18, 3\ns_cbranch_scc1 L_exit")
        if roles&32: bulk.role_final(A,opt)
        else: A("s_endpgm")
    A("L_role_V:")
    if roles&8 and opt.get('kv',1): bulk.role_kv(A,opt)
    elif roles&8: bulk.role_proj(A,"V",opt)
    else: A("s_endpgm")
    A("L_role_F:")
    if roles&16 and QB: bulk.role_kv(A,opt,True)
    elif roles&16: bulk.role_proj(A,"F",opt)
    else: A("s_endpgm")
    A("L_exit:\ns_endpgm\nL_code_end:")
    kernel_desc(A,K,512,256)
    lines,n=fix_hazards(A.lines, verbose=opt.get('verbose',False))
    print("inserted nops:",n,"lines:",len(lines),file=sys.stderr)
    return "\n".join(lines)+"\n"
if __name__=="__main__":
    out=sys.argv[1] if len(sys.argv)>1 else "out.s"
    opt={}
    for a in sys.argv[2:]:
        k,v=a.split("="); opt[k]=int(v)
    open(out,"w").write(build(opt))
```

```python
from common import *
WS=f"s[{S_WS}:{S_WS+3}]"; DB=f"s[{S_DB}:{S_DB+3}]"; TS=f"s[{S_T}:{S_T+3}]"
sI="s17"
sT=[f"s{i}" for i in range(50,60)]
sSpin="s62"
LOG2E=1.4426950408889634

def poll_ge(A,vaddr,vtmp,need,srd,code,sleep=4,soff="0"):
    L=A.label("L_pw"); ok=A.label("L_pok")
    A(f"s_mov_b32 {sSpin}, 0\n{L}:\nbuffer_load_dword {vtmp}, {vaddr}, {srd}, {soff} offen sc1\ns_waitcnt vmcnt(0)")
    A(f"v_cmp_gt_u32 vcc, {need}, {vtmp}\ns_cbranch_vccz {ok}")
    spin_tail(A,sSpin,L,code,sleep=sleep)
    A(f"{ok}:")

def wg_wait(A,vaddr,vtmp,need,srd,code,sleep,first=0):
    L=A.label("L_ww")
    A(f"s_cmp_lg_u32 {sW}, 0\ns_cbranch_scc1 {L}")
    poll_ge(A,vaddr,vtmp,need,srd,code,sleep=sleep)
    A(f"{L}:\ns_barrier")

RS=[126,127]
def rstamp(A,opt,k):
    if not opt.get('prof'): return
    L=A.label("L_rs")
    A(f"""s_cmp_lg_u32 {sW}, 0
s_cbranch_scc1 {L}
s_memrealtime s[98:99]
s_waitcnt lgkmcnt(0)
s_lshl_b32 s99, s2, 6
s_add_u32 s99, s99, {PROF+0xC0000+4*k}
v_mov_b32 v{RS[0]}, s98
v_mov_b32 v{RS[1]}, 0
s_mov_b64 exec, 1
buffer_store_dword v{RS[0]}, v{RS[1]}, {WS}, s99 offen
s_mov_b64 exec, -1
{L}:""")

def rstamp_at(A,opt,k,sS,val):
    if opt.get('prof')!=5: return
    L=A.label("L_ra")
    A(f"s_cmp_lg_u32 {sS}, {val}\ns_cbranch_scc1 {L}\ns_memtime s[{64+2*k}:{65+2*k}]\n{L}:")
def rflush(A,opt,n):
    if opt.get('prof')!=5: return
    A(f"s_waitcnt lgkmcnt(0)\ns_lshl_b32 s99, s2, 8\ns_lshl_b32 s98, {sW}, 6\ns_add_u32 s99, s99, s98\ns_add_u32 s99, s99, {PROF+0xE0000}\nv_mov_b32 v127, 0\ns_mov_b64 exec, 1")
    for k in range(n): A(f"v_mov_b32 v126, s{64+2*k}\nbuffer_store_dword v126, v127, {WS}, s99 offen offset:{4*k}")
    A("s_waitcnt vmcnt(0)\ns_mov_b64 exec, -1")

def xlane_sum(A,v,t):
    A(f"""v_add_f32_dpp {v}, {v}, {v} row_ror:8 row_mask:0xf bank_mask:0xf
v_mov_b32 {t}, {v}
v_permlane16_swap_b32 {v}, {t}
v_add_f32 {v}, {v}, {t}
v_mov_b32 {t}, {v}
v_permlane32_swap_b32 {v}, {t}
v_add_f32 {v}, {v}, {t}""")

def aux_work(A,sA,opt):
    RAW,X=16,64
    srd(A,S_T,P_X,2048*1280)
    A(f"""
v_and_b32 v10, 63, v0
v_and_b32 v1, 7, v10
v_lshrrev_b32 v2, 3, v10
v_mul_u32_u24 v3, 1280, v1
v_lshl_add_u32 v3, v2, 4, v3
s_lshl_b32 {sT[0]}, {sA}, 2
s_add_u32 {sT[0]}, {sT[0]}, {sW}
s_mul_i32 {sT[0]}, {sT[0]}, {8*1280}
""")
    for j in range(10): A(f"buffer_load_dwordx4 {vr(RAW+4*j,4)}, v3, {TS}, {sT[0]} offen offset:{128*j}")
    A(f"""
v_mov_b32 v4, 0
v_mov_b32 v5, 0
v_mov_b32 v6, 0
v_mov_b32 v7, 0
v_lshlrev_b32 v8, 4, v0
v_mov_b32 v9, 0x7ffffff0
v_cmp_gt_u32 vcc, 24, v0
v_cndmask_b32 v8, v9, v8, vcc
s_mul_i32 {sT[1]}, {sA}, 384
s_add_u32 {sT[1]}, {sT[1]}, {FLAGS}
buffer_store_dwordx4 v[4:7], v8, {WS}, {sT[1]} offen sc1
v_lshrrev_b32 v4, 1, v2
v_lshlrev_b32 v4, 10, v4
v_and_b32 v5, 1, v2
v_lshl_add_u32 v4, v5, 9, v4
v_lshl_add_u32 v4, v1, 4, v4
s_mul_i32 {sT[2]}, {sA}, 40960
s_lshl_b32 {sT[3]}, {sW}, 7
s_add_u32 {sT[2]}, {sT[2]}, {sT[3]}
s_add_u32 {sT[2]}, {sT[2]}, {XNF}
""")
    (ring_reset4 if opt.get('h4',0) else ring_reset)(A,sA)
    for j in range(10):
        A(f"s_waitcnt vmcnt({(14 if opt.get('h4',0) else 17)-j})")
        for k in range(4):
            A(f"v_lshlrev_b32 v{X+8*j+2*k}, 16, v{RAW+4*j+k}\nv_and_b32 v{X+8*j+2*k+1}, 0xffff0000, v{RAW+4*j+k}")
    A(f"v_pk_add_f32 v[6:7], {vr(X,2)}, {vr(X+2,2)}")
    for i in range(4,80,2): A(f"v_pk_add_f32 v[6:7], v[6:7], {vr(X+i,2)}")
    A("v_add_f32 v6, v6, v7"); xlane_sum(A,"v6","v7")
    A(f"v_mul_f32 v6, {hex(f2u(1/640))}, v6")
    A(f"v_pk_add_f32 v[12:13], {vr(X,2)}, v[6:7] op_sel_hi:[1,0] neg_lo:[0,1] neg_hi:[0,1]\nv_pk_mul_f32 v[8:9], v[12:13], v[12:13]")
    for i in range(2,80,2):
        A(f"v_pk_add_f32 v[12:13], {vr(X+i,2)}, v[6:7] op_sel_hi:[1,0] neg_lo:[0,1] neg_hi:[0,1]\nv_pk_fma_f32 v[8:9], v[12:13], v[12:13], v[8:9]")
    A("v_add_f32 v8, v8, v9"); xlane_sum(A,"v8","v9")
    A(f"""
v_mul_f32 v8, {hex(f2u(1/640))}, v8
v_cvt_pk_bf16_f32 v6, v6, v6
v_and_b32 v6, 0xffff0000, v6
v_cvt_pk_bf16_f32 v8, v8, v8
v_and_b32 v8, 0xffff0000, v8
v_add_f32 v8, {hex(f2u(1e-5))}, v8
v_cvt_pk_bf16_f32 v8, v8, v8
v_and_b32 v8, 0xffff0000, v8
v_sqrt_f32 v8, v8
v_cvt_pk_bf16_f32 v8, v8, v8
v_and_b32 v8, 0xffff0000, v8
v_rcp_f32 v8, v8
""")
    for j in range(10):
        for k in range(4):
            r=X+8*j+2*k
            A(f"""v_pk_add_f32 {vr(r,2)}, {vr(r,2)}, v[6:7] op_sel_hi:[1,0] neg_lo:[0,1] neg_hi:[0,1]
v_cvt_pk_bf16_f32 v12, v{r}, v{r+1}
v_lshlrev_b32 v{r}, 16, v12
v_and_b32 v{r+1}, 0xffff0000, v12
v_pk_mul_f32 {vr(r,2)}, {vr(r,2)}, v[8:9] op_sel_hi:[1,0]
v_cvt_pk_bf16_f32 v{RAW+4*j+k}, v{r}, v{r+1}""")
        A(f"buffer_store_dwordx4 {vr(RAW+4*j,4)}, v4, {WS}, {sT[2]} offen sc1")
        if j<9: A(f"s_add_u32 {sT[2]}, {sT[2]}, 4096")
    A(f"""
s_waitcnt vmcnt(0)
s_barrier
s_cmp_lg_u32 {sW}, 0
s_cbranch_scc1 L_aux1
v_mov_b32 v4, 1
v_mov_b32 v5, {D_C1}
s_mov_b64 exec, 1
buffer_atomic_add v4, v5, {DB}, 0 offen sc1
s_mov_b64 exec, -1
L_aux1:
""")
    rstamp(A,opt,9)

def ring_reset(A,sA):
    A(f"""
v_mov_b32 v56, -1
v_mov_b32 v57, -1
v_mov_b32 v58, -1
v_mov_b32 v59, -1
v_lshrrev_b32 v60, 4, v10
v_lshlrev_b32 v60, 14, v60
v_bfe_u32 v61, v10, 3, 1
v_lshl_add_u32 v60, v61, 13, v60
v_and_b32 v62, 7, v10
v_lshl_add_u32 v60, v62, 4, v60
s_mul_i32 s21, {sW}, {20*16384}
s_lshl_b32 s22, {sA}, 7
s_add_u32 s21, s21, s22
""")
    for k in range(5):
        A(f"s_add_u32 s23, s21, {k*4*16384}\nbuffer_store_dwordx4 v[56:59], v60, {WS}, s23 offen sc1")
    A(f"""
s_lshl_b32 s23, {sW}, 6
s_add_u32 s23, s23, {sA}
s_cmp_lt_u32 s23, 80
s_cselect_b32 s24, 16, 0
v_mov_b32 v61, 0x7ffffff0
v_cmp_gt_u32 vcc, s24, v10
v_cndmask_b32 v60, v61, v60, vcc
s_min_u32 s23, s23, 79
s_mul_i32 s24, s23, 3277
s_lshr_b32 s24, s24, 16
s_mul_i32 s25, s24, 20
s_sub_u32 s23, s23, s25
s_lshl_b32 s23, s23, 7
s_lshr_b32 s25, s24, 1
s_lshl_b32 s25, s25, 14
s_add_u32 s23, s23, s25
s_and_b32 s25, s24, 1
s_lshl_b32 s25, s25, 12
s_add_u32 s23, s23, s25
s_add_u32 s23, s23, {80*16384}
buffer_store_dwordx4 v[56:59], v60, {WS}, s23 offen sc1
s_cmp_eq_u32 {sW}, 2
s_cselect_b32 s24, 16, 0
v_lshlrev_b32 v60, 13, v10
v_and_b32 v60, 0x10000, v60
v_lshrrev_b32 v60, 3, v60
v_lshl_add_u32 v60, v62, 4, v60
v_cmp_gt_u32 vcc, s24, v10
v_cndmask_b32 v60, v61, v60, vcc
s_lshr_b32 s23, {sA}, 5
s_lshl_b32 s23, s23, 14
s_and_b32 s24, {sA}, 31
s_lshl_b32 s24, s24, 8
s_add_u32 s23, s23, s24
s_add_u32 s23, s23, {112*16384}
buffer_store_dwordx4 v[56:59], v60, {WS}, s23 offen sc1
""")

def ring_reset4(A,sA):
    import chain2 as H
    A(f"""
v_mov_b32 v56, -1
v_mov_b32 v57, -1
v_mov_b32 v58, -1
v_mov_b32 v59, -1
v_and_b32 v62, 7, v10
v_lshlrev_b32 v62, 4, v62
v_lshrrev_b32 v63, 3, v10
v_lshl_add_u32 v60, v63, 11, v62
v_mov_b32 v61, 0x7ffffff0
s_lshr_b32 s20, {sA}, 4
s_and_b32 s21, {sA}, 15
s_mul_i32 s22, s20, {H.PAGR}
s_lshl_b32 s23, s21, 7
s_add_u32 s22, s22, s23
s_mul_i32 s23, {sW}, {20*2048}
s_add_u32 s22, s22, s23
s_add_u32 s22, s22, {H.PAB}
buffer_store_dwordx4 v[56:59], v60, {WS}, s22 offen sc1
s_add_u32 s22, s22, {8*2048}
buffer_store_dwordx4 v[56:59], v60, {WS}, s22 offen sc1
s_add_u32 s22, s22, {8*2048}
v_cmp_gt_u32 vcc, 32, v10
v_cndmask_b32 v60, v61, v60, vcc
buffer_store_dwordx4 v[56:59], v60, {WS}, s22 offen sc1
s_lshr_b32 s22, s21, 1
s_lshl_b32 s22, s22, 14
s_and_b32 s23, s21, 1
s_lshl_b32 s23, s23, 12
s_add_u32 s22, s22, s23
s_lshl_b32 s23, s20, 7
s_add_u32 s22, s22, s23
s_lshl_b32 s23, {sW}, 13
s_add_u32 s22, s22, s23
s_lshl_b32 s23, s20, 15
s_mul_i32 s24, s21, 640
s_add_u32 s23, s23, s24
s_add_u32 s23, s23, {H.LMB}
s_cmp_eq_u32 {sW}, 2
s_cselect_b32 s22, s23, s22
s_cselect_b32 s25, 7, 9
s_lshr_b32 s23, {sA}, 5
s_lshl_b32 s23, s23, 14
s_and_b32 s24, {sA}, 31
s_lshl_b32 s24, s24, 8
s_add_u32 s23, s23, s24
s_add_u32 s23, s23, {112*16384}
s_cmp_eq_u32 {sW}, 3
s_cselect_b32 s22, s23, s22
s_cselect_b32 s25, 13, s25
s_cselect_b32 s24, 16, 40
v_lshlrev_b32 v60, s25, v63
v_add_u32 v60, v60, v62
v_cmp_gt_u32 vcc, s24, v10
v_cndmask_b32 v60, v61, v60, vcc
buffer_store_dwordx4 v[56:59], v60, {WS}, s22 offen sc1
""")

def probe_side(A,opt):
    A(f"""
v_and_b32 v10, 63, v0
v_mov_b32 v3, 0
v_mov_b32 v4, -1
v_mov_b32 v5, -1
ds_write_b64 v3, v[4:5]
v_mov_b32 v5, {D_C1}
s_waitcnt lgkmcnt(0)
""")
    wg_wait(A,"v5","v6",NAUX,DB,0x202,sleep=12)
    A(f"""
s_and_b32 s25, {sW}, 1
s_lshl_b32 s26, s25, 2
v_mov_b32 v8, s26
s_lshl_b32 s20, s25, 13
s_lshr_b32 s21, {sW}, 1
s_lshl_b32 s21, s21, 8
s_add_u32 s20, s20, s21
s_add_u32 s20, s20, {112*16384}
s_mov_b32 s24, 0                  ; round
s_mov_b64 exec, 1
buffer_load_dword v16, v3, {WS}, s20 offen offset:128 sc1
s_waitcnt vmcnt(0)
L_probe:
s_and_b32 s22, s24, 15
s_lshl_b32 s22, s22, 9
s_lshr_b32 s23, s24, 4
s_lshl_b32 s23, s23, 14
s_add_u32 s22, s22, s23
s_add_u32 s22, s22, s20
s_memtime s[26:27]
s_waitcnt lgkmcnt(0)
buffer_load_dword v16, v3, {WS}, s22 offen sc1
s_waitcnt vmcnt(0)
s_memtime s[28:29]
s_waitcnt lgkmcnt(0)
s_sub_u32 s23, s28, s26
v_mov_b32 v7, s23
ds_min_u32 v8, v7
s_waitcnt lgkmcnt(0)
s_barrier
ds_read_b64 v[6:7], v3
s_waitcnt lgkmcnt(0)
v_readfirstlane_b32 s26, v6
v_readfirstlane_b32 s27, v7
s_barrier""")
    if opt.get('prof'):
        A(f"""v_mov_b32 v20, s23
s_lshl_b32 s29, s24, 2
s_add_u32 s29, s29, {sW}
s_lshl_b32 s29, s29, 2
s_add_u32 s29, s29, {PROF+0xD0000}
buffer_store_dword v20, v3, {WS}, s29 offen""")
    A(f"""
s_add_u32 s24, s24, 1
s_cmp_lt_u32 s24, 3
s_cbranch_scc1 L_probe
s_sub_i32 s28, s26, s27
s_abs_i32 s28, s28
s_min_u32 s29, s26, s27
s_lshr_b32 s29, s29, 2
s_cmp_ge_u32 s28, {"s29" if 'pgap' not in opt else opt['pgap']}
s_cbranch_scc1 L_probe_end
s_cmp_lt_u32 s24, {opt.get('prounds',32)}
s_cbranch_scc1 L_probe
L_probe_end:
s_cmp_lt_u32 s26, s27
s_cselect_b32 s21, 2, 5
""")
    if 'pol' in opt: A(f"s_mov_b32 s21, {opt['pol']}")
    if opt.get('prof'): A("s_lshl_b32 s24, s24, 4\ns_or_b32 s21, s21, s24\ns_lshr_b32 s26, s26, 2\ns_lshl_b32 s26, s26, 10\ns_or_b32 s21, s21, s26\ns_lshr_b32 s27, s27, 2\ns_lshl_b32 s27, s27, 20\ns_or_b32 s21, s21, s27")
    A(f"""
s_or_b32 s21, s21, 0x80000000
v_mov_b32 v2, s21
v_mov_b32 v5, {D_POL}
buffer_store_dword v2, v5, {DB}, 0 offen sc1
s_mov_b64 exec, -1
""")
    rstamp(A,opt,9)

def tr_base(A,dst,l,order,base):
    A(f"""v_lshrrev_b32 v11, 5, {l}
v_lshlrev_b32 v11, {9 if order==0 else 8}, v11
v_bfe_u32 v12, {l}, 2, 2
v_lshl_add_u32 v11, v12, 6, v11
v_bfe_u32 v12, {l}, 4, 1
v_lshl_add_u32 v11, v12, 5, v11
v_and_b32 v12, 3, {l}
v_lshl_add_u32 v11, v12, 3, v11
v_add_u32 {dst}, {base}, v11""")
    return 256 if order==0 else 512

def prefetch(A,sP,nw,vL16,base=0):
    G=-(-160//(nw//16))
    A(f"""s_sub_u32 {sT[0]}, {sP}, {base}
s_lshl_b32 {sT[0]}, {sT[0]}, 2
s_add_u32 {sT[0]}, {sT[0]}, {sW}
s_bitcmp1_b32 {sT[0]}, 3
s_cselect_b32 s24, s{P_WQ}, s{P_WK}
s_cselect_b32 s25, s{P_WQ+1}, s{P_WK+1}""")
    srd(A,20,24,5242880)
    A(f"""v_lshrrev_b32 v11, 4, v10
v_lshlrev_b32 v11, 13, v11
v_and_b32 v12, 15, v10
v_lshl_add_u32 v11, v12, 4, v11
s_and_b32 {sT[1]}, {sT[0]}, 7
s_lshl_b32 {sT[1]}, {sT[1]}, 10
s_add_u32 {sT[1]}, {sT[1]}, 256
s_lshr_b32 {sT[2]}, {sT[0]}, 4
s_mul_i32 {sT[2]}, {sT[2]}, {G}""")
    for i in range(G):
        if i>=48 and i%8==0: A("s_waitcnt vmcnt(40)")
        A(f"""s_add_u32 {sT[3]}, {sT[2]}, {i}
s_lshl_b32 {sT[3]}, {sT[3]}, 15
s_add_u32 {sT[3]}, {sT[3]}, {sT[1]}
buffer_load_dwordx4 v[16:19], v11, s[20:23], {sT[3]} offen""")
    n=-(-5120//nw); n+=(-n)%4
    A(f"s_waitcnt vmcnt({max(62-n,30)})")
    srd(A,S_T,P_WO,5242880)
    A(f"s_mul_i32 {sT[0]}, {sT[0]}, {n*1024}")
    for i in range(n):
        if i%4==0 and i: A(f"s_add_u32 {sT[0]}, {sT[0]}, 4096")
        if i>=32 and i%8==0: A("s_waitcnt vmcnt(54)")
        A(f"buffer_load_dwordx4 v[16:19], v{vL16}, {TS}, {sT[0]} offen offset:{(i%4)*1024}")
    A("s_waitcnt vmcnt(0)")

def role_proj(A,kind,opt):
    tag=kind
    NS=2 if kind=="Q" else 3
    vL16,vTR,vST,vFL=1,2,3,4
    ACC=16; FB=32; NF=6
    sL,sS,sXN,sSlot,sOut,sFlag,sDst=[f"s{i}" for i in range(32,39)]
    vm=Cnt(A,"vmcnt",63); lg=Cnt(A,"lgkmcnt",15)
    A(f"""
v_and_b32 v10, 63, v0
v_lshlrev_b32 v{vL16}, 4, v10
""")
    if kind=="F":
        if opt.get('pf',3): prefetch(A,sI,108,vL16)
        A(f"v_mov_b32 v5, {D_C1}")
        wg_wait(A,"v5","v6",NAUX,DB,0x214,sleep=48)
        if opt.get('gateF',0):
            A(f"s_lshl_b32 {sT[0]}, {sI}, 8\ns_add_u32 {sT[0]}, {sT[0]}, {F_KM}\nv_mov_b32 v5, {sT[0]}")
            wg_wait(A,"v5","v6",1,WS,0x215,sleep=32)
    if kind=="Q" and opt.get('qpf',1) and opt.get('qb',1): prefetch(A,sI,128,vL16)
    if kind=="Q" and opt.get('gateQ',1):
        A(f"v_mov_b32 v5, {D_POL}\ns_mov_b32 s20, 0x80000000")
        wg_wait(A,"v5","v6","s20",DB,0x216,sleep=32)
    A(f"""v_lshrrev_b32 v11, 4, v10
v_lshlrev_b32 v12, 2, v11
v_sub_u32 v12, v10, v12
v_and_b32 v12, 15, v12
s_lshl_b32 {sT[0]}, {sW}, 2
v_add_u32 v11, {sT[0]}, v11
s_lshl_b32 {sL}, {sW}, 10""")
    toks=[]
    if kind!="F":
        srd(A,S_T,{"K":P_WK,"V":P_WV,"Q":P_WQ}[kind],5242880)
        A(f"""v_lshlrev_b32 v11, 13, v11
v_lshl_add_u32 v13, v12, 4, v11
s_lshl_b32 {sT[0]}, {sI}, 8""")
        for i in range(40):
            A(f"s_add_u32 m0, {sL}, {i*4096}\ns_add_u32 {sT[1]}, {sT[0]}, {i*16*8192}")
            toks.append(vm.issue(f"buffer_load_dwordx4 v13, {TS}, {sT[1]} offen lds"))
    else:
        A(f"""v_mul_u32_u24 v11, 3456, v11
v_and_b32 v5, 7, v12
v_lshl_add_u32 v11, v5, 4, v11
s_lshl_b32 {sT[0]}, {sI}, 7
v_add_u32 v11, {sT[0]}, v11
v_cmp_gt_u32 vcc, 8, v12
v_mov_b32 v12, s{P_WG}
v_mov_b32 v13, s{P_WG+1}
v_mov_b32 v14, s{P_WU}
v_mov_b32 v15, s{P_WU+1}
v_cndmask_b32 v12, v14, v12, vcc
v_cndmask_b32 v13, v15, v13, vcc
v_add_co_u32 v12, vcc, v12, v11
v_addc_co_u32 v13, vcc, 0, v13, vcc""")
        for i in range(40):
            A(f"s_add_u32 m0, {sL}, {i*4096}\ns_nop 0")
            toks.append(vm.issue(f"global_load_lds_dwordx4 v[12:13], off"))
            if i<39: A(f"v_add_co_u32 v12, vcc, {16*3456}, v12\nv_addc_co_u32 v13, vcc, 0, v13, vcc")
    A(f"""v_bfe_u32 v11, v10, 2, 2
v_bfe_u32 v12, v10, 4, 1
v_lshlrev_b32 v12, {3 if kind=="F" else 1}, v12
v_lshl_add_u32 v12, v11, 2, v12
v_bfe_u32 v14, v10, 1, 1
v_add_u32 v12, v12, v14
s_lshl_b32 {sT[0]}, {sW}, {1 if kind=="F" else 2}
v_add_u32 v12, {sT[0]}, v12
v_and_b32 v12, 15, v12
v_lshlrev_b32 v12, 4, v12
v_lshl_add_u32 v12, v11, 8, v12
v_lshrrev_b32 v11, 5, v10
v_lshl_add_u32 v12, v11, 11, v12
v_and_b32 v11, 1, v10
v_lshl_add_u32 v{vTR}, v11, 3, v12
v_add_u32 v15, 65536, v{vTR}
v_add_u32 v14, 131072, v{vTR}""")
    ustep=1024
    if kind in "KQ":
        A(f"""v_bfe_u32 v11, v10, 4, 1
v_lshlrev_b32 v11, 12, v11
v_lshrrev_b32 v12, 5, v10
v_lshl_add_u32 v11, v12, 8, v11
v_and_b32 v12, 15, v10
v_lshl_add_u32 v{vST}, v12, 4, v11""")
    elif kind=="V":
        A(f"""v_bfe_u32 v11, v10, 4, 1
v_lshlrev_b32 v11, 10, v11
v_lshrrev_b32 v12, 5, v10
v_lshl_add_u32 v11, v12, 8, v11
v_and_b32 v12, 15, v10
v_lshl_add_u32 v{vST}, v12, 4, v11""")
    else: A(f"v_mov_b32 v{vST}, v{vL16}")
    if kind=="K": A(f"s_lshl_b32 {sOut}, {sI}, 19\ns_lshl_b32 {sT[2]}, {sW}, 10\ns_add_u32 {sOut}, {sOut}, {sT[2]}\ns_add_u32 {sOut}, {sOut}, {KXF}")
    if kind=="V": A(f"s_lshl_b32 {sOut}, {sI}, 19\ns_lshl_b32 {sT[2]}, {sW}, 11\ns_add_u32 {sOut}, {sOut}, {sT[2]}\ns_add_u32 {sOut}, {sOut}, {VXF}")
    if kind=="F": A(f"s_lshl_b32 {sOut}, {sI}, 2\ns_add_u32 {sOut}, {sOut}, {sW}\ns_lshl_b32 {sOut}, {sOut}, 10\ns_add_u32 {sOut}, {sOut}, {HF}")
    fbase={"K":F_KP,"V":F_VP,"F":F_HP,"Q":F_OP}[kind]
    A(f"s_lshl_b32 {sFlag}, {sI}, 7\ns_lshl_b32 {sT[2]}, {sW}, 2\ns_add_u32 {sFlag}, {sFlag}, {sT[2]}\ns_add_u32 {sFlag}, {sFlag}, {fbase}")
    for i in range(40):
        if i%8==0:
            vm.wait(toks[i+7]); A("s_barrier")
        for u in range(2): lg.issue(f"ds_read_b64_tr_b16 {ar(4*i+2*u,2)}, v{(vTR,15,14)[i//16]} offset:{(i%16)*4096+u*ustep}")
    rstamp(A,opt,1)
    if kind=="Q": q_setup(A)
    if kind!="F":
        A(f"v_mov_b32 v5, {D_C1}")
        wg_wait(A,"v5","v6",NAUX,DB,0x210+"KVQF".index(kind),sleep=12)
    rstamp(A,opt,2)
    if opt.get('fake'+kind):
        A(f"v_mov_b32 v6, 64\ns_mov_b64 exec, 1\nbuffer_store_dword v6, v{vL16}, {WS}, {sFlag} offen sc1\ns_waitcnt vmcnt(0)\ns_endpgm")
    A(f"""s_waitcnt lgkmcnt(0)
s_barrier
s_mul_i32 {sXN}, {sW}, 10240
s_add_u32 {sXN}, {sXN}, {XNF}
s_mul_i32 {sDst}, {sW}, 10240
s_mov_b32 {sSlot}, 0
s_mov_b32 {sS}, 0
""")
    def xdma(k):
        so=f"{sT[3]}"
        if k%4==0: A(f"s_add_u32 m0, {sDst}, {k*1024}\ns_add_u32 {so}, {sXN}, {k*1024}")
        vm.issue(f"buffer_load_dwordx4 v{vL16}, {WS}, {so} offen offset:{(k%4)*1024} lds")
    def xadv():
        A(f"""s_add_u32 {sXN}, {sXN}, 40960
s_add_u32 {sDst}, {sDst}, 40960
s_cmp_ge_u32 {sDst}, {NS*40960}
s_cselect_b32 {sT[4]}, {NS*40960}, 0
s_sub_u32 {sDst}, {sDst}, {sT[4]}""")
    QE=(kind=="Q" and opt.get('qe',0))
    Q3=(kind=="Q" and not QE)
    for n in range(NS if QE else NS-1):
        for k in range(10): xdma(k)
        xadv()
    if QE:
        A("s_mov_b32 s49, 0\ns_mov_b32 s46, 1")
        q_prefetch(A,vm,sS,early=True)
    A(f"s_waitcnt vmcnt({0 if QE else 10*(NS-2)})")
    A(f"L_{tag}_loop:")
    vm=Cnt(A,"vmcnt",63); lg=Cnt(A,"lgkmcnt",15)
    A(f"s_barrier\nv_add_u32 v5, {sSlot}, v{vL16}")
    if kind=="Q": rstamp_at(A,opt,0,sS,40)
    if Q3: A(f"s_add_u32 s46, {sS}, 1\ns_mov_b32 s49, 0")
    ft={}
    def fr(i): ft[i]=lg.issue(f"ds_read_b128 {vr(FB+4*(i%NF),4)}, v5 offset:{i*1024}")
    for i in range(NF-1): fr(i)
    for i in range(40):
        lg.wait(ft[i])
        x=vr(FB+4*(i%NF),4); w=ar(4*i,4); c="0" if i==0 else vr(ACC,16)
        if kind=="V": A(f"v_mfma_f32_32x32x16_bf16 {vr(ACC,16)}, {x}, {w}, {c}")
        else: A(f"v_mfma_f32_32x32x16_bf16 {vr(ACC,16)}, {w}, {x}, {c}")
        if i+NF-1<40: fr(i+NF-1)
        if i<10 and not QE: xdma(i)
        if Q3 and i==11: q_check(A)
        if Q3 and 12<=i<16: q_kv(A,vm,i-12)
        if Q3 and i==19: tkm=vm.issue(f"buffer_load_dword v71, v{qKMF}, {WS}, 0 offen sc1")
        if i==10:
            if not QE: xadv()
            A(f"""s_add_u32 {sSlot}, {sSlot}, 40960
s_cmp_ge_u32 {sSlot}, {NS*40960}
s_cselect_b32 {sT[4]}, {NS*40960}, 0
s_sub_u32 {sSlot}, {sSlot}, {sT[4]}""")
        if i==(20 if kind=='Q' else 30):
            A(f"s_waitcnt vmcnt({0 if QE else 15 if kind=='Q' else 10})\nv_mov_b32 v6, {sS}\ns_mov_b64 exec, 1")
            vm.issue(f"buffer_store_dword v6, v{vL16}, {WS}, {sFlag} offen sc1")
            A("s_mov_b64 exec, -1")
    cvt=lambda d,a,b: A(f"v_cvt_pk_bf16_f32 v{d}, v{a}, v{b}")
    O=56
    if kind in "KQ":
        for i in range(8): cvt(O+i,ACC+2*i,ACC+2*i+1)
    elif kind=="V":
        for i in range(2):
            cvt(O+4*i,ACC+4*i,ACC+4*i+1); cvt(O+4*i+1,ACC+4*i+2,ACC+4*i+3)
            cvt(O+4*i+2,ACC+8+4*i,ACC+9+4*i); cvt(O+4*i+3,ACC+10+4*i,ACC+11+4*i)
    else:
        for i in range(8): A(f"v_mul_f32 v{O+i}, {hex(f2u(-LOG2E))}, v{ACC+i}")
        for i in range(8): A(f"v_exp_f32 v{O+i}, v{O+i}")
        for i in range(8): A(f"v_add_f32 v{O+i}, 1.0, v{O+i}")
        for i in range(8): A(f"v_rcp_f32 v{O+i}, v{O+i}")
        for i in range(8): A(f"v_mul_f32 v{ACC+i}, v{ACC+i}, v{ACC+8+i}")
        for i in range(8): A(f"v_mul_f32 v{ACC+i}, v{ACC+i}, v{O+i}")
        for i in range(4): cvt(O+i,ACC+2*i,ACC+2*i+1)
    if kind=="Q":
        rstamp_at(A,opt,1,sS,40)
        def nxt():
            A(f"s_add_u32 s46, {sS}, 2\ns_min_u32 s46, s46, 64")
            q_prefetch(A,vm,sS,early=True)
            for k in range(10): xdma(k)
            xadv()
        if Q3: q_attention3(A,vm,lg,sS,O,opt,tkm)
        else: q_attention(A,vm,lg,sS,vST,O,sFlag,opt,nxt if QE else None)
        nst=63 if QE else 2
    else:
        nst=1 if kind=="F" else 2
        for i in range(nst): vm.issue(f"buffer_store_dwordx4 {vr(O+4*i,4)}, v{vST}, {WS}, {sOut} offen offset:{512*i} sc1")
        A(f"s_add_u32 {sOut}, {sOut}, {110592 if kind=='F' else 8192}")
    if opt.get('prof'):
        for kk,sv in ((3,0),(4,3),(5,15),(6,31),(7,47),(8,63)):
            L=A.label("L_sk"); A(f"s_cmp_lg_u32 {sS}, {sv}\ns_cbranch_scc1 {L}"); rstamp(A,opt,kk); A(f"{L}:")
    A(f"""s_add_u32 {sS}, {sS}, 1
s_cmp_lt_u32 {sS}, 64
s_waitcnt vmcnt({min(63,(11 if NS==3 else 0)+nst)})
s_cbranch_scc1 L_{tag}_loop""")
    if kind=="Q": rflush(A,opt,6)
    A(f"""s_waitcnt vmcnt(0)
v_mov_b32 v6, 64
s_mov_b64 exec, 1
buffer_store_dword v6, v{vL16}, {WS}, {sFlag} offen sc1
s_waitcnt vmcnt(0)
s_endpgm""")

def role_kv(A,opt,F=False):
    NS=3
    vL16,vTR,vSK,vSV,vFA=1,2,3,4,7
    AK,AV=16,32; FB=48; NF=6; O=72
    sL,sS,sXN,sSlot,sOK,sFlag,sDst,sOV=[f"s{i}" for i in range(32,40)]
    vm=Cnt(A,"vmcnt",63); lg=Cnt(A,"lgkmcnt",15)
    TAG="F2" if F else "KV"
    A(f"v_and_b32 v10, 63, v0\nv_lshlrev_b32 v{vL16}, 4, v10")
    if F:
        if opt.get('pf',3) and opt.get('fpf',0) and not opt.get('qpf',1): prefetch(A,sI,96,vL16)
        if opt.get('fgate',1):
            A(f"v_mov_b32 v5, {D_C1}")
            wg_wait(A,"v5","v6",NAUX,DB,0x214,sleep=48)
    else:
        srd(A,S_T,P_WK,5242880); srd(A,20,P_WV,5242880)
    A(f"""
v_lshrrev_b32 v11, 4, v10
v_lshlrev_b32 v12, 2, v11
v_sub_u32 v12, v10, v12
v_and_b32 v12, 15, v12
s_lshl_b32 {sT[0]}, {sW}, 2
v_add_u32 v11, {sT[0]}, v11
s_lshl_b32 {sL}, {sW}, 10""")
    if not F:
        A(f"v_lshlrev_b32 v11, 13, v11\nv_lshl_add_u32 v13, v12, 4, v11\ns_lshl_b32 {sT[0]}, {sI}, 8")
    else:
        A(f"""v_mul_u32_u24 v11, 3456, v11
v_and_b32 v5, 7, v12
v_lshl_add_u32 v11, v5, 4, v11
s_lshl_b32 {sT[0]}, {sI}, 8
v_add_u32 v11, {sT[0]}, v11
v_cmp_gt_u32 vcc, 8, v12
v_mov_b32 v12, s{P_WG}
v_mov_b32 v13, s{P_WG+1}
v_mov_b32 v14, s{P_WU}
v_mov_b32 v15, s{P_WU+1}
v_cndmask_b32 v12, v14, v12, vcc
v_cndmask_b32 v13, v15, v13, vcc
v_add_co_u32 v12, vcc, v12, v11
v_addc_co_u32 v13, vcc, 0, v13, vcc
s_cmp_lt_u32 {sI}, 13
s_cselect_b32 {sT[0]}, 128, 0
v_add_co_u32 v8, vcc, {sT[0]}, v12
v_addc_co_u32 v9, vcc, 0, v13, vcc""")
    toks={}
    def wdma(n):
        c,k=divmod(n,8); m,i=c&1,(c>>1)*8+k
        if F:
            r=8 if m else 12
            A(f"s_add_u32 m0, {sL}, {(n%40)*4096}\ns_nop 0")
            toks[n]=vm.issue(f"global_load_lds_dwordx4 v[{r}:{r+1}], off")
            A(f"v_add_co_u32 v{r}, vcc, {16*3456}, v{r}\nv_addc_co_u32 v{r+1}, vcc, 0, v{r+1}, vcc")
            return
        A(f"s_add_u32 m0, {sL}, {(n%40)*4096}\ns_add_u32 {sT[1]}, {sT[0]}, {i*16*8192}")
        toks[n]=vm.issue(f"buffer_load_dwordx4 v13, {'s[20:23]' if m else TS}, {sT[1]} offen lds")
    def wreg(m,i,u):
        r=160*m+4*i+2*u
        return ar(r,2) if r<256 else vr(192+r-256,2)
    for n in range(40): wdma(n)
    A(f"""v_bfe_u32 v11, v10, 2, 2
v_bfe_u32 v88, v10, 4, 1
v_lshlrev_b32 v88, {3 if F else 1}, v88
v_lshl_add_u32 v88, v11, 2, v88
v_bfe_u32 v14, v10, 1, 1
v_add_u32 v88, v88, v14
s_lshl_b32 {sT[2]}, {sW}, {1 if F else 2}
v_add_u32 v88, {sT[2]}, v88
v_and_b32 v88, 15, v88
v_lshlrev_b32 v88, 4, v88
v_lshl_add_u32 v88, v11, 8, v88
v_lshrrev_b32 v11, 5, v10
v_lshl_add_u32 v88, v11, 11, v88
v_and_b32 v11, 1, v10
v_lshl_add_u32 v{vTR}, v11, 3, v88
v_add_u32 v15, 65536, v{vTR}
v_add_u32 v14, 131072, v{vTR}""")
    if F: A(f"""
v_mov_b32 v{vSK}, v{vL16}
v_mov_b32 v88, 0x7ffffff0
s_cmp_lt_u32 {sI}, 13
s_cselect_b64 vcc, -1, 0
v_cndmask_b32 v{vSV}, v88, v{vL16}, vcc
v_lshlrev_b32 v{vFA}, 7, v10
s_cselect_b32 {sT[2]}, 2, 1
v_cmp_gt_u32 vcc, {sT[2]}, v10
v_cndmask_b32 v{vFA}, v88, v{vFA}, vcc
s_lshl_b32 {sOK}, {sI}, 3
s_add_u32 {sOK}, {sOK}, {sW}
s_lshl_b32 {sOK}, {sOK}, 10
s_add_u32 {sOK}, {sOK}, {HF}
s_add_u32 {sOV}, {sOK}, 4096
s_lshl_b32 {sFlag}, {sI}, 8
s_lshl_b32 {sT[2]}, {sW}, 2
s_add_u32 {sFlag}, {sFlag}, {sT[2]}
s_add_u32 {sFlag}, {sFlag}, {F_HP}""")
    else: A(f"""
v_bfe_u32 v11, v10, 4, 1
v_lshrrev_b32 v12, 5, v10
v_lshlrev_b32 v12, 8, v12
v_and_b32 v5, 15, v10
v_lshl_add_u32 v12, v5, 4, v12
v_lshl_add_u32 v{vSK}, v11, 12, v12
v_lshl_add_u32 v{vSV}, v11, 10, v12
v_lshlrev_b32 v{vFA}, 12, v10
s_lshl_b32 {sOK}, {sI}, 19
s_lshl_b32 {sT[2]}, {sW}, 10
s_add_u32 {sOV}, {sOK}, {sT[2]}
s_add_u32 {sOK}, {sOV}, {KXF}
s_add_u32 {sOV}, {sOV}, {sT[2]}
s_add_u32 {sOV}, {sOV}, {VXF}
s_lshl_b32 {sFlag}, {sI}, 7
s_lshl_b32 {sT[2]}, {sW}, 2
s_add_u32 {sFlag}, {sFlag}, {sT[2]}
s_add_u32 {sFlag}, {sFlag}, {F_KP}""")
    for c in range(10):
        vm.wait(toks[8*c+7]); A("s_barrier")
        if c>=1 and c+4<10:
            for n in range(8*(c+4),8*(c+5)): wdma(n)
        for k in range(8):
            n=8*c+k; m,i=c&1,(c>>1)*8+k; sl=n%40
            for u in range(2): lg.issue(f"ds_read_b64_tr_b16 {wreg(m,i,u)}, v{(vTR,15,14)[sl//16]} offset:{(sl%16)*4096+u*1024}")
        lg.waitall()
    rstamp(A,opt,1)
    if F and opt.get('fgate',1): A("s_barrier")
    else:
        A(f"v_mov_b32 v5, {D_C1}")
        wg_wait(A,"v5","v6",NAUX,DB,0x210,sleep=12)
    rstamp(A,opt,2)
    A(f"""
s_mul_i32 {sXN}, {sW}, 10240
s_add_u32 {sXN}, {sXN}, {XNF}
s_mul_i32 {sDst}, {sW}, 10240
s_mov_b32 {sSlot}, 0
s_mov_b32 {sS}, 0
""")
    def xdma(k):
        so=f"{sT[3]}"
        if k%4==0: A(f"s_add_u32 m0, {sDst}, {k*1024}\ns_add_u32 {so}, {sXN}, {k*1024}")
        vm.issue(f"buffer_load_dwordx4 v{vL16}, {WS}, {so} offen offset:{(k%4)*1024} lds")
    def xadv():
        A(f"""s_add_u32 {sXN}, {sXN}, 40960
s_add_u32 {sDst}, {sDst}, 40960
s_cmp_ge_u32 {sDst}, {NS*40960}
s_cselect_b32 {sT[4]}, {NS*40960}, 0
s_sub_u32 {sDst}, {sDst}, {sT[4]}""")
    for n in range(NS-1):
        for k in range(10): xdma(k)
        xadv()
    A(f"s_waitcnt vmcnt({10*(NS-2)})")
    A(f"L_{TAG}_loop:")
    vm=Cnt(A,"vmcnt",63); lg=Cnt(A,"lgkmcnt",15)
    A(f"s_barrier\nv_add_u32 v5, {sSlot}, v{vL16}")
    ft={}
    def fr(i): ft[i]=lg.issue(f"ds_read_b128 {vr(FB+4*(i%NF),4)}, v5 offset:{i*1024}")
    def w4(m,i):
        r=160*m+4*i
        return ar(r,4) if r<256 else vr(192+r-256,4)
    for i in range(NF-1): fr(i)
    for i in range(40):
        lg.wait(ft[i])
        x=vr(FB+4*(i%NF),4)
        A(f"v_mfma_f32_32x32x16_bf16 {vr(AK,16)}, {w4(0,i)}, {x}, {'0' if i==0 else vr(AK,16)}")
        if i+NF-1<40: fr(i+NF-1)
        if F: A(f"v_mfma_f32_32x32x16_bf16 {vr(AV,16)}, {w4(1,i)}, {x}, {'0' if i==0 else vr(AV,16)}")
        else: A(f"v_mfma_f32_32x32x16_bf16 {vr(AV,16)}, {x}, {w4(1,i)}, {'0' if i==0 else vr(AV,16)}")
        if i<10: xdma(i)
        if i==10:
            xadv()
            A(f"""s_add_u32 {sSlot}, {sSlot}, 40960
s_cmp_ge_u32 {sSlot}, {NS*40960}
s_cselect_b32 {sT[4]}, {NS*40960}, 0
s_sub_u32 {sSlot}, {sSlot}, {sT[4]}""")
        if i==14:
            A(f"s_waitcnt vmcnt(10)\nv_mov_b32 v6, {sS}\ns_mov_b64 exec, 3")
            vm.issue(f"buffer_store_dword v6, v{vFA}, {WS}, {sFlag} offen sc1")
            A("s_mov_b64 exec, -1")
    cvt=lambda d,a,b: A(f"v_cvt_pk_bf16_f32 v{d}, v{a}, v{b}")
    if F:
        for acc,va,so in ((AK,vSK,sOK),(AV,vSV,sOV)):
            for i in range(8): A(f"v_mul_f32 v{O+i}, {hex(f2u(-LOG2E))}, v{acc+i}")
            for i in range(8): A(f"v_exp_f32 v{O+i}, v{O+i}")
            for i in range(8): A(f"v_add_f32 v{O+i}, 1.0, v{O+i}")
            for i in range(8): A(f"v_rcp_f32 v{O+i}, v{O+i}")
            for i in range(8): A(f"v_mul_f32 v{acc+i}, v{acc+i}, v{acc+8+i}")
            for i in range(8): A(f"v_mul_f32 v{acc+i}, v{acc+i}, v{O+i}")
            d=O+8+(4 if acc==AV else 0)
            for i in range(4): cvt(d+i,acc+2*i,acc+2*i+1)
            vm.issue(f"buffer_store_dwordx4 {vr(d,4)}, v{va}, {WS}, {so} offen sc1")
        A(f"s_add_u32 {sOK}, {sOK}, 110592\ns_add_u32 {sOV}, {sOV}, 110592")
    else:
        for i in range(8): cvt(O+i,AK+2*i,AK+2*i+1)
        for i in range(2): vm.issue(f"buffer_store_dwordx4 {vr(O+4*i,4)}, v{vSK}, {WS}, {sOK} offen offset:{512*i} sc1")
        for i in range(2):
            cvt(O+8+4*i,AV+4*i,AV+4*i+1); cvt(O+8+4*i+1,AV+4*i+2,AV+4*i+3)
            cvt(O+8+4*i+2,AV+8+4*i,AV+9+4*i); cvt(O+8+4*i+3,AV+10+4*i,AV+11+4*i)
        for i in range(2): vm.issue(f"buffer_store_dwordx4 {vr(O+8+4*i,4)}, v{vSV}, {WS}, {sOV} offen offset:{512*i} sc1")
        A(f"s_add_u32 {sOK}, {sOK}, 8192\ns_add_u32 {sOV}, {sOV}, 8192")
    if opt.get('prof'):
        for kk,sv in ((3,0),(4,3),(5,15),(6,31),(7,47),(8,63)):
            L=A.label("L_sk"); A(f"s_cmp_lg_u32 {sS}, {sv}\ns_cbranch_scc1 {L}"); rstamp(A,opt,kk); A(f"{L}:")
    A(f"""s_add_u32 {sS}, {sS}, 1
s_cmp_lt_u32 {sS}, 64
s_waitcnt vmcnt({13 if F else 15})
s_cbranch_scc1 L_{TAG}_loop
s_waitcnt vmcnt(0)
v_mov_b32 v6, 64
s_mov_b64 exec, 3
buffer_store_dword v6, v{vFA}, {WS}, {sFlag} offen sc1
s_waitcnt vmcnt(0)
s_endpgm""")

QF,QKX,QVX,QKM,QVM = 81920, 90112, 98304, 106496, 108544
qKV,qKMF,qZR0,qZR1,qL8,qOA,qQB,qVB = 7,8,9,64,65,66,67,68
MASK=72; qONES=80; qHALF=84
sKX,sVX,sKM,sVM,sO=[f"s{i}" for i in range(40,45)]
def q_setup(A):
    NEG=hex(f2u(-1e9*128**0.5))
    A(f"""
v_and_b32 v11, 4, v10
v_lshlrev_b32 v11, 10, v11
v_and_b32 v12, 3, v10
v_lshl_add_u32 v11, v12, 2, v11
s_lshl_b32 {sT[0]}, {sI}, 7
s_add_u32 {sT[0]}, {sT[0]}, {F_KP}
v_add_u32 v{qKV}, {sT[0]}, v11
v_and_b32 v11, 4, v10
v_lshlrev_b32 v11, 5, v11
v_lshl_add_u32 v11, v12, 2, v11
s_lshl_b32 {sT[0]}, {sI}, 8
s_add_u32 {sT[0]}, {sT[0]}, {F_KM}
v_add_u32 v{qKMF}, {sT[0]}, v11
v_lshlrev_b32 v{qL8}, 3, v10
v_lshrrev_b32 v11, 4, v10
v_and_b32 v12, 1, v11
v_lshrrev_b32 v11, 1, v11
v_bfe_u32 v13, v10, 2, 2
v_and_b32 v14, 1, v10
v_and_b32 v15, 1, v13
v_lshl_add_u32 v15, v15, 1, v14
v_lshrrev_b32 v13, 1, v13
v_lshl_add_u32 v13, v12, 1, v13
v_lshlrev_b32 v13, 3, v13
v_add_u32 v13, {QKM}, v13
""")
    for u,dst in ((0,qZR0),(1,qZR1)):
        A(f"""v_lshl_add_u32 v14, v11, 1, {u}
v_xor_b32 v5, v15, v14
v_lshlrev_b32 v5, 5, v5
v_lshl_add_u32 v5, v14, 7, v5
v_add_u32 v{dst}, v5, v13""")
    A(f"""
v_lshl_add_u32 v5, v11, 1, v12
v_lshrrev_b32 v13, 1, v5
v_lshlrev_b32 v13, 10, v13
v_and_b32 v14, 1, v5
v_lshl_add_u32 v13, v14, 9, v13
v_and_b32 v14, 15, v10
v_lshl_add_u32 v13, v14, 4, v13
s_lshr_b32 {sT[0]}, {sW}, 1
s_lshl_b32 {sT[1]}, {sT[0]}, 12
s_and_b32 {sT[2]}, {sW}, 1
s_lshl_b32 {sT[3]}, {sT[2]}, 8
s_add_u32 {sT[1]}, {sT[1]}, {sT[3]}
v_add_u32 v{qOA}, {sT[1]}, v13
s_lshl_b32 {sT[3]}, {sT[2]}, 12
s_add_u32 {sT[3]}, {sT[3]}, {QF}
v_lshlrev_b32 v13, 4, v10
v_add_u32 v{qQB}, {sT[3]}, v13
s_lshl_b32 {sT[3]}, {sT[0]}, 12
s_add_u32 {sT[3]}, {sT[3]}, {QVX}
v_add_u32 v{qVB}, {sT[3]}, v13
s_lshl_b32 {sT[3]}, {sT[0]}, 11
s_add_u32 {sT[3]}, {sT[3]}, {QVM}
v_add_u32 v{qL8}, {sT[3]}, v{qL8}
s_lshl_b32 {sT[2]}, {sT[2]}, 4
v_add_u32 v14, {sT[2]}, v14
v_lshlrev_b32 v5, 2, v5
v_sub_u32 v14, v14, v5
v_mov_b32 v13, {NEG}
""")
    for t in range(2):
        for r in range(4):
            A(f"v_cmp_gt_i32 vcc, {16*t+r}, v14\nv_cndmask_b32 v{MASK+4*t+r}, 0, v13, vcc")
    for i in range(4): A(f"v_mov_b32 v{qONES+i}, 0x3f803f80")
    for i in range(2): A(f"v_mov_b32 v{qHALF+i}, 0x3f003f00")
    A(f"""s_mov_b32 s60, {hex(f2u(SCALE_LOG2E))}
s_mov_b32 s61, {hex(f2u(SCALE_LOG2E))}
s_lshl_b32 {sT[0]}, {sI}, 19
s_lshl_b32 {sT[1]}, {sW}, 11
s_add_u32 {sT[0]}, {sT[0]}, {sT[1]}
s_add_u32 {sKX}, {sT[0]}, {KXF}
s_add_u32 {sVX}, {sT[0]}, {VXF}
s_lshl_b32 {sT[0]}, {sI}, 17
s_lshl_b32 {sT[1]}, {sW}, 9
s_add_u32 {sKM}, {sT[0]}, {sT[1]}
s_add_u32 {sKM}, {sKM}, {KMF}
s_lshl_b32 {sT[0]}, {sI}, 18
s_lshl_b32 {sT[1]}, {sW}, 10
s_add_u32 {sVM}, {sT[0]}, {sT[1]}
s_add_u32 {sVM}, {sVM}, {VMF}
s_lshl_b32 {sO}, {sI}, 13
s_add_u32 {sO}, {sO}, {OF}
s_lshl_b32 {sT[0]}, {sW}, 10
s_add_u32 s45, {sT[0]}, {QF}
v_add_u32 v69, s45, v3
s_mov_b32 s47, 0
""")
def q_check(A):
    L=A.label("L_qk")
    A(f"s_cmp_ge_u32 s47, s46\ns_cbranch_scc1 {L}")
    poll_ge(A,f"v{qKV}","v6","s46",WS,0x220,sleep=4)
    A("v_readlane_b32 s47, v6, 0")
    for k in range(1,8): A(f"v_readlane_b32 s48, v6, {k}\ns_min_u32 s47, s47, s48")
    A(f"{L}:")
def q_kv(A,vm,k):
    if k==0: A(f"s_lshl_b32 {sT[0]}, {sW}, 11\ns_add_u32 m0, {sT[0]}, {QKX}\ns_nop 0")
    if k==2: A(f"s_add_u32 m0, {sT[0]}, {QVX}\ns_add_u32 {sKX}, {sKX}, 8192")
    vm.issue(f"buffer_load_dwordx4 v1, {WS}, {sKX if k<2 else sVX} offen offset:{1024*(k&1)} lds")
    if k==3: A(f"s_add_u32 {sVX}, {sVX}, 8192")
def q_attention3(A,vm,lg,sS,O,opt,tkm):
    for a in range(2): lg.issue(f"ds_write_b128 v69, {vr(O+4*a,4)} offset:{512*a}")
    L=A.label("L_km")
    vm.wait(tkm)
    A(f"v_cmp_gt_u32 vcc, s46, v71\ns_cbranch_vccz {L}")
    poll_ge(A,f"v{qKMF}","v6","s46",WS,0x221,sleep=opt.get('qs',2))
    A(f"{L}:")
    rstamp_at(A,opt,2,sS,40)
    A(f"""s_lshl_b32 {sT[0]}, {sW}, 9
s_add_u32 m0, {sT[0]}, {QKM}
s_mov_b32 exec_hi, 0
buffer_load_dwordx4 v1, {WS}, {sKM} offen lds
s_mov_b32 exec_hi, -1
s_lshl_b32 {sT[0]}, {sW}, 10
s_add_u32 m0, {sT[0]}, {QVM}
s_add_u32 {sKM}, {sKM}, 2048
buffer_load_dwordx4 v1, {WS}, {sVM} offen lds
s_add_u32 {sVM}, {sVM}, 4096
v_add_u32 v5, {QKX}, v1
s_waitcnt vmcnt(3) lgkmcnt(0)
s_barrier""")
    rstamp_at(A,opt,3,sS,40)
    lg=Cnt(A,"lgkmcnt",15)
    QB,KXr,KMr,VX,VM=88,104,136,152,168
    SX0,SX1,SM,LT,OA=16,20,24,28,176
    tk={}
    for j in range(4):
        lg.issue(f"ds_read_b128 {vr(QB+4*j,4)}, v{qQB} offset:{1024*j}")
        lg.issue(f"ds_read_b128 {vr(KXr+4*j,4)}, v5 offset:{1024*j}")
        tk[j]=lg.issue(f"ds_read_b128 {vr(KXr+16+4*j,4)}, v5 offset:{4096+1024*j}")
    mm=lambda d,a,b,c: A(f"v_mfma_f32_16x16x32_bf16 {vr(d,4)}, {vr(a,4)}, {vr(b,4)}, {c}")
    for j in range(4):
        lg.wait(tk[j])
        mm(SX0,KXr+4*j,QB+4*j,vr(MASK,4) if j==0 else vr(SX0,4))
        tvx=lg.issue(f"ds_read_b128 {vr(VX+4*j,4)}, v{qVB} offset:{1024*j}")
        mm(SX1,KXr+16+4*j,QB+4*j,vr(MASK+4,4) if j==0 else vr(SX1,4))
    m,t,mc=32,33,34
    A(f"""
v_max3_f32 v{m}, v{SX0}, v{SX0+1}, v{SX0+2}
v_max3_f32 v{t}, v{SX1}, v{SX1+1}, v{SX1+2}
v_max3_f32 v{m}, v{m}, v{SX0+3}, v{SX1+3}
s_waitcnt vmcnt(0)
s_barrier""")
    rstamp_at(A,opt,4,sS,40)
    for j in range(4):
        lg.issue(f"ds_read_b64_tr_b16 {vr(KMr+4*j,2)}, v{qZR0} offset:{512*j}")
        tk[j]=lg.issue(f"ds_read_b64_tr_b16 {vr(KMr+4*j+2,2)}, v{qZR1} offset:{512*j}")
    for T in range(4): tv=lg.issue(f"ds_read_b64 {vr(VM+2*T,2)}, v{qL8} offset:{512*T}")
    for j in range(4):
        lg.wait(tk[j])
        mm(SM,KMr+4*j,QB+4*j,"0" if j==0 else vr(SM,4))
    A(f"""
v_max3_f32 v{t}, v{t}, v{SM}, v{SM+1}
v_max3_f32 v{m}, v{m}, v{SM+2}, v{SM+3}
v_max_f32 v{mc}, v{m}, v{t}
v_max_f32 v{m}, v{m}, v{t}
v_permlane32_swap_b32 v{m}, v{mc}
v_max_f32 v{t}, v{m}, v{mc}
v_max_f32 v{m}, v{m}, v{mc}
v_permlane16_swap_b32 v{m}, v{t}
v_max_f32 v{m}, v{m}, v{t}
v_mul_f32 v{mc}, {hex(f2u(-SCALE_LOG2E))}, v{m}
""")
    for r in range(SX0,SX0+12,2): A(f"v_pk_fma_f32 {vr(r,2)}, {vr(r,2)}, s[60:61], {vr(mc,2)} op_sel_hi:[1,0,0]")
    for r in range(SX0,SX0+12): A(f"v_exp_f32 v{r}, v{r}")
    PX,PM=36,40
    for i in range(6): A(f"v_cvt_pk_bf16_f32 v{PX+i}, v{SX0+2*i}, v{SX0+2*i+1}")
    lg.wait(tv)
    mm(LT,qONES,PX,"0")
    for T in range(4): mm(OA+4*T,VX+4*T,PX,"0")
    mm16=lambda d,a,b: A(f"v_mfma_f32_16x16x16_bf16 {vr(d,4)}, {vr(a,2)}, {vr(b,2)}, {vr(d,4)}")
    mm16(LT,qHALF,PM)
    for T in range(4): mm16(OA+4*T,VM+2*T,PM)
    A(f"v_rcp_f32 v42, v{LT}")
    for r in range(OA,OA+16,2): A(f"v_pk_mul_f32 {vr(r,2)}, {vr(r,2)}, v[42:43] op_sel_hi:[1,0]")
    for i in range(8): A(f"v_cvt_pk_bf16_f32 v{OA+i}, v{OA+2*i}, v{OA+2*i+1}")
    for pp in range(2): vm.issue(f"buffer_store_dwordx4 {vr(OA+4*pp,4)}, v{qOA}, {WS}, {sO} offen offset:{2048*pp} sc1")
    A(f"s_add_u32 {sO}, {sO}, {32*8192}")
    rstamp_at(A,opt,5,sS,40)

def q_prefetch(A,vm,sS,early=False):
    L=A.label("L_qk")
    if not early: A(f"s_add_u32 s46, {sS}, 1\ns_mov_b32 s49, 0")
    A(f"s_cmp_ge_u32 s47, s46\ns_cbranch_scc1 {L}")
    poll_ge(A,f"v{qKV}","v6","s46",WS,0x220,sleep=4)
    A("v_readlane_b32 s47, v6, 0")
    for k in range(1,8): A(f"v_readlane_b32 s48, v6, {k}\ns_min_u32 s47, s47, s48")
    A(f"{L}:")
    A(f"s_lshl_b32 {sT[0]}, {sW}, 11\ns_add_u32 {sT[0]}, {sT[0]}, s49\ns_add_u32 m0, {sT[0]}, {QKX}\ns_nop 0")
    for k in range(2): vm.issue(f"buffer_load_dwordx4 v1, {WS}, {sKX} offen offset:{1024*k} lds")
    A(f"s_add_u32 m0, {sT[0]}, {QVX}\ns_add_u32 {sKX}, {sKX}, 8192")
    for k in range(2): vm.issue(f"buffer_load_dwordx4 v1, {WS}, {sVX} offen offset:{1024*k} lds")
    A(f"s_add_u32 {sVX}, {sVX}, 8192")
    if early: A("s_xor_b32 s49, s49, 24576")
def q_attention(A,vm,lg,sS,vST,O,sFlag,opt,nxt=None):
    A(f"s_add_u32 s46, {sS}, 1")
    for a in range(2): lg.issue(f"ds_write_b128 v69, {vr(O+4*a,4)} offset:{512*a}")
    if opt.get('q1',0):
        wg_wait(A,f"v{qKMF}","v6","s46",WS,0x221,sleep=opt.get('qs',2))
    else: poll_ge(A,f"v{qKMF}","v6","s46",WS,0x221,sleep=opt.get('qs',2))
    rstamp_at(A,opt,2,sS,40)
    A(f"""s_lshl_b32 {sT[0]}, {sW}, 9
s_add_u32 m0, {sT[0]}, {QKM}
s_mov_b32 exec_hi, 0
buffer_load_dwordx4 v1, {WS}, {sKM} offen lds
s_mov_b32 exec_hi, -1
s_lshl_b32 {sT[0]}, {sW}, 10
s_add_u32 m0, {sT[0]}, {QVM}
s_add_u32 {sKM}, {sKM}, 2048
buffer_load_dwordx4 v1, {WS}, {sVM} offen lds
s_add_u32 {sVM}, {sVM}, 4096
s_waitcnt vmcnt(0) lgkmcnt(0)
s_barrier""")
    rstamp_at(A,opt,3,sS,40)
    if nxt:
        A(f"s_xor_b32 s48, s49, 24576\nv_add_u32 v70, s48, v{qVB}\ns_add_u32 s48, s48, {QKX}\nv_add_u32 v5, s48, v1")
        nxt()
    else: A(f"v_add_u32 v5, {QKX}, v1\nv_mov_b32 v70, v{qVB}")
    rstamp_at(A,opt,4,sS,40)
    lg=Cnt(A,"lgkmcnt",15)
    QB,KXr,KMr,VX,VM=88,104,136,152,168
    SX0,SX1,SM,LT,OA=16,20,24,28,176
    tk={}
    for j in range(4):
        lg.issue(f"ds_read_b128 {vr(QB+4*j,4)}, v{qQB} offset:{1024*j}")
        lg.issue(f"ds_read_b128 {vr(KXr+4*j,4)}, v5 offset:{1024*j}")
        lg.issue(f"ds_read_b128 {vr(KXr+16+4*j,4)}, v5 offset:{4096+1024*j}")
        lg.issue(f"ds_read_b64_tr_b16 {vr(KMr+4*j,2)}, v{qZR0} offset:{512*j}")
        tk[j]=lg.issue(f"ds_read_b64_tr_b16 {vr(KMr+4*j+2,2)}, v{qZR1} offset:{512*j}")
        if j==1: lg.wait(tk[0])
    mm=lambda d,a,b,c: A(f"v_mfma_f32_16x16x32_bf16 {vr(d,4)}, {vr(a,4)}, {vr(b,4)}, {c}")
    for j in range(4):
        lg.wait(tk[j])
        mm(SX0,KXr+4*j,QB+4*j,vr(MASK,4) if j==0 else vr(SX0,4))
        mm(SX1,KXr+16+4*j,QB+4*j,vr(MASK+4,4) if j==0 else vr(SX1,4))
        mm(SM,KMr+4*j,QB+4*j,"0" if j==0 else vr(SM,4))
    for T in range(4): lg.issue(f"ds_read_b128 {vr(VX+4*T,4)}, v70 offset:{1024*T}")
    for T in range(4): tv=lg.issue(f"ds_read_b64 {vr(VM+2*T,2)}, v{qL8} offset:{512*T}")
    m,t,mc=32,33,34
    A(f"""
v_max3_f32 v{m}, v{SX0}, v{SX0+1}, v{SX0+2}
v_max3_f32 v{t}, v{SX1}, v{SX1+1}, v{SX1+2}
v_max3_f32 v{m}, v{m}, v{SX0+3}, v{SX1+3}
v_max3_f32 v{t}, v{t}, v{SM}, v{SM+1}
v_max3_f32 v{m}, v{m}, v{SM+2}, v{SM+3}
v_max_f32 v{mc}, v{m}, v{t}
v_max_f32 v{m}, v{m}, v{t}
v_permlane32_swap_b32 v{m}, v{mc}
v_max_f32 v{t}, v{m}, v{mc}
v_max_f32 v{m}, v{m}, v{mc}
v_permlane16_swap_b32 v{m}, v{t}
v_max_f32 v{m}, v{m}, v{t}
v_mul_f32 v{mc}, {hex(f2u(-SCALE_LOG2E))}, v{m}
""")
    for r in range(SX0,SX0+12,2): A(f"v_pk_fma_f32 {vr(r,2)}, {vr(r,2)}, s[60:61], {vr(mc,2)} op_sel_hi:[1,0,0]")
    for r in range(SX0,SX0+12): A(f"v_exp_f32 v{r}, v{r}")
    PX,PM=36,40
    for i in range(6): A(f"v_cvt_pk_bf16_f32 v{PX+i}, v{SX0+2*i}, v{SX0+2*i+1}")
    lg.wait(tv)
    mm(LT,qONES,PX,"0")
    for T in range(4): mm(OA+4*T,VX+4*T,PX,"0")
    mm16=lambda d,a,b: A(f"v_mfma_f32_16x16x16_bf16 {vr(d,4)}, {vr(a,2)}, {vr(b,2)}, {vr(d,4)}")
    mm16(LT,qHALF,PM)
    for T in range(4): mm16(OA+4*T,VM+2*T,PM)
    A(f"v_rcp_f32 v42, v{LT}")
    for r in range(OA,OA+16,2): A(f"v_pk_mul_f32 {vr(r,2)}, {vr(r,2)}, v[42:43] op_sel_hi:[1,0]")
    for i in range(8): A(f"v_cvt_pk_bf16_f32 v{OA+i}, v{OA+2*i}, v{OA+2*i+1}")
    for pp in range(2): vm.issue(f"buffer_store_dwordx4 {vr(OA+4*pp,4)}, v{qOA}, {WS}, {sO} offen offset:{2048*pp} sc1")
    A(f"s_add_u32 {sO}, {sO}, {32*8192}")
    rstamp_at(A,opt,5,sS,40)

def role_final(A,opt):
    sCG,sSet="s17","s18"
    NSET=2 if opt.get('qb',1) else 3
    vL16,vTR,vFO,vFH,vRW,vRR,vXO,vRB=1,2,3,4,5,6,7,8
    ACC=16; FB=32; NF=4; HB=128; RED=131072; NSL=32
    sL,sS,sO,sH,sX=[f"s{i}" for i in range(32,37)]
    vm=Cnt(A,"vmcnt",63); lg=Cnt(A,"lgkmcnt",15)
    A(f"""
v_and_b32 v10, 63, v0
v_lshlrev_b32 v{vL16}, 4, v10
s_mul_i32 {sL}, {sW}, 40960
""")
    ustep=tr_base(A,f"v{vTR}","v10",1,sL)
    if opt.get('gateO',0):
        A(f"v_mov_b32 v5, {D_C1}")
        wg_wait(A,"v5","v6",NAUX,DB,0x232,sleep=16)
        A(f"s_lshl_b32 {sT[0]}, {sCG}, 8\ns_add_u32 {sT[0]}, {sT[0]}, {F_KM}\nv_mov_b32 v5, {sT[0]}")
        wg_wait(A,"v5","v6",1,WS,0x233,sleep=32)
    srd(A,S_T,P_WO,5242880); srd(A,20,P_WD,1728*1280)
    A(f"""
v_lshrrev_b32 v11, 2, v10
v_and_b32 v12, 3, v10
v_mul_u32_u24 v14, 1280, v11
v_lshl_add_u32 v14, v12, 4, v14
v_lshrrev_b32 v13, 3, v11
v_lshlrev_b32 v13, 4, v13
v_and_b32 v11, 7, v11
v_add_u32 v13, v13, v11
v_mul_u32_u24 v13, 1280, v13
v_lshl_add_u32 v13, v12, 4, v13
s_lshl_b32 {sT[0]}, {sCG}, 6
s_mul_i32 {sT[1]}, {sW}, {1024*1280}
s_add_u32 {sT[1]}, {sT[1]}, {sT[0]}
s_mul_i32 {sT[2]}, {sW}, {27*16*1280}
s_add_u32 {sT[2]}, {sT[2]}, {sT[0]}
""")
    NST=40
    def wdst(n,u): return ar(4*n+2*u,2) if n<64 else vr(HB+4*(n-64)+2*u,2)
    toks={}
    def wdma(n):
        A(f"s_add_u32 m0, {sL}, {(n%NST)*1024}")
        if n<64:
            hh,i=divmod(n,8)
            A(f"s_add_u32 {sT[3]}, {sT[1]}, {(hh*128+32*(i>>1)+8*(i&1))*1280}")
            toks[n]=vm.issue(f"buffer_load_dwordx4 v13, {TS}, {sT[3]} offen lds")
        else:
            A(f"s_add_u32 {sT[3]}, {sT[2]}, {(n-64)*16*1280}")
            toks[n]=vm.issue(f"buffer_load_dwordx4 v14, s[20:23], {sT[3]} offen lds")
    for n in range(NST): wdma(n)
    pend=None
    for n in range(91):
        vm.wait(toks[n])
        for u in range(2): tk=lg.issue(f"ds_read_b64_tr_b16 {wdst(n,u)}, v{vTR} offset:{(n%NST)*1024+u*ustep}")
        if pend is not None and pend[0]+NST<91:
            lg.wait(pend[1]); wdma(pend[0]+NST)
        pend=(n,tk)
    rstamp(A,opt,1)
    srd(A,S_T,P_X,2048*1280); srd(A,20,P_OUT,2048*1280)
    A(f"""
s_waitcnt lgkmcnt(0)
s_barrier
v_and_b32 v11, 31, v10
v_lshrrev_b32 v12, 2, v11
v_and_b32 v11, 3, v11
v_lshlrev_b32 v11, 2, v11
v_lshl_add_u32 v11, v12, 7, v11
s_lshl_b32 {sT[0]}, {sW}, 10
s_add_u32 {sT[0]}, {sT[0]}, {F_OP}
v_add_u32 v{vFO}, {sT[0]}, v11
v_min_u32 v11, 26, v10
s_mul_i32 {sT[0]}, {sW}, 27
v_add_u32 v11, {sT[0]}, v11
v_lshrrev_b32 v12, 2, v11
v_and_b32 v11, 3, v11
v_lshlrev_b32 v11, 2, v11
v_lshl_add_u32 v11, v12, 7, v11
v_add_u32 v{vFH}, {F_HP}, v11
v_and_b32 v11, 31, v10
v_mul_u32_u24 v11, 144, v11
v_lshrrev_b32 v12, 5, v10
v_lshl_add_u32 v11, v12, 4, v11
s_mul_i32 {sT[0]}, {sW}, 4608
s_add_u32 {sT[0]}, {sT[0]}, {RED}
v_add_u32 v{vRW}, {sT[0]}, v11
v_lshrrev_b32 v11, 3, v0
v_and_b32 v12, 7, v0
v_mul_u32_u24 v13, 144, v11
v_lshl_add_u32 v13, v12, 4, v13
v_add_u32 v{vRR}, {RED}, v13
v_mul_u32_u24 v13, 1280, v11
v_lshl_add_u32 v13, v12, 3, v13
s_lshl_b32 {sT[0]}, {sCG}, 6
v_add_u32 v{vXO}, {sT[0]}, v13
s_lshl_b32 {sL}, {sW}, 15
v_add_u32 v{vRB}, {sL}, v{vL16}
s_mov_b32 {sS}, {sSet}
s_mul_i32 {sH}, {sS}, 110592
s_mul_i32 {sT[0]}, {sW}, {27*1024}
s_add_u32 {sH}, {sH}, {sT[0]}
s_add_u32 {sH}, {sH}, {HF}
s_add_u32 s46, {sS}, 1
""")
    if opt.get('freg',0):
        final_regs(A,opt,NSET,sS,sO,sH,sX,vL16,vFO,vFH,vRW,vRR,vXO,ACC,HB); return
    vm=Cnt(A,"vmcnt",63); lg=Cnt(A,"lgkmcnt",15)
    seq=[("H",k) for k in range(27)]+[("O",k) for k in range(64)]
    dt={}
    SL=lambda n: (n+5)%NSL if n<27 else (n-27)%NSL
    def fdma(n):
        kind,k=seq[n]
        A(f"s_add_u32 m0, {sL}, {SL(n)*1024}\ns_add_u32 {sT[0]}, {sH if kind=='H' else sO}, {k*1024}")
        dt[n]=vm.issue(f"buffer_load_dwordx4 v{vL16}, {WS}, {sT[0]} offen lds")
    ft={}
    def fr(n,wait=True):
        if wait: vm.wait(dt[n])
        ft[n]=lg.issue(f"ds_read_b128 {vr(FB+4*(n%NF),4)}, v{vRB} offset:{SL(n)*1024}")
    def mf(n):
        kind,k=seq[n]
        lg.wait(ft[n])
        w=vr(HB+4*k,4) if kind=="H" else ar(4*k,4)
        A(f"v_mfma_f32_32x32x16_bf16 {vr(ACC,16)}, {w}, {vr(FB+4*(n%NF),4)}, {'0' if n==0 else vr(ACC,16)}")
    def h_ready(need,code):
        L=A.label("L_fh")
        A(f"s_cmp_ge_u32 s47, {need}\ns_cbranch_scc1 {L}")
        poll_ge(A,f"v{vFH}","v9",need,WS,code,sleep=8)
        A("v_readlane_b32 s47, v9, 0")
        for k in range(1,27): A(f"v_readlane_b32 s48, v9, {k}\ns_min_u32 s47, s47, s48")
        A(f"{L}:")
    def next_loads():
        A(f"""s_mul_i32 {sXn}, {sS}, {32*1280}
buffer_load_dword v9, v{vFO}, {WS}, 0 offen sc1
buffer_load_dwordx2 v[14:15], v{vXO}, {TS}, {sXn} offen""")
    sXn="s37"
    A(f"v_mov_b32 v9, {D_C1}")
    wg_wait(A,"v9","v11",NAUX,DB,0x235,sleep=12)
    A("s_mov_b32 s47, 0")
    h_ready("s46",0x230)
    next_loads()
    for n in range(27): fdma(n)
    A(f"""s_waitcnt vmcnt(0)
L_fin_loop:
s_mov_b32 {sX}, {sXn}
s_lshl_b32 {sO}, {sS}, 18
s_lshl_b32 {sT[0]}, {sW}, 16
s_add_u32 {sO}, {sO}, {sT[0]}
s_add_u32 {sO}, {sO}, {OF}
s_add_u32 {sH}, {sH}, {NSET*110592}
s_add_u32 s49, {sS}, {NSET+1}
s_min_u32 s49, s49, 64
s_and_b32 s45, {sS}, -2
s_waitcnt vmcnt(28)
v_mov_b32 v12, v14
v_mov_b32 v13, v15
v_cmp_gt_u32 vcc, s46, v9
""")
    rstamp_at(A,opt,0,"s45",40)
    lg=Cnt(A,"lgkmcnt",15)
    KS=[0]; _np=min(opt.get('np3',14),27); KST=_np+2*((27-_np)//3)
    def hwait(k,extra): A(f"s_waitcnt vmcnt({min(63,26-k+(1 if k<KST else 0)+extra)})")
    A("s_cbranch_vccnz L_fin_late")
    vm=Cnt(A,"vmcnt",63)
    nx=27
    for n in range(27+NF-1):
        if n<27: hwait(n,vm.n); fr(n,False)
        if n>=NF-1: mf(n-(NF-1))
        done=n-(NF-1)
        for _ in range(2):
            if nx<27+NSL and nx-27<=5+done: fdma(nx); nx+=1
    while nx<27+NSL: fdma(nx); nx+=1
    A("L_fin_go:")
    rstamp_at(A,opt,1,"s45",40)
    assert vm.n==NSL
    NCUT=64+NF-1
    for n in range(27,NCUT):
        if n==59: rstamp_at(A,opt,5,"s45",40)
        if n<91: fr(n)
        if n>=27+NF-1:
            m_=n-(NF-1)
            mf(m_)
            if m_+NSL<91: fdma(m_+NSL)
    NP3=opt.get('np3',14)
    tail_state=(lg.n,dict(ft)); vm_tail=vm.n; dt_tail=dict(dt)
    def tail(more):
        lg.n,f2=tail_state; ft.clear(); ft.update(f2)
        vt=Cnt(A,"vmcnt",63); vt.n=vm_tail
        if more:
            h_ready("s49",0x234)
            A(f"s_add_u32 {sS}, {sS}, {NSET}\ns_add_u32 s46, {sS}, 1")
            next_loads()
        k=0
        for n in range(NCUT,91+NF-1):
            if n<91:
                A(f"s_waitcnt vmcnt({min(63,vm_tail-dt_tail[n]+((2+k) if more else 0))})"); fr(n,False)
            m_=n-(NF-1)
            mf(m_)
            if more and k<NP3 and (m_-64)%2==(0 if NP3<=14 else (m_-64)%2): fdma(k); k+=1
        rstamp_at(A,opt,6,"s45",40)
        epilogue(more,k)
    def late():
        A("L_fin_late:")
        ft.clear()
        for n in range(27+NF-1):
            if n<27: hwait(n,0); fr(n,False)
            if n>=NF-1: mf(n-(NF-1))
        poll_ge(A,f"v{vFO}","v9","s46",WS,0x231,sleep=2)
        if opt.get('prof'):
            L=A.label("L_sk"); A(f"s_cmp_lt_u32 {sS}, {64-NSET}\ns_cbranch_scc1 {L}"); rstamp(A,opt,11); A(f"{L}:")
        for n in range(27,27+NSL): fdma(n)
        A("s_branch L_fin_go")
    def epilogue(more,k0):
        rest=list(range(k0,27)) if more else []
        a3=len(rest)//3
        A("s_barrier")
        for a in range(4): A(f"ds_write_b128 v{vRW}, {vr(ACC+4*a,4)} offset:{32*a}")
        for n in rest[:a3]: fdma(n)
        A("s_waitcnt lgkmcnt(0)\ns_barrier")
        for w in range(4): A(f"ds_read_b128 {vr(FB+4*w,4)}, v{vRR} offset:{4608*w}")
        for n in rest[a3:2*a3]: fdma(n)
        KS[0]=k0+2*a3
        A(f"""
v_lshlrev_b32 v48, 16, v12
v_and_b32 v49, 0xffff0000, v12
v_lshlrev_b32 v50, 16, v13
v_and_b32 v51, 0xffff0000, v13
s_waitcnt lgkmcnt(2)
v_pk_add_f32 v[32:33], v[32:33], v[36:37]
v_pk_add_f32 v[34:35], v[34:35], v[38:39]
s_waitcnt lgkmcnt(0)
v_pk_add_f32 v[40:41], v[40:41], v[44:45]
v_pk_add_f32 v[42:43], v[42:43], v[46:47]
v_pk_add_f32 v[32:33], v[32:33], v[40:41]
v_pk_add_f32 v[34:35], v[34:35], v[42:43]
v_pk_add_f32 v[32:33], v[32:33], v[48:49]
v_pk_add_f32 v[34:35], v[34:35], v[50:51]
v_cvt_pk_bf16_f32 v32, v32, v33
v_cvt_pk_bf16_f32 v33, v34, v35
buffer_store_dwordx2 v[32:33], v{vXO}, s[20:23], {sX} offen""")
        for n in rest[2*a3:]: fdma(n)
    A(f"s_cmp_ge_u32 {sS}, {64-NSET}\ns_cbranch_scc1 L_fin_last")
    if opt.get('prof'):
        for kk,lo,hi in ((3,0,3),(4,3,6),(5,15,18),(6,30,33),(7,45,48)):
            L=A.label("L_sk"); A(f"s_sub_u32 s48, {sS}, {lo}\ns_cmp_ge_u32 s48, {NSET}\ns_cbranch_scc1 {L}"); rstamp(A,opt,kk); A(f"{L}:")
    tail(True)
    assert KS[0]==KST
    rstamp_at(A,opt,8,"s45",40)
    A("s_branch L_fin_loop\nL_fin_last:")
    tail(False)
    rstamp(A,opt,8)
    rflush(A,opt,9)
    A(f"""s_waitcnt vmcnt(0)
s_endpgm""")
    late()

def final_regs(A,opt,NSET,sS,sO,sH,sX,vL16,vFO,vFH,vRW,vRR,vXO,ACC,HB):
    NB=24; FB=32; E=236; sXn="s37"
    RS[:]=[10,11]
    seq=[("H",k) for k in range(27)]+[("O",k) for k in range(64)]
    def load(n):
        kind,k=seq[n]
        if k%4==0 or n in (load.force if hasattr(load,'force') else ()): A(f"s_add_u32 {sT[0 if kind=='O' else 1]}, {sH if kind=='H' else sO}, {(k&~3)*1024}")
        A(f"buffer_load_dwordx4 {vr(FB+4*(n%NB),4)}, v{vL16}, {WS}, {sT[0 if kind=='O' else 1]} offen offset:{(k&3)*1024}")
    def mf(n):
        kind,k=seq[n]
        w=vr(HB+4*k,4) if kind=="H" else ar(4*k,4)
        A(f"v_mfma_f32_32x32x16_bf16 {vr(ACC,16)}, {w}, {vr(FB+4*(n%NB),4)}, {'0' if n==0 else vr(ACC,16)}")
    def h_ready(need,code):
        L=A.label("L_fh")
        A(f"s_cmp_ge_u32 s47, {need}\ns_cbranch_scc1 {L}")
        poll_ge(A,f"v{vFH}","v9",need,WS,code,sleep=8)
        A("v_readlane_b32 s47, v9, 0")
        for k in range(1,27): A(f"v_readlane_b32 s48, v9, {k}\ns_min_u32 s47, s47, s48")
        A(f"{L}:")
    def next_loads():
        A(f"""s_mul_i32 {sXn}, {sS}, {32*1280}
buffer_load_dword v9, v{vFO}, {WS}, 0 offen sc1
buffer_load_dwordx2 v[14:15], v{vXO}, {TS}, {sXn} offen""")
    A(f"v_mov_b32 v9, {D_C1}")
    wg_wait(A,"v9","v11",NAUX,DB,0x235,sleep=12)
    A("s_mov_b32 s47, 0")
    h_ready("s46",0x230)
    next_loads()
    for n in range(NB): load(n)
    A(f"""s_waitcnt vmcnt(0)
L_fin_loop:
s_mov_b32 {sX}, {sXn}
s_lshl_b32 {sO}, {sS}, 18
s_lshl_b32 {sT[0]}, {sW}, 16
s_add_u32 {sO}, {sO}, {sT[0]}
s_add_u32 {sO}, {sO}, {OF}
s_add_u32 s49, {sS}, {NSET+1}
s_min_u32 s49, s49, 64
s_and_b32 s45, {sS}, -2
s_waitcnt vmcnt(25)
v_mov_b32 v12, v14
v_mov_b32 v13, v15
v_cmp_gt_u32 vcc, s46, v9
""")
    rstamp_at(A,opt,0,"s45",40)
    A("s_cbranch_vccnz L_fin_late")
    q=[("H",k) for k in range(19)]+["st"]+[("H",k) for k in range(19,24)]
    def wait_for(queue,item): A(f"s_waitcnt vmcnt({len(queue)-1-queue.index(item)})")
    qq=list(q)
    for n in range(27):
        wait_for(qq,seq[n]); mf(n)
        load(n+NB); qq.append(seq[n+NB])
    A("L_fin_go:")
    rstamp_at(A,opt,1,"s45",40)
    qq=[seq[n] for n in range(27,27+NB)]
    for n in range(27,72):
        if n==59: rstamp_at(A,opt,5,"s45",40)
        wait_for(qq,seq[n]); mf(n)
        if n+NB<91: load(n+NB); qq.append(seq[n+NB])
    tailq=list(qq)
    def tail(more):
        qq=list(tailq)
        if more:
            h_ready("s49",0x234)
            A(f"s_add_u32 {sS}, {sS}, {NSET}\ns_add_u32 s46, {sS}, 1\ns_add_u32 {sH}, {sH}, {NSET*110592}")
            next_loads(); qq+=["f","x"]
        for n in range(72,91):
            wait_for(qq,seq[n]); mf(n)
            if more: load(n-72); qq.append(("h2",n))
        rstamp_at(A,opt,6,"s45",40)
        A("s_barrier")
        for a in range(4): A(f"ds_write_b128 v{vRW}, {vr(ACC+4*a,4)} offset:{32*a}")
        A("s_waitcnt lgkmcnt(0)\ns_barrier")
        for w in range(4): A(f"ds_read_b128 {vr(E+4*w,4)}, v{vRR} offset:{4608*w}")
        A(f"""
v_lshlrev_b32 v252, 16, v12
v_and_b32 v253, 0xffff0000, v12
v_lshlrev_b32 v254, 16, v13
v_and_b32 v255, 0xffff0000, v13
s_waitcnt lgkmcnt(2)
v_pk_add_f32 v[{E}:{E+1}], v[{E}:{E+1}], v[{E+4}:{E+5}]
v_pk_add_f32 v[{E+2}:{E+3}], v[{E+2}:{E+3}], v[{E+6}:{E+7}]
s_waitcnt lgkmcnt(0)
v_pk_add_f32 v[{E+8}:{E+9}], v[{E+8}:{E+9}], v[{E+12}:{E+13}]
v_pk_add_f32 v[{E+10}:{E+11}], v[{E+10}:{E+11}], v[{E+14}:{E+15}]
v_pk_add_f32 v[{E}:{E+1}], v[{E}:{E+1}], v[{E+8}:{E+9}]
v_pk_add_f32 v[{E+2}:{E+3}], v[{E+2}:{E+3}], v[{E+10}:{E+11}]
v_pk_add_f32 v[{E}:{E+1}], v[{E}:{E+1}], v[252:253]
v_pk_add_f32 v[{E+2}:{E+3}], v[{E+2}:{E+3}], v[254:255]
v_cvt_pk_bf16_f32 v{E}, v{E}, v{E+1}
v_cvt_pk_bf16_f32 v{E+1}, v{E+2}, v{E+3}
buffer_store_dwordx2 v[{E}:{E+1}], v{vXO}, s[20:23], {sX} offen""")
        if more:
            load.force=(19,)
            for n in range(19,24): load(n)
            load.force=()
    A(f"s_cmp_ge_u32 {sS}, {64-NSET}\ns_cbranch_scc1 L_fin_last")
    if opt.get('prof'):
        for kk,lo,hi in ((3,0,3),(4,3,6),(5,15,18),(6,30,33),(7,45,48)):
            L=A.label("L_sk"); A(f"s_sub_u32 s48, {sS}, {lo}\ns_cmp_ge_u32 s48, {NSET}\ns_cbranch_scc1 {L}"); rstamp(A,opt,kk); A(f"{L}:")
    tail(True)
    rstamp_at(A,opt,8,"s45",40)
    A("s_branch L_fin_loop\nL_fin_last:")
    tail(False)
    rstamp(A,opt,8)
    rflush(A,opt,9)
    A(f"""s_waitcnt vmcnt(0)
s_endpgm
L_fin_late:""")
    qq=list(q)
    for n in range(27):
        wait_for(qq,seq[n]); mf(n)
        if n+NB<27: load(n+NB); qq.append(seq[n+NB])
    poll_ge(A,f"v{vFO}","v9","s46",WS,0x231,sleep=2)
    if opt.get('prof'):
        L=A.label("L_sk"); A(f"s_cmp_lt_u32 {sS}, {64-NSET}\ns_cbranch_scc1 {L}"); rstamp(A,opt,11); A(f"{L}:")
    for n in range(27,27+NB): load(n)
    A("s_branch L_fin_go")
    RS[:]=[126,127]
```

```python
from common import *

MB, ZB, VB, KVB, KVX, WOB = 0, 10240, 14336, 40960, 0x1E000, 20480
vIDX,vL16,vL8,vMA16a,vMA8a,vMA16b,vMA8b,vZW,vZR0,vZR1,vVW,vP0,vP2,vFLG,vKV,vWO,vMW16,vMW8 = range(18)
SENT=108; S_MC=84; HALF=18; ACCQ=20; ACCK=24; ACCV=28; MF=[32,36,40]; ONES=44; KX=48; ZQ=80; ZK=96
sH,sC,sB="s17","s18","s19"
sS,sTask,sPGa,sPGb,sMa,sMb,sMc,sPubO,sMLO,sPstO,sRdO,sKX,sVX,sKM,sVM,sKMFL,sKVB = [f"s{i}" for i in range(32,49)]
sPGc="s49"; sBO="s56"; sMCl="s57"; sMC2="s58"; S_KM=8
sT=[f"s{i}" for i in range(50,60)]
sSC=60; sSpin="s62"
WORD=[(0,0),(1,0),(2,0),(0,1),(1,1),(3,0),(2,1),(3,1),(4,0),(4,1)]
OPS=[(m,t) for t in range(2,20) for m in "QK"]+[("V",t) for t in range(10)]+[("O",u) for u in range(6,10)]+[(m,t) for t in range(2) for m in "QK"]+[("O",u) for u in range(6)]
OPI={o:i for i,o in enumerate(OPS)}
def wreg(oi):
    return ar(8*oi,8) if oi<32 else vr(112+8*(oi-32),8)
def wreg_pair(oi,d):
    return ar(8*oi+d,2) if oi<32 else vr(112+8*(oi-32)+d,2)
def m_off(tt,u):
    w2,p=divmod(tt,5)
    if p<4: return 16, w2*2560+(p>>1)*1024+(p&1)*8+u*512
    return 8, w2*2560+2048+u*256

def lane_setup(A,SH=14,WOB=WOB):
    t=[108,109,110,111,100,101,102,103,104,105]
    l,n,g,x,sg,a,b,c,d,e=[f"v{i}" for i in t]
    A(f"""
v_and_b32 {l}, 63, v0
v_lshlrev_b32 v{vL16}, 4, {l}
v_lshlrev_b32 v{vL8}, 3, {l}
v_and_b32 {n}, 15, {l}
v_lshrrev_b32 {g}, 4, {l}
v_and_b32 {x}, 1, {g}
v_lshrrev_b32 {sg}, 1, {g}
v_mov_b32 {a}, 0x88888888
v_mov_b32 {b}, 0xdddddddd
v_cmp_gt_u32 vcc, 8, {n}
v_cndmask_b32 v{vIDX}, {b}, {a}, vcc
v_lshrrev_b32 {a}, 3, {n}
v_lshlrev_b32 {a}, 4, {a}
v_lshl_add_u32 {a}, {sg}, 5, {a}
v_lshl_add_u32 {a}, {x}, 3, {a}
v_and_b32 {b}, 7, {n}
v_add_u32 {a}, {a}, {b}
v_lshrrev_b32 {c}, 3, {a}
v_lshlrev_b32 {c}, {SH}, {c}
v_lshl_add_u32 v{vP0}, {b}, 4, {c}
v_lshrrev_b32 {c}, 4, {a}
v_lshlrev_b32 {c}, {SH}, {c}
v_and_b32 {d}, 15, {a}
v_lshl_add_u32 v{vP2}, {d}, 3, {c}
v_mov_b32 v106, {a}
v_lshrrev_b32 {a}, 2, {n}
v_lshl_add_u32 {b}, {sg}, 1, {x}
v_xor_b32 {b}, {b}, {a}
v_lshlrev_b32 {b}, 5, {b}
v_lshl_add_u32 {b}, {a}, 7, {b}
v_and_b32 {c}, 3, {n}
v_lshl_add_u32 {b}, {c}, 3, {b}
s_lshl_b32 {sT[0]}, {sW}, 10
s_add_u32 {sT[0]}, {sT[0]}, {ZB}
v_add_u32 v{vZW}, {sT[0]}, {b}
v_lshrrev_b32 {a}, 3, {n}
v_lshlrev_b32 {a}, 9, {a}
v_lshl_add_u32 {a}, {x}, 7, {a}
v_and_b32 {b}, 7, {n}
v_lshl_add_u32 {b}, {b}, 1, {sg}
v_lshl_add_u32 {a}, {b}, 3, {a}
s_lshr_b32 {sT[0]}, {sW}, 1
s_lshl_b32 {sT[0]}, {sT[0]}, 10
s_xor_b32 {sT[1]}, {sW}, {sC}
s_and_b32 {sT[1]}, {sT[1]}, 1
s_lshl_b32 {sT[2]}, {sT[1]}, 8
s_add_u32 {sT[0]}, {sT[0]}, {sT[2]}
s_add_u32 {sT[0]}, {sT[0]}, {VB}
v_add_u32 v{vVW}, {sT[0]}, {a}
v_lshrrev_b32 {a}, 2, {l}
v_and_b32 {a}, 3, {a}
v_and_b32 {b}, 1, {l}
; M: n' = 4g+r ; idx = (n'>>3)*16 + x*8 + (n'&7)
v_lshl_add_u32 {c}, {g}, 2, {a}
v_lshrrev_b32 {d}, 3, {c}
v_lshlrev_b32 {d}, 4, {d}
v_lshl_add_u32 {d}, {b}, 3, {d}
v_and_b32 {c}, 7, {c}
v_add_u32 {d}, {d}, {c}
s_mul_i32 {sT[2]}, {sT[1]}, 5120
s_sub_u32 {sT[3]}, {5120+MB}, {sT[2]}
s_add_u32 {sT[2]}, {sT[2]}, {MB}
v_lshl_add_u32 v{vMA16a}, {d}, 4, {sT[3]}
v_lshl_add_u32 v{vMA8a}, {d}, 3, {sT[3]}
v_lshl_add_u32 v{vMA16b}, {d}, 4, {sT[2]}
v_lshl_add_u32 v{vMA8b}, {d}, 3, {sT[2]}
v_and_b32 {c}, 1, {a}
v_lshl_add_u32 {c}, {c}, 1, {b}
v_lshrrev_b32 {d}, 1, {a}
v_lshl_add_u32 {d}, {x}, 1, {d}
v_lshlrev_b32 {d}, 3, {d}
v_add_u32 {d}, {ZB}, {d}
""")
    for u,dst in ((0,vZR0),(1,vZR1)):
        A(f"""
v_lshl_add_u32 {e}, {sg}, 1, {u}
v_xor_b32 {a}, {c}, {e}
v_lshlrev_b32 {a}, 5, {a}
v_lshl_add_u32 {a}, {e}, 7, {a}
v_add_u32 v{dst}, {a}, {d}
""")
    A(f"""
v_and_b32 {a}, 4, {l}
v_lshlrev_b32 {a}, 10, {a}
v_and_b32 {b}, 3, {l}
v_lshl_add_u32 {a}, {b}, 2, {a}
s_lshl_b32 {sT[0]}, {sH}, 7
s_add_u32 {sT[0]}, {sT[0]}, {F_KP}
v_add_u32 v{vFLG}, {sT[0]}, {a}
v_add_u32 v{vKV}, {KVB}, v{vL16}
s_mul_i32 {sT[0]}, {sW}, 40960
s_add_u32 {sT[0]}, {sT[0]}, {WOB}
v_add_u32 v{vWO}, {sT[0]}, v{vL16}
s_mul_i32 {sT[0]}, {sW}, 2560
s_add_u32 {sT[0]}, {sT[0]}, {MB}
v_add_u32 v{vMW16}, {sT[0]}, v{vL16}
s_add_u32 {sT[1]}, {sT[0]}, 2048
v_add_u32 v{vMW8}, {sT[1]}, v{vL8}
v_lshl_add_u32 v107, v106, 3, {sT[1]}
v_lshl_add_u32 v106, v106, 4, {sT[0]}
""")

OPT={}
def weights_prologue(A,WOFF=0):
    NSLOT=20
    vm=Cnt(A,"vmcnt",63); lg=Cnt(A,"lgkmcnt",15)
    l,a,b="v108","v109","v110"
    srd(A,S_T,P_MEM0,10240)
    A(f"""
v_and_b32 {a}, 15, {l}
v_lshlrev_b32 {a}, 2, {a}
v_lshrrev_b32 {b}, 4, {l}
v_and_b32 {b}, 1, {b}
v_mul_u32_u24 {b}, 5120, {b}
v_add_u32 {a}, {a}, {b}
s_mul_i32 {sT[0]}, {sW}, 320
""")
    for p in range(5):
        A(f"s_add_u32 {sT[1]}, {sT[0]}, {64*p}")
        for r in range(4):
            tk0=vm.issue(f"buffer_load_dword v{18+4*p+r}, {a}, s[{S_T}:{S_T+3}], {sT[1]} offen offset:{1280*r}")
    A(f"s_cmp_lt_u32 {sW}, 2\ns_cselect_b32 s24, s{P_WQ}, s{P_WK}\ns_cselect_b32 s25, s{P_WQ+1}, s{P_WK+1}")
    srd(A,20,24,5242880); srd(A,28,P_WV,5242880); srd(A,52,P_WO,5242880)
    sQK,sV,sO,sL,sX="s56","s57","s58","s59","s50"
    A(f"""
v_lshrrev_b32 {a}, 4, {l}
v_lshlrev_b32 {a}, 1, {a}
v_bfe_u32 {b}, {l}, 3, 1
v_lshl_add_u32 {a}, {b}, 3, {a}
v_bfe_u32 {b}, {l}, 2, 1
v_add_u32 {a}, {a}, {b}
v_lshlrev_b32 {a}, 13, {a}
v_and_b32 {b}, 3, {l}
v_lshl_add_u32 v104, {b}, 4, {a}
v_lshrrev_b32 {a}, 4, {l}
v_bfe_u32 v100, {l}, 3, 1
v_lshl_add_u32 {a}, v100, 2, {a}
v_bfe_u32 v100, {l}, 2, 1
v_lshl_add_u32 {a}, v100, 4, {a}
v_mul_u32_u24 {a}, 1280, {a}
v_lshl_add_u32 v105, {b}, 4, {a}
s_mul_i32 {sL}, {sW}, 40960
v_lshlrev_b32 {a}, 2, {l}
v_add_u32 v103, {sL}, {a}
v_lshrrev_b32 {a}, 5, {l}
v_lshlrev_b32 {a}, 1, {a}
v_bfe_u32 v100, {l}, 4, 1
v_lshl_add_u32 {a}, v100, 3, {a}
v_bfe_u32 v100, {l}, 3, 1
v_add_u32 {a}, {a}, v100
v_lshlrev_b32 {a}, 13, {a}
v_lshlrev_b32 v100, 2, v100
v_and_b32 {b}, 7, {l}
v_xor_b32 {b}, {b}, v100
v_lshl_add_u32 v102, {b}, 4, {a}
v_lshrrev_b32 {a}, 4, {l}
v_and_b32 {b}, 1, {a}
v_lshlrev_b32 {a}, 7, {a}
v_lshl_add_u32 {a}, {b}, 6, {a}
v_and_b32 {b}, 15, {l}
v_lshl_add_u32 {a}, {b}, 2, {a}
v_add_u32 v64, {sL}, {a}
v_xor_b32 v65, 64, v64
s_lshl_b32 {sQK}, {sH}, 8
s_and_b32 {sX}, {sW}, 1
s_lshl_b32 {sX}, {sX}, 7
s_add_u32 {sQK}, {sQK}, {sX}          ; h*256 + (w&1)*128
s_lshl_b32 {sV}, {sH}, 8
s_lshl_b32 {sX}, {sC}, 7
s_add_u32 {sV}, {sV}, {sX}
s_lshr_b32 {sX}, {sW}, 1
s_lshl_b32 {sX}, {sX}, 6
s_add_u32 {sV}, {sV}, {sX}            ; h*256 + c*128 + (w>>1)*64
s_xor_b32 {sX}, {sW}, {sC}
s_and_b32 {sX}, {sX}, 1
s_mul_i32 s51, {sX}, {320*8192}
s_add_u32 {sV}, {sV}, s51
s_add_u32 s49, {sQK}, s51
s_sub_u32 s51, {320*8192}, s51
s_add_u32 {sQK}, {sQK}, s51
s_lshl_b32 {sO}, {sH}, 7
s_lshl_b32 {sX}, {sC}, 6
s_add_u32 {sO}, {sO}, {sX}
s_mul_i32 {sO}, {sO}, 1280
s_mul_i32 {sX}, {sW}, 320
s_add_u32 {sO}, {sO}, {sX}            ; (h*128+64c)*1280 + 320w
""")
    ops=[]
    for m,t in OPS:
        if m in "QK": ops.append((20, sQK if t<10 else "s49",(t%10)*32*8192,None,"v102"))
        elif m=="V": ops.append((28,sV,t*32*8192,16*8192,"v104"))
        else:
            p,P=WORD[t]; ops.append((52,sO,32*P*1280+64*p,8*1280,"v105"))
    toks={}
    def dma(i):
        d,base,off,hstep,vv=ops[i]
        for hh in range(2):
            A(f"s_add_u32 m0, {sL}, {(i%NSLOT)*2048+hh*1024}")
            if hstep is None:
                k=2*(i&1)+hh
                A(f"s_add_u32 {sX}, {base}, {off+(16*(k>>1)+4*(k&1))*8192}")
            else: A(f"s_add_u32 {sX}, {base}, {off+hh*hstep}")
            toks[i]=vm.issue(f"buffer_load_dwordx4 {vv}, s[{d}:{d+3}], {sX} offen lds")
    pstamp(A,OPT,"s63")
    for i in range(NSLOT): dma(i)
    vm.wait(tk0)
    A(f"""
v_mov_b32 v100, 0x05040100
v_mov_b32 v101, 0x07060302
v_cmp_gt_u32 vcc, 32, {l}
v_cndmask_b32 v111, v101, v100, vcc
""")
    for p in range(5):
        A(f"v_perm_b32 v{38+2*p}, v{19+4*p}, v{18+4*p}, v111")
        A(f"v_perm_b32 v{39+2*p}, v{21+4*p}, v{20+4*p}, v111")
    TMP=[48,56]
    units=[]; i=0
    while i<60:
        n=2 if OPS[i][0] in "QK" else 1
        units.append(list(range(i,i+n))); i+=n
    pend=None
    def finish(u,tj):
        lg.wait(tj)
        for j in u:
            if j+NSLOT<60: dma(j+NSLOT)
        for j in u:
            if j>=50:
                for hf in range(2): lg.issue(f"ds_write_b128 v{vWO}, {vr(TMP[j&1]+4*hf,4)} offset:{WOFF+(j-50)*2048+hf*1024}")
    for u in units:
        if u[0]>=50 and pend is not None: finish(*pend); pend=None
        vm.wait(toks[u[-1]])
        for j in u:
            for d in range(0,8,2):
                dst = wreg_pair(j,d) if j<50 else vr(TMP[j&1]+d,2)
                if len(u)==2:
                    o=(u[0]%NSLOT)*8+2*d
                    tk=lg.issue(f"ds_read2st64_b32 {dst}, v{64+(j&1)} offset0:{o} offset1:{o+2}")
                else:
                    tk=lg.issue(f"ds_read2st64_b32 {dst}, v103 offset0:{(j%NSLOT)*8+d} offset1:{(j%NSLOT)*8+d+1}")
        if pend is not None: finish(*pend)
        pend=(u,tk)
    finish(*pend)
    lg.waitall()
    A("s_barrier")
    for p in range(4): A(f"ds_write_b64 v106, {vr(38+2*p,2)} offset:{(p>>1)*1024+(p&1)*8}")
    A(f"ds_write_b64 v107, {vr(46,2)}")

def kv_dma(A,vm,nw):
    WS=f"s[{S_WS}:{S_WS+3}]"
    if nw==4:
        A(f"s_lshl_b32 {sT[0]}, {sW}, 11\ns_add_u32 m0, {sKVB}, {sT[0]}\ns_add_u32 {sT[1]}, {sKX}, {sT[0]}")
        vm.issue(f"buffer_load_dwordx4 v{vL16}, {WS}, {sT[1]} offen lds")
        vm.issue(f"buffer_load_dwordx4 v{vL16}, {WS}, {sT[1]} offen offset:1024 lds")
        A(f"s_lshr_b32 {sT[0]}, {sT[0]}, 1\ns_add_u32 {sT[1]}, {sVX}, {sT[0]}\ns_add_u32 {sT[0]}, {sT[0]}, 8192\ns_add_u32 m0, {sKVB}, {sT[0]}")
        t=vm.issue(f"buffer_load_dwordx4 v{vL16}, {WS}, {sT[1]} offen lds")
    else:
        A(f"s_and_b32 {sT[0]}, {sW}, 1\ns_lshl_b32 {sT[0]}, {sT[0]}, 12\ns_add_u32 m0, {sKVB}, {sT[0]}\ns_add_u32 {sT[1]}, {sKX}, {sT[0]}")
        for k in range(4): vm.issue(f"buffer_load_dwordx4 v{vL16}, {WS}, {sT[1]} offen offset:{1024*k} lds")
        A(f"s_lshr_b32 {sT[0]}, {sT[0]}, 1\ns_add_u32 {sT[1]}, {sVX}, {sT[0]}\ns_add_u32 {sT[0]}, {sT[0]}, 8192\ns_add_u32 m0, {sKVB}, {sT[0]}")
        for k in range(2): t=vm.issue(f"buffer_load_dwordx4 v{vL16}, {WS}, {sT[1]} offen offset:{1024*k} lds")
    return t
def kv_advance(A,three=False):
    A(f"s_add_u32 {sKX}, {sKX}, 8192\ns_add_u32 {sVX}, {sVX}, 8192")
    if three: A(f"s_mov_b32 {sKVR}, {sKVB}\ns_add_u32 {sKVB}, {sKVB}, 40960\ns_cmp_eq_u32 {sKVB}, 163840\ns_cselect_b32 {sKVB}, {KVB}, {sKVB}")
    else: A(f"s_xor_b32 {sKVB}, {sKVB}, {KVX}")

def wait_kv(A,needreg,vflag,code):
    L=A.label("L_kvw")
    A(f"s_mov_b32 {sSpin}, 0\n{L}:")
    A(f"buffer_load_dword v{vflag}, v{vFLG}, s[{S_WS}:{S_WS+3}], 0 offen sc1\ns_waitcnt vmcnt(0)")
    ok=A.label("L_kvok")
    A(f"v_cmp_gt_u32 vcc, {needreg}, v{vflag}\ns_cbranch_vccz {ok}")
    spin_tail(A,sSpin,L,code,sleep=2)
    A(f"{ok}:")

def pstamp(A,opt,reg):
    if opt.get('prof')==3: A(f"s_memrealtime s[98:99]\ns_waitcnt lgkmcnt(0)\ns_mov_b32 {reg}, s98")
def role_chain(A, opt):
    WS=f"s[{S_WS}:{S_WS+3}]"
    OPT.update(opt)
    lane_setup(A)
    weights_prologue(A)
    pstamp(A,opt,"s3")
    A(f"""
v_mov_b32 v{HALF}, 0x3f003f00
v_mov_b32 v{HALF+1}, 0x3f003f00
v_mov_b32 v{ONES}, 0x3f803f80
v_mov_b32 v{ONES+1}, 0x3f803f80
v_mov_b32 v{ONES+2}, 0x3f803f80
v_mov_b32 v{ONES+3}, 0x3f803f80
s_mov_b32 s{sSC}, {hex(f2u(SCALE_LOG2E))}
s_mov_b32 s{sSC+1}, {hex(f2u(SCALE_LOG2E))}
v_and_b32 v48, 1, v108
v_mul_u32_u24 v49, {D_POL}, v48
v_mov_b32 v50, {NAUX}
v_mov_b32 v51, 0x80000000
v_cmp_eq_u32 vcc, 1, v48
v_cndmask_b32 v50, v50, v51, vcc
s_mov_b32 {sSpin}, 0
s_cmp_lg_u32 {sW}, 0
s_cbranch_scc1 L_cst_bar
L_cst:
buffer_load_dword v51, v49, s[{S_DB}:{S_DB+3}], 0 offen sc1
s_waitcnt vmcnt(0)
v_cmp_gt_u32 vcc, v50, v51
s_cbranch_vccz L_cst_ok
""")
    spin_tail(A,sSpin,"L_cst",0x101,sleep=8)
    A(f"""
L_cst_ok:
L_cst_bar:
s_barrier
buffer_load_dword v51, v49, s[{S_DB}:{S_DB+3}], 0 offen sc1
s_waitcnt vmcnt(0)""")
    A(f"""
v_readlane_b32 {sT[0]}, v51, 1
s_and_b32 {sT[1]}, {sT[0]}, 1
s_lshl_b32 {sPGa}, {sT[1]}, 13
s_lshr_b32 {sT[1]}, {sT[0]}, 1
s_and_b32 {sT[1]}, {sT[1]}, 1
s_lshl_b32 {sT[1]}, {sT[1]}, 13
s_add_u32 {sPGb}, {sT[1]}, {PAGE}
s_lshr_b32 {sT[1]}, {sT[0]}, 2
s_and_b32 {sT[1]}, {sT[1]}, 1
s_lshl_b32 {sT[1]}, {sT[1]}, 13
s_add_u32 {sPGc}, {sT[1]}, {2*PAGE}
s_add_u32 {sMa}, {sPGa}, {80*16384}
s_add_u32 {sMb}, {sPGa}, {82*16384}
s_add_u32 {sMc}, {sPGa}, {84*16384}
s_lshr_b32 {sT[0]}, {sB}, 4
s_mul_i32 {sT[0]}, {sT[0]}, 20
s_and_b32 {sT[1]}, {sB}, 15
s_add_u32 {sT[0]}, {sT[0]}, {sT[1]}
s_add_u32 {sT[0]}, {sT[0]}, 4
s_lshr_b32 {sT[1]}, {sB}, 2
s_mul_i32 {sT[1]}, {sT[1]}, 20
s_and_b32 {sT[2]}, {sB}, 3
s_add_u32 {sT[1]}, {sT[1]}, {sT[2]}
s_cmp_lt_u32 {sB}, 16
s_cselect_b32 {sT[1]}, {sT[1]}, -1
s_bitcmp1_b32 {sW}, 0
s_cselect_b32 {sTask}, {sT[1]}, {sT[0]}
s_max_i32 {sT[0]}, {sTask}, 0
s_lshl_b32 {sRdO}, {sT[0]}, 14
s_mul_i32 {sT[1]}, {sT[0]}, 3277
s_lshr_b32 {sT[1]}, {sT[1]}, 16          ; task / 20
s_mul_i32 {sT[2]}, {sT[1]}, 20
s_sub_u32 {sT[2]}, {sT[0]}, {sT[2]}
s_lshl_b32 {sPubO}, {sT[2]}, 7
s_lshr_b32 {sT[2]}, {sT[1]}, 1
s_lshl_b32 {sT[2]}, {sT[2]}, 14
s_add_u32 {sPubO}, {sPubO}, {sT[2]}
s_and_b32 {sT[2]}, {sT[1]}, 1
s_lshl_b32 {sT[2]}, {sT[2]}, 12
s_add_u32 {sPubO}, {sPubO}, {sT[2]}
s_lshr_b32 {sT[2]}, {sW}, 1
s_lshl_b32 {sMLO}, {sT[2]}, 14
s_and_b32 {sT[2]}, {sW}, 1
s_lshl_b32 {sT[2]}, {sT[2]}, 12
s_add_u32 {sMLO}, {sMLO}, {sT[2]}
s_mul_i32 {sPstO}, {sW}, {20*16384}
s_lshl_b32 {sT[2]}, {sB}, 7
s_add_u32 {sPstO}, {sPstO}, {sT[2]}
s_lshl_b32 {sT[0]}, {sH}, 19
s_add_u32 {sKX}, {sT[0]}, {KXF}
s_lshl_b32 {sT[1]}, {sC}, 12
s_add_u32 {sVX}, {sT[0]}, {sT[1]}
s_add_u32 {sVX}, {sVX}, {VXF}
s_lshl_b32 {sT[0]}, {sH}, 17
s_add_u32 {sKM}, {sT[0]}, {KMF-ZB-2048}
s_lshl_b32 {sT[0]}, {sH}, 18
s_lshl_b32 {sT[1]}, {sC}, 11
s_add_u32 {sVM}, {sT[0]}, {sT[1]}
s_add_u32 {sVM}, {sVM}, {VMF-VB}
s_lshl_b32 {sT[0]}, {sH}, 1
s_add_u32 {sT[0]}, {sT[0]}, {sC}
s_lshl_b32 {sT[0]}, {sT[0]}, 7
s_lshl_b32 {sT[1]}, {sW}, 2
s_add_u32 {sKMFL}, {sT[0]}, {sT[1]}
s_add_u32 {sKMFL}, {sKMFL}, {F_KM}
s_mov_b32 {sKVB}, {KVB}
s_mov_b32 {sS}, 0
s_and_b32 {sT[0]}, {sW}, 1
s_mul_i32 {sBO}, {sT[0]}, {40*16384}
s_lshl_b32 {sT[1]}, {sB}, 7
s_add_u32 {sBO}, {sBO}, {sT[1]}
s_mov_b32 s{S_KM}, s{S_WS}
s_mov_b32 s{S_KM+1}, s{S_WS+1}
s_cmp_eq_u32 {sC}, 0
s_cselect_b32 s{S_KM+2}, {hex(WS_SIZE)}, 0
s_cmp_ge_u32 {sW}, 2
s_cselect_b32 s{S_KM+2}, s{S_KM+2}, 0
s_mov_b32 s{S_KM+3}, 0x20000
""")
    vm=Cnt(A,"vmcnt",63)
    wait_kv(A,"1",98,0x102)
    pstamp(A,opt,"s59")
    kv_dma(A,vm,4); kv_advance(A)
    A(f"v_cmp_gt_u32 {sKVB2}, 2, v98")
    qk_preload(A,Cnt(A,"lgkmcnt",15))
    sent_setup(A,opt)
    A(f"s_add_u32 {sT[0]}, {sPGb}, {sPstO}\nbuffer_store_dword v{SENT}, v{SENT+1}, {WS}, {sT[0]} offen sc1")
    A(f"""s_mov_b32 s{S_MC}, s{S_WS}
s_mov_b32 s{S_MC+1}, s{S_WS+1}
s_cmp_lt_u32 {sW}, 2
s_cselect_b32 s{S_MC+2}, 0, {hex(WS_SIZE)}
s_cmp_lt_i32 {sTask}, 0
s_cselect_b32 s{S_MC+2}, 0, s{S_MC+2}
s_mov_b32 s{S_MC+3}, 0x20000""")
    for i in range(0,12,2): A(f"v_mov_b64 {vr(ACCQ+i,2)}, 0")
    A("s_waitcnt vmcnt(0) lgkmcnt(0)")
    if opt.get('prof'):
        A("s_memrealtime s[92:93]\ns_memtime s[28:29]\ns_waitcnt lgkmcnt(0)\ns_mov_b32 s30, s28\ns_mov_b32 s97, s28")
        for i in range(8): A(f"s_mov_b32 s{20+i}, 0")
        A("s_mov_b32 s94, 0\ns_mov_b32 s95, 0")
        if opt.get('prof')==2:
            for r in FACC: A(f"s_mov_b32 {r}, 0")
    step(A,opt)

def stamp(A,opt,i):
    if opt.get('prof')!=1: return
    A(f"""s_memtime s[28:29]
s_waitcnt lgkmcnt(0)
s_sub_u32 s31, s28, s30
s_add_u32 s{20+i}, s{20+i}, s31
s_mov_b32 s30, s28""")

def ts(A,opt,i):
    if opt.get('prof')==4: A(f"s_memrealtime s[{64+2*i}:{65+2*i}]")
def ts_flush(A,opt):
    if opt.get('prof')!=4: return
    A(f"""s_waitcnt lgkmcnt(0)
s_lshl_b32 s31, {sB}, 2
s_add_u32 s31, s31, {sW}
s_lshl_b32 s31, s31, 6
s_add_u32 s31, s31, {sS}
s_lshl_b32 s31, s31, 5
s_add_u32 s31, s31, {PROF+0x10000}
s_and_b32 s30, s94, 0xffff
s_lshl_b32 s29, s95, 16
s_or_b32 s30, s30, s29
v_mov_b32 v100, s64
v_mov_b32 v101, s66
v_mov_b32 v102, s68
v_mov_b32 v103, s70
v_mov_b32 v104, s72
v_mov_b32 v105, s74
v_mov_b32 v106, s76
v_mov_b32 v107, s30
s_mov_b64 exec, 1
buffer_store_dwordx4 v[100:103], v{vL16}, s[{S_WS}:{S_WS+3}], s31 offen
buffer_store_dwordx4 v[104:107], v{vL16}, s[{S_WS}:{S_WS+3}], s31 offen offset:16
s_mov_b64 exec, -1""")
FINE=[]
FACC=["s3","s20","s21","s22","s23","s88","s25","s26","s27","s89","s63","s98","s99"]
sKVB2="s[100:101]"; sKVR="s88"
CUTS=["start","qk","zbar","vpass","scores","max","expx","pv","a1","stores"]
def fs(A,opt,name):
    if opt.get('cut',-1)>=0 and CUTS[opt['cut']]==name:
        if CUTS.index(name)<CUTS.index("stores"): A(f"s_add_u32 {sS}, {sS}, 1")
        A(f"s_waitcnt vmcnt(20)\ns_cmp_ge_u32 {sS}, 63\ns_cbranch_scc1 L_chain_exit\ns_branch L_step")
    if opt.get('prof')!=2: return
    i=len(FINE); FINE.append(name)
    A(f"s_memtime s[{64+2*i}:{65+2*i}]")
    assert 65+2*i<84
def fs_collect(A,opt):
    if opt.get('prof')!=2: return
    A("s_waitcnt lgkmcnt(0)")
    for i in range(1,len(FINE)):
        A(f"s_sub_u32 s31, s{64+2*i}, s{62+2*i}\ns_add_u32 {FACC[i]}, {FACC[i]}, s31")
def sent_setup(A,opt):
    if True:
        A(f"""v_mov_b32 v{SENT}, -1
v_lshrrev_b32 v{SENT+1}, 5, v{vL16}
v_lshlrev_b32 v{SENT+1}, 14, v{SENT+1}
v_and_b32 v{SENT+2}, 16, v{vL16}
v_lshlrev_b32 v{SENT+2}, 2, v{SENT+2}
v_add_u32 v{SENT+1}, v{SENT+1}, v{SENT+2}
v_mov_b32 v{SENT+3}, 0x7ffffff0
v_cmp_gt_u32 vcc, {40*16}, v{vL16}
v_cndmask_b32 v{SENT+1}, v{SENT+3}, v{SENT+1}, vcc
v_cmp_gt_u32 vcc, 32, v{vL16}
v_cndmask_b32 v{SENT+2}, v{SENT+3}, v{SENT+2}, vcc""")
    else:
        A(f"v_mov_b64 {vr(SENT,2)}, -1\nv_mov_b64 {vr(SENT+2,2)}, -1")

def lds_op(A,lg,o,dst,hf):
    return lg.issue(f"ds_read_b128 {vr(dst+4*hf,4)}, v{vWO} offset:{(OPI[o]-50)*2048+hf*1024}")
def qk_preload(A,lg):
    for i,o in enumerate([("Q",0),("K",0),("Q",1),("K",1)]):
        for hf in range(2): lds_op(A,lg,o,KX+8*i,hf)

def step(A,opt):
    WS=f"s[{S_WS}:{S_WS+3}]"
    lg=Cnt(A,"lgkmcnt",15); vm=Cnt(A,"vmcnt",63)
    NOHK=opt.get('nohk',0)
    keep=[ZQ,ZK,ZQ+4,ZK+4,ZQ+8,ZK+8,ZQ+12,ZK+12]
    D=4
    def freg(tau): return keep[tau%5] if tau<10 else keep[tau-10] if tau<18 else MF[2] if tau==18 else MF[0]
    ftok={}
    def fread(tau,u):
        st,off=m_off(tau%10,u)
        base={(16,0):vMA16a,(8,0):vMA8a,(16,1):vMA16b,(8,1):vMA8b}[(st,tau//10)]
        ftok[tau]=lg.issue(f"ds_read_b64_tr_b16 {vr(freg(tau)+2*u,2)}, v{base} offset:{off}")
    def smf(acc,a,b): A(f"v_smfmac_f32_16x16x64_bf16 {vr(acc,4)}, {vr(a,4)}, {b}, v{vIDX}")
    def wop(m,t):
        if m in "QK" and t<2: return vr(KX+16*t+(8 if m=="K" else 0),8)
        return wreg(OPI[(m,t)])
    def cvt(d,a,b): A(f"v_cvt_pk_bf16_f32 v{d}, v{a}, v{b}")
    A(".p2align 6\nL_step:\ns_waitcnt lgkmcnt(0)\ns_barrier")
    fs(A,opt,"start"); ts(A,opt,0)
    if opt.get('prof')==4: A("s_memtime s[76:77]")
    def dma3(k):
        if opt.get('nodma'): return
        if k==0: A(f"s_lshl_b32 {sT[6]}, {sW}, 11\ns_add_u32 m0, {sKVB}, {sT[6]}\ns_add_u32 {sT[7]}, {sKX}, {sT[6]}"); vm.issue(f"buffer_load_dwordx4 v{vL16}, {WS}, {sT[7]} offen lds")
        if k==1: vm.issue(f"buffer_load_dwordx4 v{vL16}, {WS}, {sT[7]} offen offset:1024 lds"); A(f"s_lshr_b32 {sT[6]}, {sT[6]}, 1\ns_add_u32 {sT[7]}, {sVX}, {sT[6]}\ns_add_u32 {sT[6]}, {sT[6]}, 8192\ns_add_u32 m0, {sKVB}, {sT[6]}")
        if k==2: vm.issue(f"buffer_load_dwordx4 v{vL16}, {WS}, {sT[7]} offen lds"); kv_advance(A)
    T1=opt.get('t1',1)
    hk={}
    def h_flag():
        hk['t']=vm.issue(f"buffer_load_dword v{MF[0]}, v{vFLG}, {WS}, 0 offen sc1"); A(f"s_add_u32 {sT[4]}, {sS}, 3\ns_min_u32 {sT[4]}, {sT[4]}, 64")
    def h_p():
        A(f"s_add_u32 {sT[0]}, {sPGc}, {sPstO}")
        vm.issue(f"buffer_store_dword v{SENT}, v{SENT+1}, {WS}, {sT[0]} offen sc1")
    def h_m():
        A(f"s_add_u32 {sT[1]}, {sMb}, {sPubO}")
        vm.issue(f"buffer_store_dword v{SENT}, v{SENT+2}, s[{S_MC}:{S_MC+3}], {sT[1]} offen sc1")
    def h_km():
        A(f"v_mov_b32 v{SENT+3}, {sS}\ns_mov_b64 exec, 1")
        vm.issue(f"buffer_store_dword v{SENT+3}, v{vL16}, {WS}, {sKMFL} offen sc1")
        A("s_mov_b64 exec, -1")
    for tau in range(D):
        fread(tau,0); fread(tau,1)
        if not NOHK and tau==1: A(f"s_cmp_lg_u64 {sKVB2}, 0\ns_cbranch_scc1 L_kv_slow\nL_kv_ready:")
        if not NOHK and tau==2: h_flag()
        if not NOHK and tau==3: dma3(0)
    kxi=0
    for tau in range(20):
        lg.wait(ftok[tau])
        smf(ACCQ,freg(tau),wop("Q",tau))
        if tau+D<20: fread(tau+D,0)
        smf(ACCK,freg(tau),wop("K",tau))
        if tau+D<20: fread(tau+D,1)
        if not NOHK:
            if tau in (3,5,7) and not opt.get('nost'): [h_km,None,h_p,None,h_m][tau-3]()
            if tau==14 and not opt.get('nofl'): tfl=hk['t']; vm.wait(tfl); A(f"v_cmp_gt_u32 {sKVB2}, {sT[4]}, v{MF[0]}")
            DP=opt.get('dp',0)
            if tau<2: dma3(tau+1)
        if tau>=5 and tau%2==1 and kxi<8:
            if not opt.get('nokx'): lg.issue(f"ds_read_b128 {vr(KX+4*kxi,4)}, v{vKV} offset:{kxi*1024}")
            kxi+=1
    assert kxi==8 and len(ftok)==20
    fs(A,opt,"qk")
    vf=keep+[freg(18),freg(19)]
    sv=lambda i: smf(ACCV,vf[i],wop("V",i))
    sv(0); sv(1)
    cvt(ACCQ,ACCQ,ACCQ+1); cvt(ACCQ+1,ACCQ+2,ACCQ+3)
    lg.issue(f"ds_write_b64 v{vZW}, {vr(ACCQ,2)}")
    cvt(ACCK,ACCK,ACCK+1); cvt(ACCK+1,ACCK+2,ACCK+3)
    tz=lg.issue(f"ds_write_b64 v{vZW}, {vr(ACCK,2)} offset:512")
    T4=opt.get('t4',4)
    for i in range(2,2+T4): sv(i)
    lg.wait(tz)
    A("s_barrier")
    fs(A,opt,"zbar")
    ztok={}
    def zr(j,k):
        dst,base,off=[(ZQ+4*j,vZR0,0),(ZQ+4*j+2,vZR1,0),(ZK+4*j,vZR0,2048),(ZK+4*j+2,vZR1,2048)][k]
        ztok[j]=lg.issue(f"ds_read_b64_tr_b16 {vr(dst,2)}, v{base} offset:{off+512*j}")
    T3=opt.get('t3',1)
    for k in range(4): zr(0,k)
    for i in range(2+T4,6): sv(i)
    if T3==0:
        sv(6); zr(1,0); zr(1,1); sv(7); zr(1,2); zr(1,3)
        sv(8); zr(2,0); zr(2,1); sv(9); zr(2,2); zr(2,3)
    elif T3==1:
        sv(6); zr(1,0); sv(7); zr(1,1); sv(8); zr(1,2); sv(9); zr(1,3)
    elif T3==2:
        for k in range(4): zr(1,k)
        for k in range(4): zr(2,k)
        sv(6); sv(7); sv(8); sv(9)
    T2=opt.get('t2',1)
    stA=lambda: vm.issue(f"buffer_store_dwordx2 {vr(ACCQ,2)}, v{vZW}, s[{S_KM}:{S_KM+3}], {sKM} offen sc1")
    stB=lambda: vm.issue(f"buffer_store_dwordx2 {vr(ACCK,2)}, v{vZW}, s[{S_KM}:{S_KM+3}], {sKM} offen offset:512 sc1")
    stV=lambda: vm.issue(f"buffer_store_dwordx2 {vr(ACCV,2)}, v{vVW}, {WS}, {sVM} offen sc1")
    if opt.get('nokm'): stA=stB=stV=lambda: None
    chk=lambda: A(f"s_cmp_eq_u32 {sS}, 63\ns_cbranch_scc1 L_chain_exit")
    if T2==0: stA(); stB()
    fs(A,opt,"vpass")
    SX0,SX1,SM=(ACCQ,ACCK,MF[1]) if T2==0 else (MF[2],MF[0],MF[1])
    def mm(d,a,b,first): A(f"v_mfma_f32_16x16x32_bf16 {vr(d,4)}, {vr(a,4)}, {vr(b,4)}, {'0' if first else vr(d,4)}")
    VX,VM,OACC=KX,KX+16,ZK
    WB=[72,80,88,48,56,64]
    wtok={}
    def wread(u,hf): wtok[u]=lds_op(A,lg,("O",u),WB[u],hf)
    def vxread(T): return lg.issue(f"ds_read_b128 {vr(VX+4*T,4)}, v{vKV} offset:{8192+T*1024}")
    vmread=lambda T: lg.issue(f"ds_read_b64 {vr(VM+2*T,2)}, v{vL8} offset:{VB+T*512}")
    x0=lambda j: mm(SX0,KX+4*j,ZQ+4*j,j==0)
    xm=lambda j: mm(SM,ZK+4*j,ZQ+4*j,j==0)
    x1=lambda j: mm(SX1,KX+16+4*j,ZQ+4*j,j==0)
    lg.wait(ztok[0])
    if T3==1:
        x0(0); zr(2,0); zr(2,1); xm(0); zr(2,2); zr(2,3); x1(0); zr(3,0); zr(3,1)
        lg.wait(ztok[1])
    else:
        x0(0); zr(3,0); zr(3,1); xm(0); zr(3,2); zr(3,3); x1(0)
        lg.wait(ztok[1])
    if T3==1: x0(1); zr(3,2); zr(3,3); cvt(ACCV,ACCV,ACCV+1); xm(1); cvt(ACCV+1,ACCV+2,ACCV+3); x1(1)
    else: x0(1); cvt(ACCV,ACCV,ACCV+1); xm(1); cvt(ACCV+1,ACCV+2,ACCV+3); x1(1)
    tv=lg.issue(f"ds_write_b64 v{vVW}, {vr(ACCV,2)}")
    lg.wait(ztok[2])
    x0(2)
    if T2==0: stV()
    xm(2)
    if T2==0: chk()
    x1(2); vxread(0); vxread(1)
    lg.wait(ztok[3])
    x0(3)
    lg.wait(tv); A("s_barrier")
    xm(3); vxread(2); tvx=vxread(3)
    x1(3)
    for T in range(4): tvm=vmread(T)
    fs(A,opt,"scores")
    m,t,mc=(32,33,34) if T2==0 else (22,23,26)
    A(f"""
v_max3_f32 v{m}, v{SX0}, v{SX0+1}, v{SX0+2}
v_max3_f32 v{t}, v{SM}, v{SM+1}, v{SM+2}
v_max3_f32 v{m}, v{m}, v{SX0+3}, v{SM+3}
v_max3_f32 v{t}, v{t}, v{SX1}, v{SX1+1}
v_max3_f32 v{m}, v{m}, v{SX1+2}, v{SX1+3}
v_max_f32 v{mc}, v{m}, v{t}
v_max_f32 v{m}, v{m}, v{t}
""")
    wread(0,0); wread(0,1)
    A(f"v_permlane32_swap_b32 v{m}, v{mc}\nv_max_f32 v{t}, v{m}, v{mc}\nv_max_f32 v{m}, v{m}, v{mc}")
    wread(1,0); wread(1,1)
    A(f"v_permlane16_swap_b32 v{m}, v{t}\nv_max_f32 v{m}, v{m}, v{t}\nv_mul_f32 v{mc}, {hex(f2u(-SCALE_LOG2E))}, v{m}")
    fs(A,opt,"max")
    def pkf(r): A(f"v_pk_fma_f32 {vr(r,2)}, {vr(r,2)}, s[{sSC}:{sSC+1}], {vr(mc,2)} op_sel_hi:[1,0,0]")
    ex=lambda r: A(f"v_exp_f32 v{r}, v{r}")
    if T2==0:
        pkf(SX0); pkf(SX0+2); ex(SX0); pkf(SX1); ex(SX0+1); pkf(SX1+2); ex(SX0+2); wread(2,0); ex(SX0+3); wread(2,1)
        PX,PM,RI=SX0,40,42
        ex(SX1); cvt(PX,SX0,SX0+1); ex(SX1+1); cvt(PX+1,SX0+2,SX0+3); ex(SX1+2); pkf(SM); ex(SX1+3); pkf(SM+2)
        cvt(PX+2,SX1,SX1+1); cvt(PX+3,SX1+2,SX1+3)
    else:
        PX,PM,RI=20,42,40
        pkf(SX0); pkf(SX0+2); pkf(SX1); pkf(SX1+2)
        ex(SX0); stA(); ex(SX0+1); wread(2,0); ex(SX0+2); stB(); ex(SX0+3); wread(2,1)
        ex(SX1); stV(); ex(SX1+1); chk(); ex(SX1+2); ex(SX1+3)
        cvt(PX,SX0,SX0+1); cvt(PX+1,SX0+2,SX0+3); pkf(SM); cvt(PX+2,SX1,SX1+1); pkf(SM+2); cvt(PX+3,SX1+2,SX1+3)
    fs(A,opt,"expx")
    LT=ACCV
    lg.wait(tvx)
    ex(SM); mm(LT,ONES,PX,True)
    ex(SM+1); mm(OACC,VX,PX,True)
    ex(SM+2); mm(OACC+4,VX+4,PX,True)
    ex(SM+3); mm(OACC+8,VX+8,PX,True)
    cvt(PM,SM,SM+1); cvt(PM+1,SM+2,SM+3)
    mm(OACC+12,VX+12,PX,True)
    def mm16(d,a,b): A(f"v_mfma_f32_16x16x16_bf16 {vr(d,4)}, {vr(a,2)}, {vr(b,2)}, {vr(d,4)}")
    z=lambda r: A(f"v_mov_b64 {vr(r,2)}, 0")
    wread(3,0); wread(3,1)
    mm16(LT,HALF,PM); wread(4,0); z(20)
    mm16(OACC,VM,PM); wread(4,1); z(22)
    mm16(OACC+4,VM+2,PM); z(24); z(26)
    mm16(OACC+8,VM+4,PM); A(f"v_xor_b32 v{vKV}, {KVX}, v{vKV}")
    mm16(OACC+12,VM+6,PM)
    wread(5,0); wread(5,1)
    A(f"v_rcp_f32 v{RI}, v{LT}")
    z(28); z(30)
    fs(A,opt,"pv")
    def pkm(r): A(f"v_pk_mul_f32 {vr(r,2)}, {vr(r,2)}, {vr(RI,2)} op_sel_hi:[1,0]")
    for r in range(0,8,2): pkm(OACC+r)
    for i in range(4): cvt(OACC+i,OACC+2*i,OACC+2*i+1)
    WACC=20
    def wo(u):
        p,P=WORD[u]
        if u<6: lg.wait(wtok[u])
        smf(WACC+4*p,OACC+4*P,vr(WB[u],8) if u<6 else wop("O",u))
    pkm(OACC+8); pkm(OACC+10)
    wo(0)
    pkm(OACC+12); pkm(OACC+14)
    wo(1)
    cvt(OACC+4,OACC+8,OACC+9); cvt(OACC+5,OACC+10,OACC+11)
    wo(2)
    cvt(OACC+6,OACC+12,OACC+13); cvt(OACC+7,OACC+14,OACC+15)
    z(32); z(34)
    fs(A,opt,"a1")
    wo(3)
    A(f"s_add_u32 {sT[0]}, {sPGa}, {sPstO}\ns_add_u32 {sT[1]}, {sT[0]}, {8*16384}")
    z(36)
    wo(4)
    A(f"s_add_u32 {sT[2]}, {sT[0]}, {16*16384}\ns_mov_b32 {sT[5]}, 0xfffffffe")
    z(38)
    wo(5)
    A(f"s_add_u32 {sKM}, {sKM}, 2048\ns_add_u32 {sVM}, {sVM}, 4096\ns_add_u32 {sS}, {sS}, 1")
    wo(6)
    A(f"s_add_u32 {sT[3]}, {sPGa}, {sRdO}\ns_add_u32 {sT[4]}, {sT[3]}, 4096")
    mn=lambda r: A(f"v_min_u32 v{r}, {sT[5]}, v{r}")
    cvt(20,20,21); cvt(21,22,23)
    wo(7)
    cvt(22,24,25); cvt(23,26,27)
    wo(8)
    mn(20)
    vm.issue(f"buffer_store_dwordx4 {vr(20,4)}, v{vP0}, {WS}, {sT[0]} offen sc1")
    wo(9)
    cvt(28,28,29); cvt(29,30,31); mn(28); cvt(30,32,33); cvt(31,34,35)
    vm.issue(f"buffer_store_dwordx4 {vr(28,4)}, v{vP0}, {WS}, {sT[1]} offen sc1")
    cvt(36,36,37); cvt(37,38,39); mn(36)
    vm.issue(f"buffer_store_dwordx2 {vr(36,2)}, v{vP2}, {WS}, {sT[2]} offen sc1")
    fs(A,opt,"stores"); ts(A,opt,1)
    stamp(A,opt,0); fs_collect(A,opt)
    RL,RACC,SEL=48,24,80
    A(f"""
s_cmp_ge_u32 {sW}, 2
s_cbranch_scc1 L_plain
s_cmp_lt_i32 {sTask}, 0
s_cbranch_scc1 L_plain
s_add_u32 {sT[2]}, {sMa}, {sPubO}
s_mov_b32 {sSpin}, 0
s_waitcnt vmcnt({max(opt.get('W1',0),opt.get('W1b',2))})
s_cmp_eq_u32 {sW}, 1
s_cbranch_scc1 L_sel
s_waitcnt vmcnt({opt.get('W1',0)})
L_sel:
v_lshrrev_b32 v86, 4, v{vL16}
v_and_b32 v84, 1, v86
v_lshlrev_b32 v84, 4, v84
v_mov_b32 v85, 0x3f80
v_lshlrev_b32 v85, v84, v85
v_bfe_u32 v84, v86, 1, 2
""")
    for j in range(4):
        A(f"v_cmp_eq_u32 vcc, {j}, v84\nv_cndmask_b32 v{SEL+j}, 0, v85, vcc")
    A(f"""
v_and_b32 v84, 0x70, v{vL16}
v_bfe_u32 v86, v86, 4, 1
v_lshl_add_u32 v86, v86, 3, v84
""")
    if opt.get('d1',0): A(f"s_sleep {opt['d1']}")
    ts(A,opt,2)
    A("L_poll1:")
    for j in range(8): A(f"buffer_load_dwordx4 {vr(RL+4*j,4)}, v{vL16}, {WS}, {sT[3+(j>>2)]} offen offset:{(j&3)*1024} sc1")
    for j in range(8):
        A(f"s_waitcnt vmcnt({7-j})")
        if j==7: A(f"v_max3_u32 v84, v84, v{RL+24}, v{RL+28}")
        mm(RACC,SEL,RL+4*j,j==0)
        if j==1: A(f"v_max_u32 v84, v{RL}, v{RL+4}")
        elif j in (3,5): A(f"v_max3_u32 v84, v84, v{RL+4*j-4}, v{RL+4*j}")
    A("v_cmp_eq_u32 vcc, -1, v84")
    for i in range(4): A(f"v_add_f32_dpp v{28+i}, v{RACC+i}, v{RACC+i} row_ror:8 row_mask:0xf bank_mask:0xf")
    A(f"""
v_cvt_pk_bf16_f32 v28, v28, v29
v_cvt_pk_bf16_f32 v29, v30, v31
v_min_u32 v28, {sT[5]}, v28
s_cbranch_vccnz L_retry1
s_mov_b64 exec, 0x00ff00ff
buffer_store_dwordx2 v[28:29], v86, {WS}, {sT[2]} offen sc1
s_mov_b64 exec, 1""")
    ts(A,opt,3)
    A("s_barrier")
    if opt.get('prof'): A(f"s_add_u32 s94, s94, {sSpin}")
    stamp(A,opt,1)
    A("s_mov_b64 exec, -1")
    def prep(parts):
        if parts&1: qk_preload(A,Cnt(A,"lgkmcnt",15))
        if parts&2: sent_setup(A,opt)
        if parts&4:
            for i in range(0,12,2): z(ACCQ+i)
    prep(7)
    if opt.get('W2',0): A("s_waitcnt vmcnt(0)")
    if opt.get('d2r',4): A(f"s_sleep {opt.get('d2r',4)}")
    A("L_gather:")
    stamp(A,opt,2); ts(A,opt,4)
    NC=1
    CP=[(80,84,88),(32,36,40),(104,92,42)]
    def cload(k,so):
        a,b,c=CP[k]
        A(f"""buffer_load_dwordx4 {vr(a,4)}, v{vL16}, {WS}, {so} offen sc1
buffer_load_dwordx4 {vr(b,4)}, v{vL16}, {WS}, {so} offen offset:1024 sc1
buffer_load_dwordx2 {vr(c,2)}, v{vL8}, {WS}, {so} offen offset:2048 sc1""")
    def ctake(k,left,fail,first=False):
        a,b,c=CP[k]
        A(f"""s_waitcnt vmcnt({left+2})
ds_write_b128 v{vMW16}, {vr(a,4)}
s_waitcnt vmcnt({left+1})
ds_write_b128 v{vMW16}, {vr(b,4)} offset:1024
s_waitcnt vmcnt({left})
ds_write_b64 v{vMW8}, {vr(c,2)}
v_max3_u32 v90, v{a}, v{b}, v{c}
v_cmp_eq_u32 vcc, -1, v90""")
    A(f"""
s_add_u32 {sT[0]}, {sMa}, {sMLO}
s_add_u32 {sT[2]}, {sT[0]}, 32768
s_add_u32 {sT[3]}, {sT[0]}, 65536""")
    cload(0,sT[0])
    if NC>1:
        for _ in range(opt.get('dc',0)): A("s_nop 15")
        cload(1,sT[2])
    if NC>2:
        for _ in range(opt.get('dc',0)): A("s_nop 15")
        cload(2,sT[3])
    A(f"""s_mov_b32 {sSpin}, 0
s_mov_b32 {sT[1]}, {sPGa}""")
    ctake(0,3*(NC-1),None,True)
    A("s_cbranch_vccnz L_copy1\nL_got2:")
    if opt.get('prof'): A(f"s_add_u32 s95, s95, {sSpin}")
    stamp(A,opt,3); ts(A,opt,5); ts_flush(A,opt)
    A(f"""s_mov_b32 {sPGa}, {sPGb}
s_mov_b32 {sPGb}, {sPGc}
s_mov_b32 {sPGc}, {sT[1]}
s_mov_b32 {sT[1]}, {sMa}
s_mov_b32 {sMa}, {sMb}
s_mov_b32 {sMb}, {sMc}
s_mov_b32 {sMc}, {sT[1]}
s_branch L_step
L_plain:""")
    ts(A,opt,2); ts(A,opt,3)
    prep(opt.get('pre',0))
    A("s_barrier")
    prep(7-opt.get('pre',0))
    if opt.get('d2n',4): A(f"s_sleep {opt.get('d2n',4)}")
    A(f"""s_branch L_gather
L_kv_slow:
s_add_u32 {sT[4]}, {sS}, 2
s_min_u32 {sT[4]}, {sT[4]}, 64""")
    wait_kv(A,sT[4],MF[0],0x103)
    A(("s_endpgm" if NOHK else "s_branch L_kv_ready")+"\nL_retry1:\ns_waitcnt vmcnt(0)")
    spin_tail(A,sSpin,"L_poll1",0x104)
    A("L_copy1:")
    if opt.get('prof'): A(f"s_add_u32 {sSpin}, {sSpin}, 1")
    for k in range(1,NC):
        A(f"s_add_u32 {sSpin}, {sSpin}, 1")
        ctake(k,3*(NC-1-k),None)
        A("s_cbranch_vccz L_got2")
    A("L_poll2:")
    cload(0,sT[0]); ctake(0,0,None)
    A("s_cbranch_vccz L_got2")
    spin_tail(A,sSpin,"L_poll2",0x105)
    A(f"""L_chain_exit:
s_waitcnt vmcnt(0)
v_mov_b32 v{KX+4}, 64
s_mov_b64 exec, 1
buffer_store_dword v{KX+4}, v{vL16}, {WS}, {sKMFL} offen sc1
s_waitcnt vmcnt(0)""")
    if opt.get('prof'):
        A(f"""s_memtime s[90:91]
s_memrealtime s[28:29]
s_waitcnt lgkmcnt(0)
s_sub_u32 s24, s90, s97
s_sub_u32 s30, s92, s96
s_sub_u32 s29, s28, s92
s_lshl_b32 s31, {sB}, 2
s_add_u32 s31, s31, {sW}
s_lshl_b32 s31, s31, 7
s_add_u32 s31, s31, {PROF}""")
        for i,r in enumerate(["s20","s21","s22","s23","s24","s30","s29","s94","s95","s96"]+(FACC[1:] if opt.get('prof')==2 else ["s3","s63","s59"])):
            A(f"v_mov_b32 v20, {r}\nbuffer_store_dword v20, v{vL16}, {WS}, s31 offen offset:{4*i}")
        A("s_waitcnt vmcnt(0)")
    A("s_endpgm")
```

```python
from common import *
import chain as C
from chain import (MB,ZB,VB,KVB,KVX,vIDX,vL16,vL8,vMA16a,vMA8a,vMA16b,vMA8b,vZW,vZR0,vZR1,vVW,vP0,vP2,vFLG,vKV,vWO,vMW16,vMW8,
  HALF,ACCQ,ACCK,ACCV,MF,ONES,KX,ZQ,ZK,sH,sC,sB,sT,sSC,sSpin,WORD,OPS,OPI,wreg,m_off,kv_dma,kv_advance,wait_kv,pstamp,stamp,ts,ts_flush,fs,fs_collect,FACC,
  sS,sTask,sPGa,sPGb,sMa,sMb,sMc,sPubO,sMLO,sPstO,sRdO,sKX,sVX,sKM,sVM,sKMFL,sKVB,sPGc,sKVB2)
WS=f"s[{S_WS}:{S_WS+3}]"; DB=f"s[{S_DB}:{S_DB+3}]"
WOFF=4096; SENT=108
sTCH="s8"; sOUT="s9"; sOL="s10"; sTM="s11"
def lds_op(A,lg,o,dst,hf):
    return lg.issue(f"ds_read_b128 {vr(dst+4*hf,4)}, v{vWO} offset:{WOFF+(OPI[o]-50)*2048+hf*1024}")
def qk_preload(A,lg):
    for i,o in enumerate([("Q",0),("K",0),("Q",1),("K",1)]):
        for hf in range(2): lds_op(A,lg,o,KX+8*i,hf)
def hk_setup(A):
    A(f"""ds_read_b128 {vr(SENT,4)}, v{vWO} offset:2048
s_add_u32 {sT[6+3]}, {sPGc}, {sPstO}
s_add_u32 {sT[2]}, {sMb}, {sPubO}
v_mov_b32 v91, {sS}
s_waitcnt lgkmcnt(0)
v_and_b32 v{SENT+2}, {sT[9]}, v{SENT+2}
v_and_b32 v{SENT+3}, {sT[2]}, v{SENT+3}
v_add3_u32 v{SENT+1}, v{SENT+1}, v{SENT+2}, v{SENT+3}
v_or_b32 v{SENT}, v{SENT}, v91""")

def role_chain(A,opt):
    C.OPT.update(opt)
    C.lane_setup(A,14,16384)
    C.weights_prologue(A,WOFF)
    pstamp(A,opt,"s3")
    l="v108"
    A(f"""
v_mov_b32 v{HALF}, 0x3f003f00
v_mov_b32 v{HALF+1}, 0x3f003f00
v_mov_b32 v{ONES}, 0x3f803f80
v_mov_b32 v{ONES+1}, 0x3f803f80
v_mov_b32 v{ONES+2}, 0x3f803f80
v_mov_b32 v{ONES+3}, 0x3f803f80
s_mov_b32 s{sSC}, {hex(f2u(SCALE_LOG2E))}
s_mov_b32 s{sSC+1}, {hex(f2u(SCALE_LOG2E))}
v_and_b32 v48, 1, {l}
v_mul_u32_u24 v49, {D_POL}, v48
v_mov_b32 v50, {NAUX}
v_mov_b32 v51, 0x80000000
v_cmp_eq_u32 vcc, 1, v48
v_cndmask_b32 v50, v50, v51, vcc
s_mov_b32 {sSpin}, 0
s_cmp_lg_u32 {sW}, 0
s_cbranch_scc1 L_cst_bar
L_cst:
buffer_load_dword v51, v49, {DB}, 0 offen sc1
s_waitcnt vmcnt(0)
v_cmp_gt_u32 vcc, v50, v51
s_cbranch_vccz L_cst_bar
""")
    spin_tail(A,sSpin,"L_cst",0x101,sleep=8)
    A(f"""
L_cst_bar:
s_barrier
buffer_load_dword v51, v49, {DB}, 0 offen sc1
s_lshr_b32 {sT[0]}, {sB}, 4
s_mul_i32 {sT[0]}, {sT[0]}, 20
s_and_b32 {sT[1]}, {sB}, 15
s_add_u32 {sT[0]}, {sT[0]}, {sT[1]}
s_add_u32 {sT[0]}, {sT[0]}, 4
s_lshr_b32 {sT[1]}, {sB}, 2
s_mul_i32 {sT[1]}, {sT[1]}, 20
s_and_b32 {sT[2]}, {sB}, 3
s_add_u32 {sT[1]}, {sT[1]}, {sT[2]}
s_cmp_lt_u32 {sB}, 16
s_cselect_b32 {sT[1]}, {sT[1]}, -1
s_bitcmp1_b32 {sW}, 0
s_cselect_b32 {sTask}, {sT[1]}, {sT[0]}
s_max_i32 {sT[0]}, {sTask}, 0
s_lshl_b32 {sRdO}, {sT[0]}, 14
s_mul_i32 {sT[1]}, {sT[0]}, 3277
s_lshr_b32 {sT[1]}, {sT[1]}, 16          ; task / 20
s_mul_i32 {sT[2]}, {sT[1]}, 20
s_sub_u32 {sT[2]}, {sT[0]}, {sT[2]}
s_lshl_b32 {sPubO}, {sT[2]}, 7
s_lshr_b32 {sT[2]}, {sT[1]}, 1
s_lshl_b32 {sT[2]}, {sT[2]}, 14
s_add_u32 {sPubO}, {sPubO}, {sT[2]}
s_and_b32 {sT[2]}, {sT[1]}, 1
s_lshl_b32 {sT[2]}, {sT[2]}, 12
s_add_u32 {sPubO}, {sPubO}, {sT[2]}
s_lshr_b32 {sT[2]}, {sW}, 1
s_lshl_b32 {sMLO}, {sT[2]}, 14
s_and_b32 {sT[2]}, {sW}, 1
s_lshl_b32 {sT[2]}, {sT[2]}, 12
s_add_u32 {sMLO}, {sMLO}, {sT[2]}
s_mul_i32 {sPstO}, {sW}, {20*16384}
s_lshl_b32 {sT[2]}, {sB}, 7
s_add_u32 {sPstO}, {sPstO}, {sT[2]}
s_lshl_b32 {sT[0]}, {sH}, 19
s_add_u32 {sKX}, {sT[0]}, {KXF}
s_lshl_b32 {sT[1]}, {sC}, 12
s_add_u32 {sVX}, {sT[0]}, {sT[1]}
s_add_u32 {sVX}, {sVX}, {VXF}
s_lshl_b32 {sT[0]}, {sH}, 17
s_add_u32 {sKM}, {sT[0]}, {KMF}
s_lshl_b32 {sT[0]}, {sH}, 18
s_lshl_b32 {sT[1]}, {sC}, 11
s_add_u32 {sVM}, {sT[0]}, {sT[1]}
s_add_u32 {sVM}, {sVM}, {VMF}
s_lshl_b32 {sT[0]}, {sH}, 1
s_add_u32 {sT[0]}, {sT[0]}, {sC}
s_lshl_b32 {sT[0]}, {sT[0]}, 7
s_lshl_b32 {sT[1]}, {sW}, 2
s_add_u32 {sKMFL}, {sT[0]}, {sT[1]}
s_add_u32 {sKMFL}, {sKMFL}, {F_KM}
s_mov_b32 {sKVB}, {KVB}
s_mov_b32 {sS}, 0
s_mov_b32 {sOL}, {ZB+2048}
s_cmp_eq_u32 {sW}, 2
s_cselect_b32 {sOL}, {VB}, {sOL}
s_cselect_b32 {sOUT}, {sVM}, {sKM}
s_lshl_b32 {sT[0]}, {sW}, 12
s_add_u32 {sTCH}, {sKX}, {sT[0]}
s_cmp_eq_u32 {sW}, 2
s_cselect_b32 {sTCH}, {sVX}, {sTCH}
s_add_u32 {sTCH}, {sTCH}, 8192
s_lshl_b32 {sTM}, {sW}, 8
s_add_u32 {sTM}, {sTM}, 122880
v_and_b32 v52, 1, {l}
v_lshlrev_b32 v52, 4, v52
v_mov_b32 v53, 0x3f80
v_lshlrev_b32 v53, v52, v53
v_bfe_u32 v52, {l}, 1, 2
""")
    for j in range(4): A(f"v_cmp_eq_u32 vcc, {j}, v52\nv_cndmask_b32 v{56+j}, 0, v53, vcc")
    A(f"""
ds_write_b128 v{vWO}, v[56:59]
v_and_b32 v56, 7, {l}
v_lshlrev_b32 v56, 4, v56
v_bfe_u32 v57, {l}, 4, 1
v_lshl_add_u32 v56, v57, 3, v56
v_mov_b32 v61, 0x7ffffff0
v_and_b32 v57, 31, {l}
v_lshlrev_b32 v57, 7, v57
s_cmp_lt_u32 {sW}, 3
s_cselect_b32 {sT[0]}, 32, 0
v_cmp_gt_u32 vcc, {sT[0]}, {l}
v_cndmask_b32 v57, v61, v57, vcc
v_mov_b32 v58, 0
v_mov_b32 v59, 0
ds_write_b128 v{vWO}, v[56:59] offset:1024
v_lshrrev_b32 v56, 1, {l}
v_and_b32 v57, 1, {l}
v_lshlrev_b32 v57, 6, v57
v_lshl_add_u32 v53, v56, 14, v57         ; lanes 0..39
v_mov_b32 v52, -1
v_mov_b32 v54, -1
v_mov_b32 v55, 0
v_cmp_lt_u32 vcc, 39, {l}
v_cndmask_b32 v53, v53, v61, vcc
v_cndmask_b32 v54, v54, v55, vcc
s_cmp_ge_u32 {sW}, 2
s_cselect_b32 {sT[0]}, 20, 99
s_cmp_lt_i32 {sTask}, 0
s_cselect_b32 {sT[0]}, 99, {sT[0]}
v_cmp_eq_u32 vcc, {sT[0]}, v56
v_cndmask_b32 v53, v53, v57, vcc
v_cndmask_b32 v55, v55, v52, vcc
v_mov_b32 v57, {sKMFL}
v_cmp_eq_u32 vcc, 42, {l}
v_cndmask_b32 v53, v53, v57, vcc
v_cndmask_b32 v52, v52, 0, vcc
ds_write_b128 v{vWO}, v[52:55] offset:2048
s_waitcnt vmcnt(0)
v_readlane_b32 {sT[0]}, v51, 1
s_and_b32 {sT[1]}, {sT[0]}, 1
s_lshl_b32 {sPGa}, {sT[1]}, 13
s_lshr_b32 {sT[1]}, {sT[0]}, 1
s_and_b32 {sT[1]}, {sT[1]}, 1
s_lshl_b32 {sT[1]}, {sT[1]}, 13
s_add_u32 {sPGb}, {sT[1]}, {PAGE}
s_lshr_b32 {sT[1]}, {sT[0]}, 2
s_and_b32 {sT[1]}, {sT[1]}, 1
s_lshl_b32 {sT[1]}, {sT[1]}, 13
s_add_u32 {sPGc}, {sT[1]}, {2*PAGE}
s_add_u32 {sMa}, {sPGa}, {80*16384}
s_add_u32 {sMb}, {sPGa}, {82*16384}
s_add_u32 {sMc}, {sPGa}, {84*16384}
""")
    vm=Cnt(A,"vmcnt",63)
    wait_kv(A,"1",98,0x102)
    pstamp(A,opt,"s59")
    kv_dma(A,vm,4); kv_advance(A)
    A(f"v_cmp_gt_u32 {sKVB2}, 2, v98")
    A(f"""s_waitcnt lgkmcnt(0)
ds_read_b128 v[92:95], v{vWO} offset:2048
s_add_u32 {sT[0]}, {sPGb}, {sPstO}
s_waitcnt lgkmcnt(0)
s_bfm_b64 exec, 40, 0
buffer_store_dword v92, v93, {WS}, {sT[0]} offen sc1
s_mov_b64 exec, -1""")
    qk_preload(A,Cnt(A,"lgkmcnt",15))
    A(f"ds_read_b32 v{MF[1]}, v{vWO} offset:1028")
    hk_setup(A)
    for i in range(0,12,2): A(f"v_mov_b64 {vr(ACCQ+i,2)}, 0")
    A("s_waitcnt vmcnt(0) lgkmcnt(0)")
    if opt.get('prof'):
        A("s_memrealtime s[92:93]\ns_memtime s[28:29]\ns_waitcnt lgkmcnt(0)\ns_mov_b32 s30, s28\ns_mov_b32 s97, s28")
        for i in range(8): A(f"s_mov_b32 s{20+i}, 0")
        A("s_mov_b32 s94, 0\ns_mov_b32 s95, 0")
        if opt.get('prof')==2:
            for r in FACC: A(f"s_mov_b32 {r}, 0")
    step(A,opt)

def step(A,opt):
    lg=Cnt(A,"lgkmcnt",15); vm=Cnt(A,"vmcnt",63)
    NOHK=opt.get('nohk',0)
    keep=[ZQ,ZK,ZQ+4,ZK+4,ZQ+8,ZK+8,ZQ+12,ZK+12]
    D=4
    def freg(tau): return keep[tau%5] if tau<10 else keep[tau-10] if tau<18 else MF[2] if tau==18 else MF[0]
    ftok={}
    def fread(tau,u):
        st,off=m_off(tau%10,u)
        base={(16,0):vMA16a,(8,0):vMA8a,(16,1):vMA16b,(8,1):vMA8b}[(st,tau//10)]
        ftok[tau]=lg.issue(f"ds_read_b64_tr_b16 {vr(freg(tau)+2*u,2)}, v{base} offset:{off}")
    def smf(acc,a,b): A(f"v_smfmac_f32_16x16x64_bf16 {vr(acc,4)}, {vr(a,4)}, {b}, v{vIDX}")
    def wop(m,t):
        if m in "QK" and t<2: return vr(KX+16*t+(8 if m=="K" else 0),8)
        return wreg(OPI[(m,t)])
    def cvt(d,a,b): A(f"v_cvt_pk_bf16_f32 v{d}, v{a}, v{b}")
    z=lambda r: A(f"v_mov_b64 {vr(r,2)}, 0")
    A(".p2align 6\nL_step:\ns_waitcnt lgkmcnt(0)\ns_barrier")
    fs(A,opt,"start"); ts(A,opt,0)
    if opt.get('prof')==4: A("s_memtime s[76:77]")
    RU=opt.get('ru',4)
    for tau in range(RU):
        fread(tau,0); fread(tau,1)
        if tau==1 and not NOHK: A(f"s_cmp_lg_u64 {sKVB2}, 0\ns_cbranch_scc1 L_kv_slow\nL_kv_ready:")
    kxi=[0]
    def kxr():
        k=[0,4,1,5,2,6,3,7][kxi[0]]; kxi[0]+=1
        lg.issue(f"ds_read_b128 {vr(KX+4*k,4)}, v{vKV} offset:{k*1024}")
    qa=lambda t: smf(ACCQ,freg(t),wop("Q",t)); qb=lambda t: smf(ACCK,freg(t),wop("K",t))
    for tau in range(18):
        lg.wait(ftok[tau])
        nxt=[t for t in range(20) if t not in ftok and t<=tau+D][:2 if tau<D-RU else 1]
        qa(tau)
        if nxt: fread(nxt[0],0)
        elif tau>=16: kxr()
        if len(nxt)>1: fread(nxt[0],1)
        qb(tau)
        if len(nxt)>1: fread(nxt[1],0); fread(nxt[1],1)
        elif nxt: fread(nxt[0],1)
        elif tau>=16: kxr()
        if not NOHK:
            if tau==0:
                tfl=vm.issue(f"buffer_load_dword v{MF[0]}, v{vFLG}, {WS}, 0 offen sc1")
                A(f"s_add_u32 {sT[4]}, {sS}, 3\ns_min_u32 {sT[4]}, {sT[4]}, 64")
            if tau==0: A(f"s_mov_b32 m0, {sTM}")
            if tau==1 and opt.get('touch',1): vm.issue(f"buffer_load_dword v{MF[1]}, {WS}, {sTCH} offen lds"); A(f"s_add_u32 {sTCH}, {sTCH}, 8192")
            if tau==3: vm.issue(f"buffer_store_dword v{SENT}, v{SENT+1}, {WS}, 0 offen sc1")
            if tau==12: vm.wait(tfl)
            if tau==13: A(f"v_cmp_gt_u32 {sKVB2}, {sT[4]}, v{MF[0]}")
    assert len(ftok)==20
    vf=keep+[freg(18),freg(19)]
    sv=lambda i: smf(ACCV,vf[i],wop("V",i))
    lg.wait(ftok[19])
    qa(18); kxr(); qa(19); kxr(); qb(18); kxr(); qb(19); kxr()
    fs(A,opt,"qk")
    sv(0)
    cvt(ACCQ,ACCQ,ACCQ+1); cvt(ACCQ+1,ACCQ+2,ACCQ+3)
    sv(1)
    lg.issue(f"ds_write_b64 v{vZW}, {vr(ACCQ,2)}")
    cvt(ACCK,ACCK,ACCK+1); cvt(ACCK+1,ACCK+2,ACCK+3)
    tz=lg.issue(f"ds_write_b64 v{vZW}, {vr(ACCK,2)} offset:512")
    T4=opt.get('t4',4)
    for i in range(2,2+T4): sv(i)
    lg.wait(tz)
    A("s_barrier")
    fs(A,opt,"zbar")
    ztok={}
    def zr(j,k):
        dst,base,off=[(ZQ+4*j,vZR0,0),(ZQ+4*j+2,vZR1,0),(ZK+4*j,vZR0,2048),(ZK+4*j+2,vZR1,2048)][k]
        ztok[j]=lg.issue(f"ds_read_b64_tr_b16 {vr(dst,2)}, v{base} offset:{off+512*j}")
    for k in range(4): zr(0,k)
    for i in range(2+T4,6): sv(i)
    sv(6); zr(1,0); zr(1,1); sv(7); zr(1,2); zr(1,3); sv(8); zr(2,0); zr(2,1); sv(9); zr(2,2); zr(2,3)
    fs(A,opt,"vpass")
    SX0,SX1,SM=ACCQ,ACCK,MF[1]
    def mm(d,a,b,first): A(f"v_mfma_f32_16x16x32_bf16 {vr(d,4)}, {vr(a,4)}, {vr(b,4)}, {'0' if first else vr(d,4)}")
    VX,VM,OACC=KX,KX+16,ZK
    WB={0:80,1:72,2:88,3:48,4:56,5:64}
    wtok={}
    def wread(u,hf): wtok[u]=lds_op(A,lg,("O",u),WB[u],hf)
    def vxread(T): return lg.issue(f"ds_read_b128 {vr(VX+4*T,4)}, v{vKV} offset:{8192+T*1024}")
    vmread=lambda T: lg.issue(f"ds_read_b64 {vr(VM+2*T,2)}, v{vL8} offset:{VB+T*512}")
    x0=lambda j: mm(SX0,KX+4*j,ZQ+4*j,j==0)
    xm=lambda j: mm(SM,ZK+4*j,ZQ+4*j,j==0)
    x1=lambda j: mm(SX1,KX+16+4*j,ZQ+4*j,j==0)
    lg.wait(ztok[0])
    xm(0); zr(3,0); zr(3,1); x0(0); zr(3,2); zr(3,3); x1(0); vxread(0)
    lg.wait(ztok[1])
    xm(1); cvt(ACCV,ACCV,ACCV+1); cvt(ACCV+1,ACCV+2,ACCV+3); x0(1)
    tv=lg.issue(f"ds_write_b64 v{vVW}, {vr(ACCV,2)}")
    x1(1); vxread(1)
    lg.wait(ztok[2])
    xm(2); wread(0,0); x0(2); wread(0,1); x1(2); vxread(2)
    lg.wait(tv); A(f"s_barrier\ns_cmp_eq_u32 {sS}, 63")
    xm(3); vmread(0); vmread(1); x0(3); vmread(2); tvm=vmread(3); x1(3); tvx=vxread(3)
    A("s_cbranch_scc1 L_chain_exit")
    m,t,mc=32,33,34
    fs(A,opt,"scores")
    A(f"""v_max3_f32 v{m}, v{SM}, v{SM+1}, v{SM+2}
v_max3_f32 v{t}, v{SX0}, v{SX0+1}, v{SX0+2}
v_max3_f32 v{m}, v{m}, v{SM+3}, v{SX0+3}
v_max3_f32 v{t}, v{t}, v{SX1}, v{SX1+1}
v_max3_f32 v{m}, v{m}, v{SX1+2}, v{SX1+3}
v_max_f32 v{mc}, v{m}, v{t}
v_max_f32 v{m}, v{m}, v{t}
v_xor_b32 v{vKV}, {KVX}, v{vKV}""")
    PV=opt.get('pv',0)
    if PV&2: wread(1,0)
    A(f"""v_permlane32_swap_b32 v{m}, v{mc}
v_max_f32 v{t}, v{m}, v{mc}
v_max_f32 v{m}, v{m}, v{mc}""")
    if PV&2: wread(1,1)
    A(f"""v_permlane16_swap_b32 v{m}, v{t}
v_max_f32 v{m}, v{m}, v{t}
v_mul_f32 v{mc}, {hex(f2u(-SCALE_LOG2E))}, v{m}""")
    fs(A,opt,"max")
    def pkf(r): A(f"v_pk_fma_f32 {vr(r,2)}, {vr(r,2)}, s[{sSC}:{sSC+1}], {vr(mc,2)} op_sel_hi:[1,0,0]")
    ex=lambda r: A(f"v_exp_f32 v{r}, v{r}")
    PX,PM,RI=SX0,40,42
    pkf(SX0); pkf(SX0+2); pkf(SX1); pkf(SX1+2)
    for r in range(8): ex(SX0+r)
    pkf(SM); cvt(PX,SX0,SX0+1); cvt(PX+1,SX0+2,SX0+3); cvt(PX+2,SX1,SX1+1); cvt(PX+3,SX1+2,SX1+3); pkf(SM+2)
    fs(A,opt,"expx")
    LT=ACCV
    lg.wait(tvx)
    rd=[(1,0),(1,1),(2,0),(2,1)] if not PV&2 else [(2,0),(2,1)]
    def nx():
        if rd: wread(*rd.pop(0))
    if PV&1:
        for r in range(4): ex(SM+r)
        mm(LT,ONES,PX,True); nx(); cvt(PM,SM,SM+1)
        mm(OACC,VX,PX,True); nx(); cvt(PM+1,SM+2,SM+3)
        mm(OACC+4,VX+4,PX,True); nx()
        mm(OACC+8,VX+8,PX,True); nx()
        mm(OACC+12,VX+12,PX,True)
    elif PV&4:
        mm(LT,ONES,PX,True); ex(SM)
        mm(OACC,VX,PX,True); ex(SM+1)
        mm(OACC+4,VX+4,PX,True); ex(SM+2)
        mm(OACC+8,VX+8,PX,True); ex(SM+3)
        mm(OACC+12,VX+12,PX,True)
        cvt(PM,SM,SM+1); cvt(PM+1,SM+2,SM+3)
        nx(); nx()
    else:
        ex(SM); mm(LT,ONES,PX,True); nx()
        ex(SM+1); mm(OACC,VX,PX,True); nx()
        ex(SM+2); mm(OACC+4,VX+4,PX,True); nx()
        ex(SM+3); mm(OACC+8,VX+8,PX,True); nx()
        cvt(PM,SM,SM+1); cvt(PM+1,SM+2,SM+3)
        mm(OACC+12,VX+12,PX,True)
    def mm16(d,a,b): A(f"v_mfma_f32_16x16x16_bf16 {vr(d,4)}, {vr(a,2)}, {vr(b,2)}, {vr(d,4)}")
    wread(3,0); z(20)
    mm16(LT,HALF,PM); wread(3,1); z(22)
    mm16(OACC,VM,PM); wread(4,0); z(24)
    mm16(OACC+4,VM+2,PM); wread(4,1); z(26)
    mm16(OACC+8,VM+4,PM); z(32)
    mm16(OACC+12,VM+6,PM); z(34)
    A(f"v_rcp_f32 v{RI}, v{LT}")
    z(28); z(30)
    fs(A,opt,"pv")
    def pkm(r): A(f"v_pk_mul_f32 {vr(r,2)}, {vr(r,2)}, {vr(RI,2)} op_sel_hi:[1,0]")
    for r in range(0,8,2): pkm(OACC+r)
    for i in range(4): cvt(OACC+i,OACC+2*i,OACC+2*i+1)
    WACC=20
    def wo(u):
        p,P=WORD[u]
        if u<6: lg.wait(wtok[u])
        smf(WACC+4*p,OACC+4*P,vr(WB[u],8) if u<6 else wop("O",u))
    pkm(OACC+8); pkm(OACC+10)
    wo(0); wread(5,0)
    pkm(OACC+12); pkm(OACC+14)
    wo(1); wread(5,1)
    cvt(OACC+4,OACC+8,OACC+9); cvt(OACC+5,OACC+10,OACC+11)
    wo(2)
    cvt(OACC+6,OACC+12,OACC+13); cvt(OACC+7,OACC+14,OACC+15)
    fs(A,opt,"a1")
    SEL,PUB=80,84
    wo(3)
    A(f"s_add_u32 {sT[0]}, {sPGa}, {sPstO}\ns_add_u32 {sT[1]}, {sT[0]}, {8*16384}")
    z(36)
    wo(4)
    A(f"s_add_u32 {sT[2]}, {sT[0]}, {16*16384}\ns_mov_b32 {sT[5]}, 0xfffffffe")
    z(38)
    wo(5)
    A(f"s_add_u32 {sS}, {sS}, 1\ns_add_u32 {sT[3]}, {sPGa}, {sRdO}")
    wo(6)
    A(f"s_add_u32 {sT[4]}, {sT[3]}, 4096\ns_add_u32 {sT[8]}, {sMa}, {sPubO}")
    mn=lambda r: A(f"v_min_u32 v{r}, {sT[5]}, v{r}")
    st0=lambda: vm.issue(f"buffer_store_dwordx4 {vr(20,4)}, v{vP0}, {WS}, {sT[0]} offen sc1")
    st1=lambda: vm.issue(f"buffer_store_dwordx4 {vr(28,4)}, v{vP0}, {WS}, {sT[1]} offen sc1")
    st2=lambda: vm.issue(f"buffer_store_dwordx2 {vr(36,2)}, v{vP2}, {WS}, {sT[2]} offen sc1")
    WT=opt.get('wt',1)
    if WT==0:
        cvt(20,20,21); cvt(21,22,23)
        wo(7)
        cvt(22,24,25); cvt(23,26,27)
        wo(8)
        mn(20); st0()
        wo(9)
    elif WT==1:
        cvt(20,20,21); cvt(21,22,23); mn(20)
        wo(7)
        cvt(22,24,25); cvt(23,26,27); st0()
        wo(8); wo(9)
    elif WT==2:
        cvt(20,20,21); cvt(21,22,23); mn(20); cvt(22,24,25); cvt(23,26,27); st0()
        wo(7); wo(8); wo(9)
    A(f"s_cmp_ge_u32 {sW}, 2")
    cvt(28,28,29); cvt(29,30,31); mn(28); cvt(30,32,33); cvt(31,34,35)
    st1()
    cvt(36,36,37); cvt(37,38,39); mn(36)
    st2()
    fs(A,opt,"stores"); ts(A,opt,1)
    fs_collect(A,opt)
    if opt.get('prof')==2: A(f"s_cmp_ge_u32 {sW}, 2")
    RL,RACC=48,24
    A(f"""
s_cbranch_scc1 L_house
s_cmp_lt_i32 {sTask}, 0
s_cbranch_scc1 L_plain
ds_read_b128 {vr(SEL,4)}, v{vWO}
ds_read_b32 v{PUB}, v{vWO} offset:1024
s_mov_b32 {sSpin}, 0
s_waitcnt vmcnt({max(opt.get('W1',0),opt.get('W1b',2))})
s_cmp_eq_u32 {sW}, 1
s_cbranch_scc1 L_sel
s_waitcnt vmcnt({opt.get('W1',0)})
L_sel:
""")
    if opt.get('d1',2): A(f"s_sleep {opt.get('d1',2)}")
    ts(A,opt,2)
    A("L_poll1:")
    for j in range(8): A(f"buffer_load_dwordx4 {vr(RL+4*j,4)}, v{vL16}, {WS}, {sT[3+(j>>2)]} offen offset:{(j&3)*1024} sc1")
    A("s_waitcnt lgkmcnt(0)")
    for j in range(8):
        A(f"s_waitcnt vmcnt({7-j})")
        if j==7: A(f"v_max3_u32 v86, v86, v{RL+24}, v{RL+28}")
        mm(RACC,SEL,RL+4*j,j==0)
        if j==1: A(f"v_max_u32 v86, v{RL}, v{RL+4}")
        elif j in (3,5): A(f"v_max3_u32 v86, v86, v{RL+4*j-4}, v{RL+4*j}")
    A("v_cmp_eq_u32 vcc, -1, v86")
    for i in range(4): A(f"v_add_f32_dpp v{28+i}, v{RACC+i}, v{RACC+i} row_ror:8 row_mask:0xf bank_mask:0xf")
    A(f"""
v_cvt_pk_bf16_f32 v28, v28, v29
v_cvt_pk_bf16_f32 v29, v30, v31
v_min_u32 v28, {sT[5]}, v28
s_cbranch_vccnz L_retry1
s_mov_b64 exec, 0x00ff00ff
buffer_store_dwordx2 v[28:29], v{PUB}, {WS}, {sT[8]} offen sc1
s_mov_b64 exec, -1""")
    ts(A,opt,3)
    A("s_barrier")
    if opt.get('prof'): A(f"s_add_u32 s94, s94, {sSpin}")
    def prep():
        qk_preload(A,Cnt(A,"lgkmcnt",15))
        A(f"ds_read_b32 v{MF[1]}, v{vWO} offset:1028")
        hk_setup(A)
        for i in range(0,12,2): z(ACCQ+i)
    def rotate():
        A(f"""s_mov_b32 {sT[1]}, {sPGa}
s_mov_b32 {sPGa}, {sPGb}
s_mov_b32 {sPGb}, {sPGc}
s_mov_b32 {sPGc}, {sT[1]}
s_add_u32 {sT[0]}, {sMa}, {sMLO}
s_mov_b32 {sT[1]}, {sMa}
s_mov_b32 {sMa}, {sMb}
s_mov_b32 {sMb}, {sMc}
s_mov_b32 {sMc}, {sT[1]}""")
    rotate(); prep()
    if opt.get('d2r',5): A(f"s_sleep {opt.get('d2r',5)}")
    A("L_gather:")
    ts(A,opt,4)
    def cload(): A(f"""buffer_load_dwordx4 v[80:83], v{vL16}, {WS}, {sT[0]} offen sc1
buffer_load_dwordx4 v[84:87], v{vL16}, {WS}, {sT[0]} offen offset:1024 sc1
buffer_load_dwordx2 v[88:89], v{vL8}, {WS}, {sT[0]} offen offset:2048 sc1""")
    def ctake(): A(f"""s_waitcnt vmcnt(2)
ds_write_b128 v{vMW16}, v[80:83]
s_waitcnt vmcnt(1)
ds_write_b128 v{vMW16}, v[84:87] offset:1024
s_waitcnt vmcnt(0)
ds_write_b64 v{vMW8}, v[88:89]
v_max3_u32 v90, v80, v84, v88
v_cmp_eq_u32 vcc, -1, v90""")
    cload()
    A(f"s_mov_b32 {sSpin}, 0")
    ctake()
    A("s_cbranch_vccnz L_retry2\nL_got2:")
    if opt.get('prof'): A(f"s_add_u32 s95, s95, {sSpin}")
    ts(A,opt,5); ts_flush(A,opt)
    A("s_branch L_step\nL_house:")
    ts(A,opt,2); ts(A,opt,3)
    kv_dma(A,vm,2)
    A(f"""v_add_u32 v64, {sOL}, v{vL16}
ds_read_b128 v[48:51], v64
ds_read_b128 v[52:55], v64 offset:1024
s_cmp_eq_u32 {sW}, 3
s_cselect_b32 {sT[0]}, {sC}, 0
s_cmp_lg_u32 {sT[0]}, 0
s_cbranch_scc1 L_house2
s_waitcnt lgkmcnt(0)
buffer_store_dwordx4 v[48:51], v{vL16}, {WS}, {sOUT} offen sc1
buffer_store_dwordx4 v[52:55], v{vL16}, {WS}, {sOUT} offen offset:1024 sc1
L_house2:
s_mov_b32 {sT[0]}, 2048
s_cmp_eq_u32 {sW}, 2
s_cselect_b32 {sT[0]}, 4096, {sT[0]}
s_add_u32 {sOUT}, {sOUT}, {sT[0]}
s_waitcnt lgkmcnt(0)""")
    kv_advance(A)
    A("s_branch L_plain2\nL_plain:")
    ts(A,opt,2); ts(A,opt,3)
    A("L_plain2:")
    rotate(); prep()
    A("s_barrier")
    if opt.get('d2n',8): A(f"s_sleep {opt.get('d2n',8)}")
    A(f"""s_branch L_gather
L_kv_slow:
s_add_u32 {sT[4]}, {sS}, 2
s_min_u32 {sT[4]}, {sT[4]}, 64""")
    wait_kv(A,sT[4],MF[0],0x103)
    A(("s_endpgm" if NOHK else "s_branch L_kv_ready")+"\nL_retry1:\ns_waitcnt vmcnt(0)")
    spin_tail(A,sSpin,"L_poll1",0x104)
    A("L_retry2:")
    if opt.get('prof'): A(f"s_add_u32 {sSpin}, {sSpin}, 1")
    A("L_poll2:")
    cload(); ctake()
    A("s_cbranch_vccz L_got2")
    spin_tail(A,sSpin,"L_poll2",0x105)
    A(f"""L_chain_exit:
s_cmp_lt_u32 {sW}, 2
s_cbranch_scc1 L_exit_flag
v_add_u32 v64, {sOL}, v{vL16}
ds_read_b128 v[48:51], v64
ds_read_b128 v[52:55], v64 offset:1024
s_cmp_eq_u32 {sW}, 3
s_cselect_b32 {sT[0]}, {sC}, 0
s_cmp_lg_u32 {sT[0]}, 0
s_cbranch_scc1 L_exit_flag
s_waitcnt lgkmcnt(0)
buffer_store_dwordx4 v[48:51], v{vL16}, {WS}, {sOUT} offen sc1
buffer_store_dwordx4 v[52:55], v{vL16}, {WS}, {sOUT} offen offset:1024 sc1
L_exit_flag:
s_waitcnt vmcnt(0)
v_mov_b32 v{KX+16}, 64
s_mov_b64 exec, 1
buffer_store_dword v{KX+16}, v{vL16}, {WS}, {sKMFL} offen sc1
s_waitcnt vmcnt(0)""")
    if opt.get('prof'):
        A(f"""s_memtime s[90:91]
s_memrealtime s[28:29]
s_waitcnt lgkmcnt(0)
s_sub_u32 s24, s90, s97
s_sub_u32 s30, s92, s96
s_sub_u32 s29, s28, s92
s_lshl_b32 s31, {sB}, 2
s_add_u32 s31, s31, {sW}
s_lshl_b32 s31, s31, 7
s_add_u32 s31, s31, {PROF}""")
        for i,r in enumerate(["s20","s21","s22","s23","s24","s30","s29","s94","s95","s96"]+(FACC[1:] if opt.get('prof')==2 else ["s3","s63","s59"])):
            A(f"v_mov_b32 v20, {r}\nbuffer_store_dword v20, v{vL16}, {WS}, s31 offen offset:{4*i}")
        A("s_waitcnt vmcnt(0)")
    A("s_endpgm")
```
